```python
import torch

def _softmax(x, axis=-1):
    return torch.softmax(x, dim=axis)
def _gelu(x):
    return torch.nn.functional.gelu(x, approximate="tanh")
def _silu(x):
    return torch.nn.functional.silu(x)
def _sigmoid(x):
    return torch.sigmoid(x)
def _layernorm(x, axis=-1, eps=1e-5):
    m = x.mean(dim=axis, keepdim=True)
    v = x.var(dim=axis, keepdim=True, unbiased=False)
    return (x - m) / torch.sqrt(v + eps)
def _scatter_add(tgt, idx, src, axis=0):
    return tgt.clone().index_add_(axis, idx, src)
def _segment_sum(src, seg, n):
    out = torch.zeros((n,) + src.shape[1:], dtype=src.dtype)
    return out.index_add_(0, seg, src)
def _pad(x, pw):
    flat = tuple(v for pair in reversed(pw) for v in pair)
    return torch.nn.functional.pad(x, flat)

kernel_name = 'interleave_layers__softmax_full_mha__glu_gated_reglu__prompt'

def setup_inputs():

    _w = (lambda a: (lambda t: t.to(torch.bfloat16) if t.is_floating_point() else t)(torch.as_tensor(a)))
    def _A_setup():
        B, S, D = 1, 2048, 512
        return {
            "x": _w((lambda *s: torch.randn(*s, dtype=torch.bfloat16) * 0.05)(B, S, D)),
            "wqkv": _w((lambda *s: torch.randn(*s, dtype=torch.bfloat16) * 0.05)(D, 3 * D)),
            "wo": _w((lambda *s: torch.randn(*s, dtype=torch.bfloat16) * 0.05)(D, D)),
        }
    _A_in = _A_setup()

    def _B_setup():
        B, S, D, F = 1, 2048, 512, 1792
        return {
            "x": _w((lambda *s: torch.randn(*s, dtype=torch.bfloat16) * 0.05)(B, S, D)),
            "W_gate": _w((lambda *s: torch.randn(*s, dtype=torch.bfloat16) * 0.4)(D, F) * (2.0 / D) ** 0.5),
            "W_up": _w((lambda *s: torch.randn(*s, dtype=torch.bfloat16) * 0.4)(D, F) * (2.0 / D) ** 0.5),
            "W_down": _w((lambda *s: torch.randn(*s, dtype=torch.bfloat16) * 0.4)(F, D) * (1.0 / F) ** 0.5),
        }
    _B_in = _B_setup()

    return {
        "A_x": _A_in["x"],
        "A_wqkv": _A_in["wqkv"],
        "A_wo": _A_in["wo"],
        "B_x": _B_in["x"],
        "B_W_gate": _B_in["W_gate"],
        "B_W_up": _B_in["W_up"],
        "B_W_down": _B_in["W_down"],
    }

def reference(A_x, A_wqkv, A_wo, B_x, B_W_gate, B_W_up, B_W_down):
    def _A_ref(x, wqkv, wo):
        B, S, D = x.shape
        H = 32; Dh = D // H
        qkv = (lambda x, *d: x.permute(*d))((x @ wqkv).reshape(B, S, 3, H, Dh), 2, 0, 3, 1, 4)
        q, k, v = qkv[0], qkv[1], qkv[2]
        scale = Dh ** -0.5
        scores = torch.einsum("bhqd,bhkd->bhqk", q, k) * scale
        p = _softmax(scores, axis=-1)
        o = torch.einsum("bhqk,bhkd->bhqd", p, v)
        return (lambda x, *d: x.permute(*d))(o, 0, 2, 1, 3).reshape(B, S, D) @ wo

    def _B_ref(x, W_gate, W_up, W_down):
        gate = torch.einsum("bsd,df->bsf", x, W_gate)
        up = torch.einsum("bsd,df->bsf", x, W_up)
        gate = gate * (lambda x, dt: x.to(dt))(gate > 0, gate.dtype)
        h = gate * up
        return torch.einsum("bsf,fd->bsd", h, W_down)

    x = A_x
    x = x + _A_ref(_layernorm(x, axis=-1), A_wqkv, A_wo)
    x = x + _B_ref(_layernorm(x, axis=-1), B_W_gate, B_W_up, B_W_down)
    x = x + _A_ref(_layernorm(x, axis=-1), A_wqkv, A_wo)
    x = x + _B_ref(_layernorm(x, axis=-1), B_W_gate, B_W_up, B_W_down)
    return x
```

```python
import sys, math

NAME = "interleave_layers__softmax_full_mha__glu_gated_reglu__prompt"

MB = 1 << 20
XF    = 0 * MB
QF    = 2 * MB
KF    = 4 * MB
VF    = 6 * MB
OF    = 8 * MB
HF    = 10 * MB
WQKVP = 18 * MB
WOP   = 20 * MB
WGUP  = 21 * MB
WDP   = 25 * MB
STA   = 27 * MB
STB   = 27 * MB + 0x20000
CSQKV = 27 * MB + 0x40000
CSGU  = 27 * MB + 0x44000
WS_SIZE = 28 * MB

LOG2E = 1.4426950408889634
import struct
def f32hex(x):
    return "0x%08x" % struct.unpack("<I", struct.pack("<f", x))[0]

class Asm:
    def __init__(self):
        self.lines = []
    def __call__(self, s):
        for l in s.split("\n"):
            l = l.strip()
            if l:
                self.lines.append("    " + l)
    def label(self, l):
        self.lines.append(l + ":")
    def raw(self, s):
        self.lines.append(s)
    def text(self):
        return "\n".join(self.lines) + "\n"

def vr(b, n=4): return f"v[{b}:{b+n-1}]"
def ar(b, n=4): return f"a[{b}:{b+n-1}]"

def kernel_begin(a, name):
    a.raw(f".globl {name}")
    a.raw(".p2align 8")
    a.raw(f".type {name},@function")
    a.label(name)

def kernel_desc(name, nvgpr, accum, nsgpr=96):
    return f""".p2align 6
.amdhsa_kernel {name}
  .amdhsa_next_free_vgpr {nvgpr}
  .amdhsa_next_free_sgpr {nsgpr}
  .amdhsa_accum_offset {accum}
  .amdhsa_group_segment_fixed_size 0
  .amdhsa_kernarg_size 80
  .amdhsa_user_sgpr_count 2
  .amdhsa_user_sgpr_kernarg_segment_ptr 1
  .amdhsa_system_sgpr_workgroup_id_x 1
.end_amdhsa_kernel
"""

def make_srd(a, d, src, size):
    a(f"s_mov_b32 s{d}, s{src}")
    a(f"s_mov_b32 s{d+1}, s{src+1}")
    a(f"s_mov_b32 s{d+2}, {hex(size)}")
    a(f"s_mov_b32 s{d+3}, 0x00020000")

def reduce_g(a, x, t):
    a(f"v_mov_b32 v{t}, v{x}")
    a("s_nop 1")
    a(f"v_permlane32_swap_b32 v{x}, v{t}")
    a(f"v_add_f32 v{x}, v{x}, v{t}")
    a(f"v_mov_b32 v{t}, v{x}")
    a("s_nop 1")
    a(f"v_permlane16_swap_b32 v{x}, v{t}")
    a(f"v_add_f32 v{x}, v{x}, v{t}")

def reduce_g_multi(a, xs, ts):
    for x, t in zip(xs, ts):
        a(f"v_mov_b32 v{t}, v{x}")
    a("s_nop 1")
    for x, t in zip(xs, ts):
        a(f"v_permlane32_swap_b32 v{x}, v{t}")
    a("s_nop 1")
    for x, t in zip(xs, ts):
        a(f"v_add_f32 v{x}, v{x}, v{t}")
    for x, t in zip(xs, ts):
        a(f"v_mov_b32 v{t}, v{x}")
    a("s_nop 1")
    for x, t in zip(xs, ts):
        a(f"v_permlane16_swap_b32 v{x}, v{t}")
    a("s_nop 1")
    for x, t in zip(xs, ts):
        a(f"v_add_f32 v{x}, v{x}, v{t}")

PREP_NWG = 280
def gen_prep(a):
    name = "prep_kernel"
    kernel_begin(a, name)
    a(f"s_cmp_ge_u32 s2, {PREP_NWG}")
    a("s_cbranch_scc1 LP_end")
    a("s_load_dwordx2 s[4:5], s[0:1], 72")
    a("s_load_dwordx4 s[40:43], s[0:1], 0")
    a("s_load_dwordx2 s[44:45], s[0:1], 16")
    a("s_load_dwordx4 s[48:51], s[0:1], 32")
    a("s_load_dwordx2 s[52:53], s[0:1], 48")
    a("v_lshrrev_b32 v1, 6, v0")
    a("v_and_b32 v2, 63, v0")
    a("v_readfirstlane_b32 s3, v1")
    a("v_and_b32 v3, 15, v2")
    a("v_lshrrev_b32 v4, 4, v2")
    a("s_waitcnt lgkmcnt(0)")
    make_srd(a, 8, 4, WS_SIZE)
    a("s_cmp_ge_u32 s2, 152")
    a("s_cbranch_scc1 LP_x")
    a("s_cmp_ge_u32 s2, 88")
    a("s_cbranch_scc1 LP_down")
    a("s_cmp_ge_u32 s2, 32")
    a("s_cbranch_scc1 LP_gu")
    a("s_cmp_ge_u32 s2, 24")
    a("s_cbranch_scc1 LP_wo")
    make_srd(a, 12, 42, 512*1536*2)
    a("s_mov_b32 s16, 3072")
    a("s_lshl_b32 s17, s2, 7")
    a("s_mov_b32 s18, 16")
    a("s_lshl_b32 s23, s2, 2")
    a("s_add_u32 s23, s23, s3")
    a("s_lshr_b32 s24, s23, 5")
    a("s_and_b32 s25, s23, 31")
    a("s_lshr_b32 s26, s25, 1")
    a("s_and_b32 s25, s25, 1")
    a("s_lshl_b32 s24, s24, 1")
    a("s_add_u32 s24, s24, s25")
    a("s_mul_i32 s19, s26, 96")
    a("s_add_u32 s19, s19, s24")
    a("s_lshl_b32 s19, s19, 10")
    a(f"s_add_u32 s19, s19, {hex(WQKVP)}")
    a("s_mov_b32 s20, 6144")
    a("s_mov_b32 s21, 0")
    a("s_mul_i32 s22, s26, 6")
    a("s_add_u32 s22, s22, s24")
    a("s_lshl_b32 s22, s22, 6")
    a(f"s_add_u32 s22, s22, {hex(CSQKV)}")
    a("s_branch LP_w")
    a.label("LP_wo")
    make_srd(a, 12, 44, 512*512*2)
    a("s_sub_u32 s23, s2, 24")
    a("s_mov_b32 s16, 1024")
    a("s_lshl_b32 s17, s23, 7")
    a("s_mov_b32 s18, 16")
    a("s_lshl_b32 s19, s23, 6")
    a("s_add_u32 s19, s19, s3")
    a("s_lshl_b32 s19, s19, 10")
    a(f"s_add_u32 s19, s19, {hex(WOP)}")
    a("s_mov_b32 s20, 4096")
    a("s_mov_b32 s21, 1")
    a("s_mov_b32 s22, 0")
    a("s_branch LP_w")
    a.label("LP_gu")
    a("s_sub_u32 s23, s2, 32")
    a("s_mov_b32 s27, 0")
    make_srd(a, 12, 48, 512*1792*2)
    a("s_cmp_lt_u32 s23, 28")
    a("s_cbranch_scc1 LP_gu2")
    a("s_sub_u32 s23, s23, 28")
    a("s_mov_b32 s27, 1")
    a("s_mov_b32 s12, s50")
    a("s_mov_b32 s13, s51")
    a.label("LP_gu2")
    a("s_mov_b32 s16, 3584")
    a("s_lshl_b32 s17, s23, 7")
    a("s_mov_b32 s18, 16")
    a("s_lshl_b32 s23, s23, 2")
    a("s_add_u32 s23, s23, s3")
    a("s_mul_i32 s26, s23, 147")
    a("s_lshr_b32 s26, s26, 10")
    a("s_mul_i32 s24, s26, 7")
    a("s_sub_u32 s24, s23, s24")
    a("s_lshl_b32 s24, s24, 1")
    a("s_add_u32 s24, s24, s27")
    a("s_mul_i32 s19, s26, 224")
    a("s_add_u32 s19, s19, s24")
    a("s_lshl_b32 s19, s19, 10")
    a(f"s_add_u32 s19, s19, {hex(WGUP)}")
    a("s_mov_b32 s20, 14336")
    a("s_mov_b32 s21, 0")
    a("s_mul_i32 s22, s26, 14")
    a("s_add_u32 s22, s22, s24")
    a("s_lshl_b32 s22, s22, 6")
    a(f"s_add_u32 s22, s22, {hex(CSGU)}")
    a("s_branch LP_w")
    a.label("LP_down")
    make_srd(a, 12, 52, 1792*512*2)
    a("s_sub_u32 s23, s2, 88")
    a("s_lshr_b32 s24, s23, 3")
    a("s_and_b32 s25, s23, 7")
    a("s_mov_b32 s16, 1024")
    a(f"s_mul_i32 s17, s24, {224*1024}")
    a("s_lshl_b32 s26, s25, 7")
    a("s_add_u32 s17, s17, s26")
    a("s_mov_b32 s18, 7")
    a("s_mul_i32 s19, s25, 56")
    a("s_mul_i32 s26, s24, 7")
    a("s_add_u32 s19, s19, s26")
    a("s_lshl_b32 s19, s19, 2")
    a("s_add_u32 s19, s19, s3")
    a("s_lshl_b32 s19, s19, 10")
    a(f"s_add_u32 s19, s19, {hex(WDP)}")
    a("s_mov_b32 s20, 4096")
    a("s_mov_b32 s21, 2")
    a("s_mov_b32 s22, 0")
    a.label("LP_w")
    a("v_lshrrev_b32 v5, 3, v2")
    a("v_mul_lo_u32 v5, v5, s16")
    a("v_and_b32 v6, 7, v2")
    a("v_lshlrev_b32 v6, 4, v6")
    a("v_add_u32 v5, v5, v6")
    a("s_mul_i32 s24, s3, s18")
    a("s_lshl_b32 s25, s24, 10")
    a("s_lshl_b32 s26, s16, 3")
    a("s_mul_i32 s27, s24, s26")
    a("s_add_u32 s27, s27, s17")
    a("s_mov_b32 s28, s18")
    a.label("LP_dma")
    a("s_mov_b32 m0, s25")
    a("s_add_u32 s25, s25, 1024")
    a("buffer_load_dwordx4 v5, s[12:15], s27 offen lds")
    a("s_add_u32 s27, s27, s26")
    a("s_sub_u32 s28, s28, 1")
    a("s_cmp_lg_u32 s28, 0")
    a("s_cbranch_scc1 LP_dma")
    a("v_lshrrev_b32 v6, 2, v3")
    a("v_and_b32 v7, 3, v3")
    a("v_lshlrev_b32 v7, 3, v7")
    a("s_lshl_b32 s24, s3, 5")
    a("v_add_u32 v7, s24, v7")
    a("v_lshl_add_u32 v8, v4, 2, v6")
    a("v_lshrrev_b32 v9, 1, v4")
    a("v_lshlrev_b32 v9, 4, v9")
    a("v_and_b32 v10, 1, v4")
    a("v_lshl_add_u32 v9, v10, 2, v9")
    a("v_add_u32 v9, v9, v6")
    a("v_lshl_add_u32 v8, v8, 7, v7")
    a("v_lshl_add_u32 v9, v9, 7, v7")
    a("v_lshlrev_b32 v10, 4, v2")
    for i in range(4):
        a(f"v_mov_b32 v{12+i}, 0x3f803f80")
        a(f"v_mov_b32 v{16+i}, 0")
    a("s_waitcnt vmcnt(0)")
    a("s_barrier")
    a("s_cmp_eq_u32 s21, 1")
    a("s_cbranch_scc1 LP_pi2")
    a("s_cmp_eq_u32 s21, 2")
    a("s_cbranch_scc1 LP_dn")
    def steps(offs, base, colsum):
        n = len(offs)
        for s, (o1, o2) in enumerate(offs):
            a(f"ds_read_b64_tr_b16 {vr(32+4*s,2)}, v{base} offset:{o1}")
            a(f"ds_read_b64_tr_b16 {vr(34+4*s,2)}, v{base} offset:{o2}")
        a("s_mov_b32 s24, s19")
        for s in range(n):
            rem = 2*(n-1-s)
            a(f"s_waitcnt lgkmcnt({min(rem,15)})")
            a(f"buffer_store_dwordx4 {vr(32+4*s)}, v10, s[8:11], s24 offen")
            if colsum:
                a(f"v_mfma_f32_16x16x32_bf16 v[16:19], {vr(32+4*s)}, v[12:15], v[16:19]")
            a("s_add_u32 s24, s24, s20")
    steps([(4096*s, 4096*s+2048) for s in range(16)], 8, True)
    a("s_nop 7")
    a("s_nop 1")
    a("v_lshlrev_b32 v11, 4, v4")
    a("v_cmp_eq_u32 vcc, 0, v3")
    a("s_and_saveexec_b64 s[30:31], vcc")
    a("buffer_store_dwordx4 v[16:19], v11, s[8:11], s22 offen")
    a("s_branch LP_end")
    a.label("LP_pi2")
    steps([(4096*s, 4096*s+1024) for s in range(16)], 9, False)
    a("s_branch LP_end")
    a.label("LP_dn")
    pairs = [(0,1),(2,3),(4,5),(7,8),(9,10),(11,12),(6,13)]
    steps([(2048*p, 2048*q) for p, q in pairs], 8, False)
    a("s_branch LP_end")
    a.label("LP_x")
    make_srd(a, 12, 40, 2048*512*2)
    a("s_sub_u32 s23, s2, 152")
    a("s_lshl_b32 s24, s23, 14")
    a("s_lshl_b32 s25, s3, 8")
    a("s_add_u32 s24, s24, s25")
    a("v_lshlrev_b32 v5, 10, v3")
    a("v_lshl_add_u32 v5, v4, 3, v5")
    for s in range(4):
        a(f"buffer_load_dwordx2 {vr(32+4*s,2)}, v5, s[12:15], s24 offen offset:{64*s}")
        a(f"buffer_load_dwordx2 {vr(34+4*s,2)}, v5, s[12:15], s24 offen offset:{64*s+32}")
    a("v_lshlrev_b32 v10, 4, v2")
    a("s_lshl_b32 s26, s23, 4")
    a("s_lshl_b32 s27, s3, 2")
    a("s_add_u32 s26, s26, s27")
    a("s_lshl_b32 s26, s26, 10")
    a(f"s_add_u32 s26, s26, {hex(XF)}")
    a("v_mov_b32 v12, 0x3f803f80")
    for i in range(4):
        a(f"v_mov_b32 v{16+i}, 0")
    a("s_waitcnt vmcnt(0)")
    for s in range(4):
        a(f"buffer_store_dwordx4 {vr(32+4*s)}, v10, s[8:11], s26 offen offset:{1024*s}")
    for blk in range(2):
        for i in range(8):
            r = 32 + 8*blk + i
            a(f"v_dot2_f32_bf16 v{16+2*blk}, v{r}, v12, v{16+2*blk}")
            a(f"v_dot2_f32_bf16 v{17+2*blk}, v{r}, v{r}, v{17+2*blk}")
    a("s_nop 3")
    reduce_g_multi(a, [16,17,18,19], [20,21,22,23])
    a("s_lshl_b32 s26, s23, 10")
    a("s_lshl_b32 s27, s3, 4")
    a("s_add_u32 s26, s26, s27")
    a(f"s_add_u32 s26, s26, {hex(STA)}")
    a("v_lshlrev_b32 v11, 6, v3")
    a("v_cmp_eq_u32 vcc, 0, v4")
    a("s_and_saveexec_b64 s[30:31], vcc")
    a("buffer_store_dwordx4 v[16:19], v11, s[8:11], s26 offen")
    a.label("LP_end")
    a("s_endpgm")
    return kernel_desc(name, 104, 104)

def stats_finish(a, ps, tmps, outs_nm, outs_rs):
    for p in ps:
        a(f"v_add_f32 v{p}, v{p}, v{p+2}")
        a(f"v_add_f32 v{p+1}, v{p+1}, v{p+3}")
    xs = []
    for p in ps:
        xs += [p, p+1]
    reduce_g_multi(a, xs, tmps[:len(xs)])
    for p, nm, rs in zip(ps, outs_nm, outs_rs):
        a(f"v_mul_f32 v{nm}, {f32hex(-1.0/512)}, v{p}")
        a(f"v_mul_f32 v{p+2}, v{nm}, v{nm}")
        a(f"v_mov_b32 v{p+3}, {f32hex(1.0/512)}")
        a(f"v_fma_f32 v{p+2}, v{p+1}, v{p+3}, -v{p+2}")
        a(f"v_max_f32 v{p+2}, 0, v{p+2}")
        a(f"v_add_f32 v{p+2}, {f32hex(1e-5)}, v{p+2}")
        a(f"v_rsq_f32 v{rs}, v{p+2}")
    a("s_nop 0")

def gen_qkv(a):
    name = "qkv_kernel"
    kernel_begin(a, name)
    a("s_cmp_ge_u32 s2, 256")
    a("s_cbranch_scc1 LQ_end")
    a("s_load_dwordx2 s[4:5], s[0:1], 72")
    a("v_lshrrev_b32 v1, 6, v0")
    a("v_and_b32 v2, 63, v0")
    a("v_readfirstlane_b32 s3, v1")
    a("v_and_b32 v3, 15, v2")
    a("v_lshrrev_b32 v4, 4, v2")
    a("v_lshlrev_b32 v1, 4, v2")
    a("s_and_b32 s16, s2, 7")
    a("s_lshr_b32 s17, s2, 3")
    a("s_lshr_b32 s18, s16, 1")
    a("s_lshl_b32 s18, s18, 2")
    a("s_and_b32 s19, s17, 3")
    a("s_add_u32 s18, s18, s19")
    a("s_and_b32 s19, s16, 1")
    a("s_lshl_b32 s19, s19, 3")
    a("s_lshr_b32 s17, s17, 2")
    a("s_add_u32 s19, s19, s17")
    a("s_lshl_b32 s20, s18, 2")
    a("s_add_u32 s20, s20, s3")
    a("s_waitcnt lgkmcnt(0)")
    make_srd(a, 8, 4, WS_SIZE)
    a("v_lshlrev_b32 v5, 6, v3")
    a("v_lshl_add_u32 v5, v4, 4, v5")
    a("s_lshl_b32 s21, s20, 11")
    a(f"s_add_u32 s21, s21, {hex(STA)}")
    a("buffer_load_dwordx4 v[112:115], v5, s[8:11], s21 offen")
    a("buffer_load_dwordx4 v[116:119], v5, s[8:11], s21 offen offset:1024")
    a("v_lshlrev_b32 v6, 4, v4")
    a("v_lshlrev_b32 v7, 2, v3")
    a("s_mul_i32 s22, s19, 384")
    a(f"s_add_u32 s22, s22, {hex(CSQKV)}")
    for i in range(4):
        a(f"buffer_load_dwordx4 {vr(120+4*i)}, v6, s[8:11], s22 offen offset:{64*i}")
    a("buffer_load_dword v136, v7, s[8:11], s22 offen offset:256")
    a("buffer_load_dword v137, v7, s[8:11], s22 offen offset:320")
    a("s_lshl_b32 s23, s20, 15")
    a(f"s_add_u32 s23, s23, {hex(XF)}")
    a("s_add_u32 s24, s23, 16384")
    a(f"s_mul_i32 s25, s19, {96*1024}")
    a(f"s_add_u32 s25, s25, {hex(WQKVP)}")
    a("s_mul_i32 s26, s3, 6144")
    a("s_add_u32 s25, s25, s26")
    for c in range(4):
        for s4 in range(4):
            s = 4*c + s4
            a(f"buffer_load_dwordx4 {ar(8*s)}, v1, s[8:11], s23 offen offset:{1024*s4}")
            a(f"buffer_load_dwordx4 {ar(8*s+4)}, v1, s[8:11], s24 offen offset:{1024*s4}")
        a("s_mov_b32 m0, s26")
        a("s_add_u32 s23, s23, 4096")
        a("s_add_u32 s24, s24, 4096")
        for i in range(4):
            a(f"buffer_load_dwordx4 v1, s[8:11], s25 offen offset:{1024*i} lds")
        a("s_add_u32 s27, s26, 4096")
        a("s_mov_b32 m0, s27")
        a("s_add_u32 s28, s25, 4096")
        for i in range(2):
            a(f"buffer_load_dwordx4 v1, s[8:11], s28 offen offset:{1024*i} lds")
        a("s_add_u32 s25, s25, 24576")
        a("s_add_u32 s26, s26, 24576")
    a("s_waitcnt vmcnt(56)")
    NM, RS = 140, 142
    stats_finish(a, [112, 116], [144,145,146,147], [NM, NM+1], [RS, RS+1])
    a("s_lshl_b32 s27, s3, 8")
    a("s_add_u32 s27, s27, 98304")
    a("v_add_u32 v8, s27, v7")
    a("v_add_u32 v9, s27, v6")
    a(f"ds_write_b32 v8, v{NM}")
    a(f"ds_write_b32 v8, v{NM+1} offset:64")
    a(f"ds_write_b32 v8, v{RS} offset:128")
    a(f"ds_write_b32 v8, v{RS+1} offset:192")
    a("s_waitcnt lgkmcnt(0)")
    NMR, RSR = 144, 152
    a(f"ds_read_b128 {vr(NMR)}, v9")
    a(f"ds_read_b128 {vr(NMR+4)}, v9 offset:64")
    a(f"ds_read_b128 {vr(RSR)}, v9 offset:128")
    a(f"ds_read_b128 {vr(RSR+4)}, v9 offset:192")
    def acc(tile, tt): return 16 + (tile*2+tt)*4
    for tile in range(4):
        for tt in range(2):
            for r in range(4):
                a(f"v_mul_f32 v{acc(tile,tt)+r}, v{NM+tt}, v{120+4*tile+r}")
    a("s_waitcnt lgkmcnt(0)")
    for tile in range(4,6):
        for tt in range(2):
            for r in range(4):
                a(f"v_mul_f32 v{acc(tile,tt)+r}, v{NMR+4*tt+r}, v{136+tile-4}")
    def wf(s, i): return 64 + ((s&1)*6 + i)*4
    a("s_waitcnt vmcnt(42)")
    a("s_barrier")
    for i in range(6):
        a(f"ds_read_b128 {vr(wf(0,i))}, v1 offset:{i*1024}")
    a("v_add_u32 v10, 0xc000, v1")
    for s in range(16):
        if s < 15 and (s+1) % 4 == 0:
            a(f"s_waitcnt vmcnt({14*(3-(s+1)//4)})")
            a("s_barrier")
        for i in range(6):
            if s < 15:
                off = (s+1)*6144 + i*1024
                if off >= 0xc000:
                    a(f"ds_read_b128 {vr(wf(s+1,i))}, v10 offset:{off-0xc000}")
                else:
                    a(f"ds_read_b128 {vr(wf(s+1,i))}, v1 offset:{off}")
                a("s_waitcnt lgkmcnt(6)")
            else:
                a(f"s_waitcnt lgkmcnt({5-i})")
            for tt in range(2):
                if i < 4:
                    a(f"v_mfma_f32_16x16x32_bf16 {vr(acc(i,tt))}, {vr(wf(s,i))}, {ar(8*s+4*tt)}, {vr(acc(i,tt))}")
                else:
                    a(f"v_mfma_f32_16x16x32_bf16 {vr(acc(i,tt))}, {ar(8*s+4*tt)}, {vr(wf(s,i))}, {vr(acc(i,tt))}")
    a("v_lshrrev_b32 v11, 1, v4")
    a("v_lshlrev_b32 v11, 9, v11")
    a("v_and_b32 v12, 1, v4")
    a("v_lshl_add_u32 v11, v12, 3, v11")
    a("v_lshl_add_u32 v12, v3, 4, v11")
    a("v_lshrrev_b32 v13, 2, v3")
    a("v_lshlrev_b32 v13, 3, v13")
    a("v_and_b32 v14, 3, v3")
    a("v_add_u32 v13, v13, v14")
    a("v_lshl_add_u32 v13, v13, 4, v11")
    a(f"v_mul_f32 v{NM}, {f32hex(0.25*LOG2E)}, v{RS}")
    a(f"v_mul_f32 v{NM+1}, {f32hex(0.25*LOG2E)}, v{RS+1}")
    a("s_lshl_b32 s21, s19, 7")
    a("s_add_u32 s21, s21, s20")
    a("s_lshl_b32 s21, s21, 10")
    for tile in range(6):
        which, hh = tile >> 1, tile & 1
        base = [QF, KF, VF][which] + hh*65536
        a(f"s_add_u32 s22, s21, {hex(base)}")
        for tt in range(2):
            b = acc(tile, tt)
            for r in range(4):
                sc = (NM+tt) if which == 0 else (RS+tt) if which == 1 else (RSR+4*tt+r)
                a(f"v_mul_f32 v{b+r}, v{sc}, v{b+r}")
        d = 64 + tile*4
        for tt in range(2):
            b = acc(tile, tt)
            a(f"v_cvt_pk_bf16_f32 v{d+2*tt}, v{b}, v{b+1}")
            a(f"v_cvt_pk_bf16_f32 v{d+2*tt+1}, v{b+2}, v{b+3}")
        if which == 0:
            a(f"buffer_store_dwordx2 {vr(d,2)}, v12, s[8:11], s22 offen")
            a(f"buffer_store_dwordx2 {vr(d+2,2)}, v12, s[8:11], s22 offen offset:256")
        elif which == 1:
            a(f"buffer_store_dwordx2 {vr(d,2)}, v13, s[8:11], s22 offen")
            a(f"buffer_store_dwordx2 {vr(d+2,2)}, v13, s[8:11], s22 offen offset:64")
        else:
            a(f"buffer_store_dwordx4 {vr(d)}, v1, s[8:11], s22 offen")
    a.label("LQ_end")
    a("s_endpgm")
    return kernel_desc(name, 160+128, 160)

def gen_attn(a):
    name = "attn_kernel"
    kernel_begin(a, name)
    a("s_cmp_ge_u32 s2, 256")
    a("s_cbranch_scc1 LA_end")
    a("s_load_dwordx2 s[4:5], s[0:1], 72")
    a("v_lshrrev_b32 v1, 6, v0")
    a("v_and_b32 v2, 63, v0")
    a("v_readfirstlane_b32 s3, v1")
    a("v_lshlrev_b32 v1, 4, v2")
    a("s_and_b32 s16, s2, 7")
    a("s_lshl_b32 s16, s16, 2")
    a("s_lshr_b32 s17, s2, 3")
    a("s_and_b32 s18, s17, 3")
    a("s_add_u32 s16, s16, s18")
    a("s_lshr_b32 s17, s2, 5")
    a("s_lshl_b32 s18, s16, 16")
    a("s_waitcnt lgkmcnt(0)")
    make_srd(a, 8, 4, WS_SIZE)
    a("s_lshl_b32 s19, s17, 3")
    a("s_add_u32 s19, s19, s3")
    a("s_lshl_b32 s20, s19, 10")
    a("s_add_u32 s20, s20, s18")
    a(f"s_add_u32 s20, s20, {hex(QF)}")
    a("buffer_load_dwordx4 v[4:7], v1, s[8:11], s20 offen")
    a(f"s_add_u32 s21, s18, {hex(KF)}")
    a(f"s_add_u32 s22, s18, {hex(VF)}")
    for (t0, t1) in ((0,8),(8,24),(24,64)):
        n = (t1-t0)//8
        a(f"s_mul_i32 s23, s3, {n*1024}")
        a(f"s_add_u32 s23, s23, {t0*1024}")
        for kv in range(2):
            i = 0
            while i < n:
                m = min(4, n-i)
                a(f"s_add_u32 s24, s23, {kv*65536 + i*1024}")
                a("s_mov_b32 m0, s24")
                a(f"s_add_u32 s25, s{21+kv}, s23")
                if i:
                    a(f"s_add_u32 s25, s25, {i*1024}")
                for j in range(m):
                    a(f"buffer_load_dwordx4 v1, s[8:11], s25 offen offset:{1024*j} lds")
                i += m
    S = lambda b: 32 + 16*(b & 3)
    C, O = 96, 112
    KFR = lambda t: 8 + 4*(t & 3)
    V0 = lambda t: 128 + 8*(t & 3)
    V1 = lambda t: 132 + 8*(t & 3)
    a("v_and_b32 v3, 31, v2")
    a("v_lshrrev_b32 v24, 5, v2")
    a("v_lshlrev_b32 v25, 8, v24")
    a("v_lshl_add_u32 v25, v3, 4, v25")
    a("v_add_u32 v25, 0x10000, v25")
    a("v_and_b32 v26, 27, v3")
    a("v_mov_b32 v27, 0x3f803f80")
    a("v_cmp_eq_u32 vcc, 16, v26")
    a("s_nop 1")
    a("v_cndmask_b32 v27, 0, v27, vcc")
    for r in range(128, 160):
        a(f"v_mov_b32 v{r}, v27")
    a("v_mov_b32 v28, 0xdddddddd")
    a("s_mov_b32 s30, 0x0000ffff")
    a("s_mov_b32 s31, 0x0000ffff")
    a("s_mov_b32 s33, 0")
    a("s_waitcnt vmcnt(14)")
    a("s_barrier")
    a(f"ds_read_b128 {vr(KFR(0))}, v1")
    a("s_waitcnt lgkmcnt(0)")
    a(f"v_mfma_f32_32x32x16_bf16 {vr(S(0),16)}, {vr(KFR(0))}, v[4:7], 0")
    a("s_nop 15")
    a("s_nop 3")
    a(f"v_max3_f32 v29, v{S(0)}, v{S(0)+1}, v{S(0)+2}")
    for i in range(3, 15, 2):
        a(f"v_max3_f32 v29, v29, v{S(0)+i}, v{S(0)+i+1}")
    a(f"v_max_f32 v29, v29, v{S(0)+15}")
    a.label("LA_restart")
    a("v_mov_b32 v30, v29")
    a("s_nop 1")
    a("v_permlane32_swap_b32 v29, v30")
    a("s_nop 1")
    a("v_max_f32 v29, v29, v30")
    for i in range(16):
        a(f"v_sub_f32 v{C+i}, 0, v29")
        a(f"v_mov_b32 v{O+i}, 0")
        a(f"v_mov_b32 v{S(3)+i}, 0")
    a("v_mov_b32 v30, v1")
    a("v_mov_b32 v31, v25")
    for t in range(3):
        a(f"ds_read_b128 {vr(KFR(t))}, v30 offset:{1024*t}")
    a("s_mov_b64 exec, s[30:31]")
    a(f"ds_read_b128 {vr(V0(0))}, v31")
    a(f"ds_read_b128 {vr(V1(0))}, v31 offset:512")
    a(f"ds_read_b128 {vr(V1(3))}, v31 offset:512")
    a("s_mov_b64 exec, -1")
    a("s_waitcnt lgkmcnt(0)")
    a(f"v_mfma_f32_32x32x16_bf16 {vr(S(0),16)}, {vr(KFR(0))}, v[4:7], {vr(C,16)}")
    a(f"v_mfma_f32_32x32x16_bf16 {vr(S(1),16)}, {vr(KFR(1))}, v[4:7], {vr(C,16)}")
    a("s_mov_b32 s32, 0")
    a("s_nop 7")
    a.label("LA_loop")
    a("s_cmp_lg_u32 s33, 0")
    a("s_cbranch_scc1 LA_nosync")
    a("s_cmp_eq_u32 s32, 1")
    a("s_cbranch_scc0 LA_s2")
    a("s_waitcnt vmcnt(10)")
    a("s_barrier")
    a.label("LA_s2")
    a("s_cmp_eq_u32 s32, 5")
    a("s_cbranch_scc0 LA_nosync")
    a("s_waitcnt vmcnt(0)")
    a("s_barrier")
    a.label("LA_nosync")
    for t in range(4):
        def ex(lo, hi):
            for i in range(lo, hi):
                a(f"v_exp_f32 v{S(t)+i}, v{S(t)+i}")
        a("s_waitcnt lgkmcnt(0)")
        a(f"ds_read_b128 {vr(KFR(t+3))}, v30 offset:{1024*(t+3)}")
        a("s_mov_b64 exec, s[30:31]")
        a(f"ds_read_b128 {vr(V0(t+1))}, v31 offset:{1024*(t+1)}")
        a(f"ds_read_b128 {vr(V1(t+1))}, v31 offset:{1024*(t+1)+512}")
        a("s_mov_b64 exec, -1")
        ex(0, 4)
        a(f"v_smfmac_f32_32x32x32_bf16 {vr(O,16)}, {vr(V1(t-1))}, {vr(S(t-1)+8,8)}, v28")
        ex(4, 10)
        a(f"v_mfma_f32_32x32x16_bf16 {vr(S(t+2),16)}, {vr(KFR(t+2))}, v[4:7], {vr(C,16)}")
        ex(10, 14)
        a(f"v_smfmac_f32_32x32x32_bf16 {vr(O,16)}, {vr(V0(t))}, {vr(S(t),8)}, v28")
        ex(14, 16)
    a("v_add_u32 v30, 0x1000, v30")
    a("v_add_u32 v31, 0x1000, v31")
    a("s_add_u32 s32, s32, 1")
    a("s_cmp_lt_u32 s32, 16")
    a("s_cbranch_scc1 LA_loop")
    a(f"v_smfmac_f32_32x32x32_bf16 {vr(O,16)}, {vr(V1(3))}, {vr(S(3)+8,8)}, v28")
    a("s_waitcnt lgkmcnt(0)")
    a("s_nop 15")
    a("s_nop 3")
    a("s_cmp_lg_u32 s33, 0")
    a("s_cbranch_scc1 LA_fin")
    a("v_mov_b32 v29, 0x4e800000")
    a(f"v_cmp_nlt_f32 vcc, v{O+8}, v29")
    a("s_nop 4")
    a("s_cbranch_vccz LA_fin")
    a("s_mov_b32 s33, 1")
    a("v_mov_b32 v29, 0xff800000")
    a("v_mov_b32 v30, v1")
    a("s_mov_b32 s32, 0")
    a.label("LA_maxloop")
    a(f"ds_read_b128 {vr(KFR(0))}, v30")
    a("s_waitcnt lgkmcnt(0)")
    a(f"v_mfma_f32_32x32x16_bf16 {vr(S(0),16)}, {vr(KFR(0))}, v[4:7], 0")
    a("s_nop 15")
    a("s_nop 3")
    for i in range(0, 16, 2):
        a(f"v_max3_f32 v29, v29, v{S(0)+i}, v{S(0)+i+1}")
    a("v_add_u32 v30, 0x400, v30")
    a("s_add_u32 s32, s32, 1")
    a("s_cmp_lt_u32 s32, 64")
    a("s_cbranch_scc1 LA_maxloop")
    a("s_branch LA_restart")
    a.label("LA_fin")
    a(f"v_rcp_f32 v29, v{O+8}")
    a("v_lshrrev_b32 v30, 4, v3")
    a("v_lshlrev_b32 v30, 14, v30")
    a("v_lshl_add_u32 v30, v24, 8, v30")
    a("v_and_b32 v31, 15, v3")
    a("v_lshl_add_u32 v30, v31, 4, v30")
    for i in range(8):
        a(f"v_mul_f32 v{O+i}, v29, v{O+i}")
    for i in range(4):
        a(f"v_cvt_pk_bf16_f32 v{8+i}, v{O+2*i}, v{O+2*i+1}")
    a("s_lshl_b32 s20, s19, 5")
    a("s_lshr_b32 s21, s16, 1")
    a("s_add_u32 s20, s20, s21")
    a("s_lshl_b32 s20, s20, 10")
    a("s_and_b32 s21, s16, 1")
    a("s_lshl_b32 s21, s21, 9")
    a("s_add_u32 s20, s20, s21")
    a(f"s_add_u32 s20, s20, {hex(OF)}")
    a("buffer_store_dwordx4 v[8:11], v30, s[8:11], s20 offen")
    a.label("LA_end")
    a("s_endpgm")
    return kernel_desc(name, 160, 160)

def gen_proj(a, name, pfx, NSTEPS, src, wp, scale_stats, out_stats, final):
    NS = NSTEPS // 4
    DEPTH = min(NS, 7)
    kernel_begin(a, name)
    a("s_cmp_ge_u32 s2, 256")
    a(f"s_cbranch_scc1 {pfx}_end")
    a("s_load_dwordx2 s[4:5], s[0:1], 72")
    if final:
        a("s_load_dwordx2 s[6:7], s[0:1], 56")
    a("v_lshrrev_b32 v1, 6, v0")
    a("v_and_b32 v2, 63, v0")
    a("v_readfirstlane_b32 s3, v1")
    a("v_and_b32 v3, 15, v2")
    a("v_lshrrev_b32 v4, 4, v2")
    a("v_lshlrev_b32 v1, 4, v2")
    a("s_and_b32 s16, s2, 7")
    a("s_lshr_b32 s17, s2, 3")
    a("s_lshl_b32 s18, s16, 2")
    a("s_and_b32 s19, s17, 3")
    a("s_add_u32 s18, s18, s19")
    a("s_lshr_b32 s19, s17, 2")
    a("s_waitcnt lgkmcnt(0)")
    make_srd(a, 8, 4, WS_SIZE)
    if final:
        make_srd(a, 12, 6, 2048*512*2)
    a(f"s_mul_i32 s20, s18, {4*NSTEPS}")
    a(f"s_mul_i32 s21, s3, {NS}")
    a("s_add_u32 s20, s20, s21")
    a("s_lshl_b32 s20, s20, 10")
    a(f"s_add_u32 s20, s20, {hex(src)}")
    for tt in range(1, 4):
        a(f"s_add_u32 s{20+tt}, s20, {tt*NSTEPS*1024}")
    a(f"s_mul_i32 s24, s19, {NSTEPS}")
    a(f"s_mul_i32 s25, s3, {NS}")
    a("s_add_u32 s24, s24, s25")
    a("s_lshl_b32 s24, s24, 12")
    a(f"s_add_u32 s24, s24, {hex(wp)}")
    def X(slot, tt): return slot*32 + tt*4
    def W(slot, ct): return slot*32 + 16 + ct*4
    def issue(s):
        slot = s % DEPTH
        for ct in range(4):
            a(f"buffer_load_dwordx4 {ar(W(slot,ct))}, v1, s[8:11], s24 offen offset:{1024*ct}")
        for tt in range(4):
            a(f"buffer_load_dwordx4 {ar(X(slot,tt))}, v1, s[8:11], s{20+tt} offen offset:{1024*(s%4)}")
        a("s_add_u32 s24, s24, 4096")
        if s % 4 == 3:
            for tt in range(4):
                a(f"s_add_u32 s{20+tt}, s{20+tt}, 4096")
    a("s_lshl_b32 s26, s18, 2")
    a("s_add_u32 s26, s26, s3")
    a("s_lshl_b32 s27, s26, 4")
    a("s_lshl_b32 s28, s19, 1")
    a("s_add_u32 s27, s27, s28")
    a("s_lshl_b32 s27, s27, 10")
    a(f"s_add_u32 s27, s27, {hex(XF)}")
    a("buffer_load_dwordx4 v[80:83], v1, s[8:11], s27 offen")
    a("buffer_load_dwordx4 v[84:87], v1, s[8:11], s27 offen offset:1024")
    a("v_lshlrev_b32 v5, 6, v3")
    if scale_stats is not None:
        a("v_lshl_add_u32 v6, v4, 4, v5")
        a("s_lshl_b32 s28, s26, 10")
        a(f"s_add_u32 s28, s28, {hex(scale_stats)}")
        a("buffer_load_dwordx4 v[88:91], v6, s[8:11], s28 offen")
    for s in range(DEPTH):
        issue(s)
    def acc(ct, tt): return 16 + (tt*4 + ct)*4
    for r in range(16, 80):
        a(f"v_mov_b32 v{r}, 0")
    for s in range(NS):
        slot = s % DEPTH
        issued = min(NS, s + DEPTH)
        a(f"s_waitcnt vmcnt({8*(issued - s - 1)})")
        for tt in range(4):
            for ct in range(4):
                a(f"v_mfma_f32_16x16x32_bf16 {vr(acc(ct,tt))}, {ar(W(slot,ct))}, {ar(X(slot,tt))}, {vr(acc(ct,tt))}")
        if s + DEPTH < NS:
            issue(s + DEPTH)
    a("s_lshl_b32 s28, s3, 12")
    a("v_add_u32 v7, s28, v1")
    a("s_lshl_b32 s28, s3, 14")
    a("v_add_u32 v8, s28, v1")
    if scale_stats is not None:
        stats_finish(a, [88], [92, 93], [94], [95])
        a("v_mul_f32 v95, v95, v95")
    else:
        a("s_nop 7")
    for tt in range(4):
        for ct in range(4):
            a(f"ds_write_b128 v7, {vr(acc(ct,tt))} offset:{tt*16384 + ct*1024}")
    a("s_waitcnt lgkmcnt(0)")
    a("s_barrier")
    for w in range(4):
        for ct in range(4):
            a(f"ds_read_b128 {vr(16 + (w*4+ct)*4)}, v8 offset:{w*4096 + ct*1024}")
    a("s_waitcnt vmcnt(0)")
    for i in range(8):
        a(f"v_lshlrev_b32 v{96+2*i}, 16, v{80+i}")
        a(f"v_and_b32 v{97+2*i}, 0xffff0000, v{80+i}")
    a("s_waitcnt lgkmcnt(8)")
    for i in range(16):
        a(f"v_add_f32 v{16+i}, v{16+i}, v{32+i}")
    a("s_waitcnt lgkmcnt(0)")
    for i in range(16):
        a(f"v_add_f32 v{48+i}, v{48+i}, v{64+i}")
    for i in range(16):
        a(f"v_add_f32 v{16+i}, v{16+i}, v{48+i}")
    for i in range(16):
        if scale_stats is not None:
            a(f"v_fma_f32 v{16+i}, v{16+i}, v95, v{96+i}")
        else:
            a(f"v_add_f32 v{16+i}, v{16+i}, v{96+i}")
    for i in range(8):
        a(f"v_cvt_pk_bf16_f32 v{80+i}, v{16+2*i}, v{17+2*i}")
    if final:
        a("v_lshlrev_b32 v6, 10, v3")
        a("v_lshl_add_u32 v6, v4, 3, v6")
        a("s_lshl_b32 s28, s26, 14")
        a("s_lshl_b32 s29, s19, 7")
        a("s_add_u32 s28, s28, s29")
        for ct in range(4):
            a(f"buffer_store_dwordx2 {vr(80+2*ct,2)}, v6, s[12:15], s28 offen offset:{32*ct}")
    else:
        a("buffer_store_dwordx4 v[80:83], v1, s[8:11], s27 offen")
        a("buffer_store_dwordx4 v[84:87], v1, s[8:11], s27 offen offset:1024")
        a("v_mov_b32 v12, 0x3f803f80")
        a("v_mov_b32 v32, 0")
        a("v_mov_b32 v33, 0")
        for i in range(8):
            a(f"v_dot2_f32_bf16 v32, v{80+i}, v12, v32")
            a(f"v_dot2_f32_bf16 v33, v{80+i}, v{80+i}, v33")
        a("s_nop 3")
        reduce_g_multi(a, [32, 33], [34, 35])
        a("s_lshl_b32 s28, s26, 10")
        a("s_lshl_b32 s29, s19, 3")
        a("s_add_u32 s28, s28, s29")
        a(f"s_add_u32 s28, s28, {hex(out_stats)}")
        a("v_cmp_eq_u32 vcc, 0, v4")
        a("s_and_saveexec_b64 s[30:31], vcc")
        a("buffer_store_dwordx2 v[32:33], v5, s[8:11], s28 offen")
    a.label(f"{pfx}_end")
    a("s_endpgm")
    return kernel_desc(name, 112 + 32*DEPTH, 112)

def gen_gu(a):
    name = "gu_kernel"
    kernel_begin(a, name)
    a("s_cmp_ge_u32 s2, 256")
    a("s_cbranch_scc1 LG_end")
    a("s_load_dwordx2 s[4:5], s[0:1], 72")
    a("v_lshrrev_b32 v1, 6, v0")
    a("v_and_b32 v2, 63, v0")
    a("v_readfirstlane_b32 s3, v1")
    a("v_and_b32 v3, 15, v2")
    a("v_lshrrev_b32 v4, 4, v2")
    a("v_lshlrev_b32 v1, 4, v2")
    a("s_and_b32 s16, s2, 7")
    a("s_lshr_b32 s17, s2, 3")
    a("s_lshr_b32 s18, s16, 2")
    a("s_lshl_b32 s18, s18, 3")
    a("s_and_b32 s19, s17, 7")
    a("s_add_u32 s18, s18, s19")
    a("s_and_b32 s19, s16, 3")
    a("s_lshl_b32 s19, s19, 2")
    a("s_lshr_b32 s17, s17, 3")
    a("s_add_u32 s19, s19, s17")
    a("s_lshl_b32 s20, s18, 2")
    a("s_add_u32 s20, s20, s3")
    a("s_waitcnt lgkmcnt(0)")
    make_srd(a, 8, 4, WS_SIZE)
    a("v_lshlrev_b32 v5, 6, v3")
    a("v_lshl_add_u32 v5, v4, 4, v5")
    a("s_lshl_b32 s21, s20, 11")
    a(f"s_add_u32 s21, s21, {hex(STB)}")
    ST = 200
    a(f"buffer_load_dwordx4 {vr(ST)}, v5, s[8:11], s21 offen")
    a(f"buffer_load_dwordx4 {vr(ST+4)}, v5, s[8:11], s21 offen offset:1024")
    a("v_lshlrev_b32 v6, 4, v4")
    a("s_mul_i32 s22, s19, 896")
    a(f"s_add_u32 s22, s22, {hex(CSGU)}")
    CS = 128
    for i in range(14):
        a(f"buffer_load_dwordx4 {vr(CS+4*i)}, v6, s[8:11], s22 offen offset:{64*i}")
    a("s_lshl_b32 s23, s20, 15")
    a(f"s_add_u32 s23, s23, {hex(XF)}")
    a("s_add_u32 s24, s23, 16384")
    a(f"s_mul_i32 s25, s19, {224*1024}")
    a(f"s_add_u32 s25, s25, {hex(WGUP)}")
    a("s_mul_i32 s26, s3, 7168")
    a("s_add_u32 s25, s25, s26")
    CH = 28672
    NSLOT = 5
    def dma(c):
        slot = c % NSLOT
        a(f"s_add_u32 s27, s26, {slot*CH}")
        a("s_mov_b32 m0, s27")
        a("s_add_u32 s28, s25, 4096")
        for i in range(4):
            a(f"buffer_load_dwordx4 v1, s[8:11], s25 offen offset:{1024*i} lds")
        a("s_add_u32 s27, s27, 4096")
        a("s_mov_b32 m0, s27")
        a(f"s_add_u32 s25, s25, {CH}")
        for i in range(3):
            a(f"buffer_load_dwordx4 v1, s[8:11], s28 offen offset:{1024*i} lds")
    def xload(c):
        for s2 in range(2):
            s = 2*c + s2
            a(f"buffer_load_dwordx4 {ar(8*s)}, v1, s[8:11], s23 offen offset:{1024*(s%4)}")
            a(f"buffer_load_dwordx4 {ar(8*s+4)}, v1, s[8:11], s24 offen offset:{1024*(s%4)}")
        if c % 2 == 1:
            a("s_add_u32 s23, s23, 4096")
            a("s_add_u32 s24, s24, 4096")
    seq = []
    seq += ["st"]*16
    for c in range(4):
        xload(c); seq += [f"c{c}"]*4
        dma(c); seq += [f"c{c}"]*7
    def wait_for(tag):
        last = max(i for i, t in enumerate(seq) if t == tag)
        n = len(seq) - 1 - last
        a(f"s_waitcnt vmcnt({min(n,63)})")
    wait_for("st")
    NM, RS = 210, 212
    stats_finish(a, [ST, ST+4], [214,215,216,217], [NM, NM+1], [RS, RS+1])
    def acc(tile, tt): return 16 + (tile*2+tt)*4
    for tile in range(14):
        for tt in range(2):
            for r in range(4):
                a(f"v_mul_f32 v{acc(tile,tt)+r}, v{NM+tt}, v{CS+4*tile+r}")
    xload(4); seq += ["c4"]*4
    dma(4); seq += ["c4"]*7
    for c in range(5, 8):
        xload(c); seq += [f"x{c}"]*4
    RING = 8
    AHEAD = 6
    def wf(n): return 128 + (n % RING)*4
    a("v_mov_b32 v10, v1")
    a(f"v_add_u32 v11, {2*CH}, v1")
    a(f"v_add_u32 v12, {4*CH}, v1")
    def rd(n):
        s, i = divmod(n, 14)
        c = s // 2
        slot = c % NSLOT
        off = (slot % 2)*CH + (s % 2)*14336 + i*1024
        a(f"ds_read_b128 {vr(wf(n))}, v{10 + slot//2} offset:{off}")
    TOT = 16*14
    wait_for("c0")
    a("s_barrier")
    for n in range(AHEAD):
        rd(n)
    for n in range(TOT):
        s, i = divmod(n, 14)
        m = n + AHEAD
        if m < TOT:
            if m % 28 == 0:
                c = m // 28
                wait_for(f"c{c}")
                a("s_barrier")
                if c >= 2 and c + 3 < 8:
                    dma(c+3); seq += [f"c{c+3}"]*7
            rd(m)
            a(f"s_waitcnt lgkmcnt({AHEAD})")
        else:
            a(f"s_waitcnt lgkmcnt({TOT-1-n})")
        for tt in range(2):
            a(f"v_mfma_f32_16x16x32_bf16 {vr(acc(i,tt))}, {vr(wf(n))}, {ar(8*s+4*tt)}, {vr(acc(i,tt))}")
    a("s_lshr_b32 s21, s19, 1")
    a("s_mul_i32 s21, s21, 7")
    a("s_and_b32 s22, s19, 1")
    a("s_mul_i32 s27, s22, 3")
    a("s_add_u32 s27, s27, s21")
    a("s_mul_i32 s28, s20, 112")
    a("s_add_u32 s27, s27, s28")
    a("s_lshl_b32 s27, s27, 10")
    a(f"s_add_u32 s27, s27, {hex(HF)}")
    a(f"s_add_u32 s29, s27, {56*1024}")
    a("s_add_u32 s28, s28, s21")
    a("s_add_u32 s28, s28, 6")
    a("s_lshl_b32 s28, s28, 10")
    a("s_lshl_b32 s22, s22, 3")
    a("s_add_u32 s28, s28, s22")
    a(f"s_add_u32 s28, s28, {hex(HF)}")
    a(f"s_add_u32 s30, s28, {56*1024}")
    D = 128
    for tt in range(2):
        for i in range(7):
            G, U = acc(2*i, tt), acc(2*i+1, tt)
            for r in range(4):
                a(f"v_max_f32 v{G+r}, 0, v{G+r}")
            for r in range(4):
                a(f"v_mul_f32 v{G+r}, v{G+r}, v{U+r}")
            d = D + tt*16 + 2*i
            a(f"v_cvt_pk_bf16_f32 v{d}, v{G}, v{G+1}")
            a(f"v_cvt_pk_bf16_f32 v{d+1}, v{G+2}, v{G+3}")
            if i % 2 == 1:
                a(f"buffer_store_dwordx4 {vr(d-2)}, v1, s[8:11], s{27+2*tt} offen offset:{1024*(i//2)}")
        a(f"buffer_store_dwordx2 {vr(D+tt*16+12,2)}, v1, s[8:11], s{28+2*tt} offen")
    a.label("LG_end")
    a("s_endpgm")
    return kernel_desc(name, 224+128, 224)

def main(out_path):
    a = Asm()
    hdr = open("cdna_kernels/" + NAME + ".s.ref").read().split("; Override launch")[0]
    launches = [
        ("prep_kernel", PREP_NWG, 256, 65536),
        ("qkv_kernel", 256, 256, 98304+1024),
        ("attn_kernel", 256, 512, 131072+2048),
        ("wo_kernel", 256, 256, 65536),
        ("gu_kernel", 256, 256, 5*28672),
        ("down_kernel", 256, 256, 65536),
        ("qkv_kernel", 256, 256, 98304+1024),
        ("attn_kernel", 256, 512, 131072+2048),
        ("wo_kernel", 256, 256, 65536),
        ("gu_kernel", 256, 256, 5*28672),
        ("downf_kernel", 256, 256, 65536),
    ]
    out = hdr
    for k, g, b, l in launches:
        out += f"; @launch kernel={k} grid=({g},1,1) block=({b},1,1) lds={l}\n"
    out += '.amdgcn_target "amdgcn-amd-amdhsa--gfx950"\n.text\n'
    descs = []
    descs.append(gen_prep(a))
    descs.append(gen_qkv(a))
    descs.append(gen_attn(a))
    descs.append(gen_proj(a, "wo_kernel", "LW", 16, OF, WOP, None, STB, False))
    descs.append(gen_gu(a))
    descs.append(gen_proj(a, "down_kernel", "LD", 56, HF, WDP, STB, STA, False))
    descs.append(gen_proj(a, "downf_kernel", "LF", 56, HF, WDP, STB, None, True))
    out += a.text()
    out += '.section .rodata,"a"\n' + "".join(descs)
    open(out_path, "w").write(out)

if __name__ == "__main__":
    main(sys.argv[1] if len(sys.argv) > 1 else "cdna_kernels/" + NAME + ".s")
```

```python
import sys, os, struct

NAME = "interleave_layers__softmax_full_mha__glu_gated_reglu__prompt"
MB = 1 << 20
WQKVP = 0 * MB
WOP   = 2 * MB
WGUP  = 3 * MB
WDP   = 7 * MB
CSQKV = 9 * MB
CSGU  = 9 * MB + 0x4000
FLG   = 9 * MB + 0x10000
DBGR  = 9 * MB + 0x40000
ACT0  = 10 * MB
LSTRIDE = 20 * MB
XIN, QF, KF, VF, OF, X1F, HF = [ACT0 + i*MB for i in (0, 2, 4, 6, 8, 10, 12)]
STA = ACT0 + 19*MB + 0x80000
STB = ACT0 + 19*MB + 0xC0000
WS_SIZE = ACT0 + 2*LSTRIDE + 4*MB
LOG2E = 1.4426950408889634
STAMP = int(os.environ.get("STAMP", "0"))
POLL_LIMIT = 100000

def f32hex(x): return "0x%08x" % struct.unpack("<I", struct.pack("<f", x))[0]

class Asm:
    def __init__(self): self.lines = []
    def __call__(self, s):
        for l in s.split("\n"):
            l = l.strip()
            if l: self.lines.append("    " + l)
    def label(self, l): self.lines.append(l + ":")
    def raw(self, s): self.lines.append(s)
    def text(self): return "\n".join(self.lines) + "\n"

class VM:
    def __init__(self): self.seq = []
    def add(self, tag, n=1): self.seq += [tag]*n
    def wait(self, a, tag):
        idxs = [i for i, t in enumerate(self.seq) if t == tag]
        if not idxs: return
        idx = idxs[-1]
        n = len(self.seq) - 1 - idx
        a(f"s_waitcnt vmcnt({min(n, 63)})")
        self.seq = self.seq[idx+1:]
    def reset(self): self.seq = []

def vr(b, n=4): return f"v[{b}:{b+n-1}]"
def ar(b, n=4): return f"a[{b}:{b+n-1}]"
def R(x, n=4):
    return f"{x[0]}[{x[1]}:{x[1]+n-1}]"

def kernel_begin(a, name):
    a.raw(f".globl {name}"); a.raw(".p2align 8"); a.raw(f".type {name},@function"); a.label(name)

def kernel_desc(name, nvgpr, accum, nsgpr=100):
    return f""".p2align 6
.amdhsa_kernel {name}
  .amdhsa_next_free_vgpr {nvgpr}
  .amdhsa_next_free_sgpr {nsgpr}
  .amdhsa_accum_offset {accum}
  .amdhsa_group_segment_fixed_size 0
  .amdhsa_kernarg_size 80
  .amdhsa_user_sgpr_count 2
  .amdhsa_user_sgpr_kernarg_segment_ptr 1
  .amdhsa_system_sgpr_workgroup_id_x 1
.end_amdhsa_kernel
"""

def make_srd(a, d, src, size):
    a(f"s_mov_b32 s{d}, s{src}"); a(f"s_mov_b32 s{d+1}, s{src+1}")
    a(f"s_mov_b32 s{d+2}, {hex(size)}"); a(f"s_mov_b32 s{d+3}, 0x00020000")

def reduce_g_multi(a, xs, ts):
    for x, t in zip(xs, ts): a(f"v_mov_b32 v{t}, v{x}")
    a("s_nop 1")
    for x, t in zip(xs, ts): a(f"v_permlane32_swap_b32 v{x}, v{t}")
    a("s_nop 1")
    for x, t in zip(xs, ts): a(f"v_add_f32 v{x}, v{x}, v{t}")
    for x, t in zip(xs, ts): a(f"v_mov_b32 v{t}, v{x}")
    a("s_nop 1")
    for x, t in zip(xs, ts): a(f"v_permlane16_swap_b32 v{x}, v{t}")
    a("s_nop 1")
    for x, t in zip(xs, ts): a(f"v_add_f32 v{x}, v{x}, v{t}")

def stats_finish(a, ps, tmps, outs_nm, outs_rs):
    for p in ps:
        a(f"v_add_f32 v{p}, v{p}, v{p+2}")
        a(f"v_add_f32 v{p+1}, v{p+1}, v{p+3}")
    xs = []
    for p in ps: xs += [p, p+1]
    reduce_g_multi(a, xs, tmps[:len(xs)])
    for p, nm, rs in zip(ps, outs_nm, outs_rs):
        a(f"v_mul_f32 v{nm}, {f32hex(-1.0/512)}, v{p}")
        a(f"v_mul_f32 v{p+2}, v{nm}, v{nm}")
        a(f"v_mov_b32 v{p+3}, {f32hex(1.0/512)}")
        a(f"v_fma_f32 v{p+2}, v{p+1}, v{p+3}, -v{p+2}")
        a(f"v_max_f32 v{p+2}, 0, v{p+2}")
        a(f"v_add_f32 v{p+2}, {f32hex(1e-5)}, v{p+2}")
        a(f"v_rsq_f32 v{rs}, v{p+2}")
    a("s_nop 0")

def build_csfrag(a, src, dst, tmp, mask):
    a(f"v_and_b32 v{src}, v{mask}, v{src}")
    a(f"v_and_b32 v{tmp}, 0xffff0000, v{src}")
    a(f"v_sub_f32 v{src}, v{src}, v{tmp}")
    a(f"v_lshrrev_b32 v{dst}, 16, v{tmp}")
    a(f"v_or_b32 v{dst}, v{dst}, v{tmp}")
    a(f"v_cvt_pk_bf16_f32 v{dst+1}, v{src}, 0")

def build_nmfrag(a, nm, dst, tmp, mask):
    a(f"v_and_b32 v{tmp+1}, v{mask}, v{nm}")
    a(f"v_and_b32 v{tmp}, 0xffff0000, v{tmp+1}")
    a(f"v_sub_f32 v{tmp+1}, v{tmp+1}, v{tmp}")
    a(f"v_lshrrev_b32 v{dst+1}, 16, v{tmp}")
    a(f"v_cvt_pk_bf16_f32 v{dst}, v{tmp}, v{tmp+1}")

PREP_NWG = 280
def gen_prep(a):
    name = "prep_kernel"
    kernel_begin(a, name)
    a(f"s_cmp_ge_u32 s2, {PREP_NWG}")
    a("s_cbranch_scc1 LP_end")
    a("s_load_dwordx2 s[4:5], s[0:1], 72")
    a("s_load_dwordx4 s[40:43], s[0:1], 0")
    a("s_load_dwordx2 s[44:45], s[0:1], 16")
    a("s_load_dwordx4 s[48:51], s[0:1], 32")
    a("s_load_dwordx2 s[52:53], s[0:1], 48")
    a("v_lshrrev_b32 v1, 6, v0")
    a("v_and_b32 v2, 63, v0")
    a("v_readfirstlane_b32 s3, v1")
    a("v_and_b32 v3, 15, v2")
    a("v_lshrrev_b32 v4, 4, v2")
    a("s_waitcnt lgkmcnt(0)")
    make_srd(a, 8, 4, WS_SIZE)
    a("s_cmp_ge_u32 s2, 152")
    a("s_cbranch_scc1 LP_x")
    a("s_cmp_ge_u32 s2, 88")
    a("s_cbranch_scc1 LP_down")
    a("s_cmp_ge_u32 s2, 32")
    a("s_cbranch_scc1 LP_gu")
    a("s_cmp_ge_u32 s2, 24")
    a("s_cbranch_scc1 LP_wo")
    make_srd(a, 12, 42, 512*1536*2)
    a("""s_mov_b32 s16, 3072
    s_lshl_b32 s17, s2, 7
    s_mov_b32 s18, 16
    s_lshl_b32 s23, s2, 2
    s_add_u32 s23, s23, s3
    s_lshr_b32 s24, s23, 5
    s_and_b32 s25, s23, 31
    s_lshr_b32 s26, s25, 1
    s_and_b32 s25, s25, 1
    s_lshl_b32 s24, s24, 1
    s_add_u32 s24, s24, s25
    s_mul_i32 s19, s26, 96
    s_add_u32 s19, s19, s24
    s_lshl_b32 s19, s19, 10""")
    a(f"s_add_u32 s19, s19, {hex(WQKVP)}")
    a("""s_mov_b32 s20, 6144
    s_mov_b32 s21, 0
    s_mul_i32 s22, s26, 6
    s_add_u32 s22, s22, s24
    s_lshl_b32 s22, s22, 6""")
    a(f"s_add_u32 s22, s22, {hex(CSQKV)}")
    a("s_branch LP_w")
    a.label("LP_wo")
    make_srd(a, 12, 44, 512*512*2)
    a("""s_sub_u32 s23, s2, 24
    s_mov_b32 s16, 1024
    s_lshl_b32 s17, s23, 7
    s_mov_b32 s18, 16
    s_lshl_b32 s19, s23, 6
    s_add_u32 s19, s19, s3
    s_lshl_b32 s19, s19, 10""")
    a(f"s_add_u32 s19, s19, {hex(WOP)}")
    a("""s_mov_b32 s20, 4096
    s_mov_b32 s21, 1
    s_mov_b32 s22, 0
    s_branch LP_w""")
    a.label("LP_gu")
    a("s_sub_u32 s23, s2, 32")
    a("s_mov_b32 s27, 0")
    make_srd(a, 12, 48, 512*1792*2)
    a("""s_cmp_lt_u32 s23, 28
    s_cbranch_scc1 LP_gu2
    s_sub_u32 s23, s23, 28
    s_mov_b32 s27, 1
    s_mov_b32 s12, s50
    s_mov_b32 s13, s51""")
    a.label("LP_gu2")
    a("""s_mov_b32 s16, 3584
    s_lshl_b32 s17, s23, 7
    s_mov_b32 s18, 16
    s_lshl_b32 s23, s23, 2
    s_add_u32 s23, s23, s3
    s_mul_i32 s26, s23, 147
    s_lshr_b32 s26, s26, 10
    s_mul_i32 s24, s26, 7
    s_sub_u32 s24, s23, s24
    s_lshl_b32 s24, s24, 1
    s_add_u32 s24, s24, s27
    s_mul_i32 s19, s26, 224
    s_add_u32 s19, s19, s24
    s_mov_b32 s20, 8192
    s_cmp_lt_u32 s24, 8
    s_cbranch_scc1 LP_gu3
    s_add_u32 s19, s19, 120
    s_mov_b32 s20, 6144""")
    a.label("LP_gu3")
    a("s_lshl_b32 s19, s19, 10")
    a(f"s_add_u32 s19, s19, {hex(WGUP)}")
    a("""s_mov_b32 s21, 0
    s_mul_i32 s22, s26, 14
    s_add_u32 s22, s22, s24
    s_lshl_b32 s22, s22, 6""")
    a(f"s_add_u32 s22, s22, {hex(CSGU)}")
    a("s_branch LP_w")
    a.label("LP_down")
    make_srd(a, 12, 52, 1792*512*2)
    a("""s_sub_u32 s23, s2, 88
    s_lshr_b32 s24, s23, 3
    s_and_b32 s25, s23, 7
    s_mov_b32 s16, 1024""")
    a(f"s_mul_i32 s17, s24, {224*1024}")
    a("""s_lshl_b32 s26, s25, 7
    s_add_u32 s17, s17, s26
    s_mov_b32 s18, 7
    s_lshl_b32 s19, s25, 4
    s_lshl_b32 s26, s24, 1
    s_add_u32 s19, s19, s26
    s_mul_i32 s19, s19, 14
    s_lshl_b32 s19, s19, 10""")
    a(f"s_add_u32 s19, s19, {hex(WDP)}")
    a("""s_mov_b32 s20, 4096
    s_mov_b32 s21, 2
    s_mov_b32 s22, 0""")
    a.label("LP_w")
    a("""v_lshrrev_b32 v5, 3, v2
    v_mul_lo_u32 v5, v5, s16
    v_and_b32 v6, 7, v2
    v_lshlrev_b32 v6, 4, v6
    v_add_u32 v5, v5, v6
    s_mul_i32 s24, s3, s18
    s_lshl_b32 s25, s24, 10
    s_lshl_b32 s26, s16, 3
    s_mul_i32 s27, s24, s26
    s_add_u32 s27, s27, s17
    s_mov_b32 s28, s18""")
    a.label("LP_dma")
    a("""s_mov_b32 m0, s25
    s_add_u32 s25, s25, 1024
    buffer_load_dwordx4 v5, s[12:15], s27 offen lds
    s_add_u32 s27, s27, s26
    s_sub_u32 s28, s28, 1
    s_cmp_lg_u32 s28, 0
    s_cbranch_scc1 LP_dma
    v_lshrrev_b32 v6, 2, v3
    v_and_b32 v7, 3, v3
    v_lshlrev_b32 v7, 3, v7
    s_lshl_b32 s24, s3, 5
    v_add_u32 v7, s24, v7
    v_lshl_add_u32 v8, v4, 2, v6
    v_lshrrev_b32 v9, 1, v4
    v_lshlrev_b32 v9, 4, v9
    v_and_b32 v10, 1, v4
    v_lshl_add_u32 v9, v10, 2, v9
    v_add_u32 v9, v9, v6
    v_lshl_add_u32 v8, v8, 7, v7
    v_lshl_add_u32 v9, v9, 7, v7
    v_lshlrev_b32 v10, 4, v2""")
    for i in range(4):
        a(f"v_mov_b32 v{12+i}, 0x3f803f80")
        a(f"v_mov_b32 v{16+i}, 0")
    a("""s_waitcnt vmcnt(0)
    s_barrier
    s_cmp_eq_u32 s21, 1
    s_cbranch_scc1 LP_pi2
    s_cmp_eq_u32 s21, 2
    s_cbranch_scc1 LP_dn""")
    def steps(offs, base, colsum):
        n = len(offs)
        for s, (o1, o2) in enumerate(offs):
            a(f"ds_read_b64_tr_b16 {vr(32+4*s,2)}, v{base} offset:{o1}")
            a(f"ds_read_b64_tr_b16 {vr(34+4*s,2)}, v{base} offset:{o2}")
        a("s_mov_b32 s24, s19")
        for s in range(n):
            rem = 2*(n-1-s)
            a(f"s_waitcnt lgkmcnt({min(rem,15)})")
            a(f"buffer_store_dwordx4 {vr(32+4*s)}, v10, s[8:11], s24 offen")
            if colsum:
                a(f"v_mfma_f32_16x16x32_bf16 v[16:19], {vr(32+4*s)}, v[12:15], v[16:19]")
            a("s_add_u32 s24, s24, s20")
    steps([(4096*s, 4096*s+2048) for s in range(16)], 8, True)
    a("""s_nop 7
    s_nop 1
    v_lshlrev_b32 v11, 4, v4
    v_cmp_eq_u32 vcc, 0, v3
    s_and_saveexec_b64 s[30:31], vcc
    buffer_store_dwordx4 v[16:19], v11, s[8:11], s22 offen
    s_branch LP_end""")
    a.label("LP_pi2")
    steps([(4096*s, 4096*s+1024) for s in range(16)], 9, False)
    a("s_branch LP_end")
    a.label("LP_dn")
    for cbl in range(2):
        for p in range(3):
            r = 32 + (cbl*3+p)*4
            a(f"ds_read_b64_tr_b16 {vr(r,2)}, v8 offset:{2048*(7*cbl+2*p)}")
            a(f"ds_read_b64_tr_b16 {vr(r+2,2)}, v8 offset:{2048*(7*cbl+2*p+1)}")
        a(f"ds_read_b64_tr_b16 {vr(56+2*cbl,2)}, v8 offset:{2048*(7*cbl+6)}")
    a("""s_lshl_b32 s24, s3, 10
    s_add_u32 s24, s24, s19
    s_lshr_b32 s25, s3, 1
    s_lshl_b32 s25, s25, 10
    s_and_b32 s26, s3, 1
    s_lshl_b32 s26, s26, 3
    s_add_u32 s25, s25, s26
    s_add_u32 s25, s25, s19
    s_add_u32 s25, s25, 12288
    s_waitcnt lgkmcnt(0)""")
    for cbl in range(2):
        for p in range(3):
            a(f"buffer_store_dwordx4 {vr(32+(cbl*3+p)*4)}, v10, s[8:11], s24 offen")
            a("s_add_u32 s24, s24, 4096")
        a("s_add_u32 s24, s24, 2048")
        a(f"buffer_store_dwordx2 {vr(56+2*cbl,2)}, v10, s[8:11], s25 offen")
        a("s_add_u32 s25, s25, 14336")
    a("s_branch LP_end")
    a.label("LP_x")
    make_srd(a, 12, 40, 2048*512*2)
    a("""s_sub_u32 s23, s2, 152
    s_lshl_b32 s24, s23, 14
    s_lshl_b32 s25, s3, 8
    s_add_u32 s24, s24, s25
    v_lshlrev_b32 v5, 10, v3
    v_lshl_add_u32 v5, v4, 3, v5""")
    for s in range(4):
        a(f"buffer_load_dwordx2 {vr(32+4*s,2)}, v5, s[12:15], s24 offen offset:{64*s}")
        a(f"buffer_load_dwordx2 {vr(34+4*s,2)}, v5, s[12:15], s24 offen offset:{64*s+32}")
    a("""v_lshlrev_b32 v10, 4, v2
    s_lshr_b32 s26, s23, 1
    s_lshl_b32 s26, s26, 4
    s_lshl_b32 s27, s3, 2
    s_add_u32 s26, s26, s27
    s_lshl_b32 s26, s26, 1
    s_and_b32 s27, s23, 1
    s_add_u32 s26, s26, s27
    s_lshl_b32 s26, s26, 10""")
    a(f"s_add_u32 s26, s26, {hex(XIN)}")
    a("s_add_u32 s27, s26, 4096")
    a("v_mov_b32 v12, 0x3f803f80")
    for i in range(4): a(f"v_mov_b32 v{16+i}, 0")
    a("s_cmp_ge_u32 s23, 10")
    a("s_cbranch_scc1 LP_nz")
    a("s_lshl_b32 s28, s23, 2")
    a("s_add_u32 s28, s28, s3")
    a("s_lshl_b32 s28, s28, 10")
    a(f"s_add_u32 s28, s28, {hex(FLG)}")
    a("buffer_store_dwordx4 v[16:19], v10, s[8:11], s28 offen")
    a.label("LP_nz")
    a("s_waitcnt vmcnt(0)")
    a(f"buffer_store_dwordx4 {vr(32)}, v10, s[8:11], s26 offen")
    a(f"buffer_store_dwordx4 {vr(36)}, v10, s[8:11], s26 offen offset:2048")
    a(f"buffer_store_dwordx4 {vr(40)}, v10, s[8:11], s27 offen")
    a(f"buffer_store_dwordx4 {vr(44)}, v10, s[8:11], s27 offen offset:2048")
    for blk in range(2):
        for i in range(8):
            r = 32 + 8*blk + i
            a(f"v_dot2_f32_bf16 v{16+2*blk}, v{r}, v12, v{16+2*blk}")
            a(f"v_dot2_f32_bf16 v{17+2*blk}, v{r}, v{r}, v{17+2*blk}")
    a("s_nop 3")
    reduce_g_multi(a, [16,17,18,19], [20,21,22,23])
    a("""s_lshl_b32 s26, s23, 10
    s_lshl_b32 s27, s3, 8
    s_add_u32 s26, s26, s27""")
    a(f"s_add_u32 s26, s26, {hex(STA)}")
    a("""v_lshlrev_b32 v11, 3, v3
    v_cmp_eq_u32 vcc, 0, v4
    s_and_saveexec_b64 s[30:31], vcc
    buffer_store_dwordx2 v[16:17], v11, s[8:11], s26 offen
    buffer_store_dwordx2 v[18:19], v11, s[8:11], s26 offen offset:128""")
    a.label("LP_end")
    a("s_endpgm")
    return kernel_desc(name, 104, 104)

S_QRB, S_QCB, S_HEAD, S_QB, S_PRB, S_PCB, S_GRB, S_GCB = 16, 17, 18, 19, 20, 21, 22, 23
S_LOFF, S_LAYER, S_FLG = 24, 25, 26
RES = 248
V_L16, V_LANE, V_T, V_G, V_L4 = 1, 2, 3, 4, 5
RED = 98304
nstamp = [0]
STAMP_NAMES = []

def gen_main(a):
    name = "main_kernel"
    vm = VM()
    uid = [0]
    V_MASK = 9
    VO = [10, 11, 12, 13]
    V_ST = 8
    V_B1, V_B2 = 14, 15
    SCR = 162816
    RED_WO, RED_DN = 0, 98304
    def stamp(label):
        if STAMP:
            i = nstamp[0]; nstamp[0] += 1; STAMP_NAMES.append(label)
            a("s_memtime s[60:61]")
            a("s_waitcnt lgkmcnt(0)")
            a("s_cmp_eq_u32 s25, 0")
            a(f"s_cbranch_scc0 LS_{i}")
            a(f"v_writelane_b32 v246, s60, {i}")
            a.label(f"LS_{i}")
            a(f"v_writelane_b32 v247, s60, {i}")
    def signal(tag, phase, grp_sgpr, member_sgpr):
        u = uid[0]; uid[0] += 1
        a(f"s_lshl_b32 s40, s{grp_sgpr}, 8")
        a(f"s_lshl_b32 s41, s{member_sgpr}, 2")
        a("s_add_u32 s40, s40, s41")
        a(f"s_add_u32 s40, s40, s{S_FLG}")
        a(f"s_add_u32 s40, s40, {phase*4096}")
        a("v_mov_b32 v6, 1")
        a("v_mov_b32 v7, 0")
        vm.wait(a, tag)
        a("s_barrier")
        a("s_cmp_lg_u32 s3, 0")
        a(f"s_cbranch_scc1 LSG_{u}")
        a("s_mov_b64 exec, 1")
        a("buffer_store_dword v6, v7, s[8:11], s40 offen sc1")
        a("s_mov_b64 exec, -1")
        a.label(f"LSG_{u}")
    def poll(phase, grp_sgpr, n, prev_layer=False):
        u = uid[0]; uid[0] += 1
        a("s_cmp_lg_u32 s3, 0")
        a(f"s_cbranch_scc1 LPO_{u}")
        a(f"s_lshl_b32 s40, s{grp_sgpr}, 8")
        a(f"s_add_u32 s40, s40, s{S_FLG}")
        off = phase*4096 - (5*4096 if prev_layer else 0)
        if off >= 0: a(f"s_add_u32 s40, s40, {off}")
        else: a(f"s_sub_u32 s40, s40, {-off}")
        a(f"s_mov_b32 s42, {hex((1 << n) - 1)}")
        a("s_mov_b32 s43, 0")
        a("s_mov_b64 exec, s[42:43]")
        a("s_mov_b32 s41, 0")
        a.label(f"LPL_{u}")
        a(f"buffer_load_dword v6, v{V_L4}, s[8:11], s40 offen sc1")
        a("s_add_u32 s41, s41, 1")
        a("s_waitcnt vmcnt(0)")
        a("v_cmp_ne_u32 vcc, 1, v6")
        a(f"s_cmp_gt_u32 s41, {POLL_LIMIT}")
        a(f"s_cbranch_scc1 LPX_{u}")
        a("s_nop 2")
        a(f"s_cbranch_vccnz LPL_{u}")
        a.label(f"LPX_{u}")
        a("s_mov_b64 exec, -1")
        a.label(f"LPO_{u}")
        a("s_barrier")
    def dma_batch(src_code, lds_base, nkb):
        u = uid[0]; uid[0] += 1
        a("s_cmp_eq_u32 s3, 0")
        a(f"s_cbranch_scc1 LDB_{u}")
        a(src_code)
        a("s_sub_u32 s59, s3, 1")
        a("s_lshl_b32 s59, s59, 10")
        a("s_add_u32 s58, s58, s59")
        a(f"s_add_u32 s59, s59, {lds_base}")
        a.label(f"LDL_{u}")
        a("s_mov_b32 m0, s59")
        a("s_add_u32 s59, s59, 3072")
        a(f"buffer_load_dwordx4 v{V_L16}, s[8:11], s58 offen lds")
        a("s_add_u32 s58, s58, 3072")
        a(f"s_cmp_lt_u32 s59, {lds_base + nkb*1024}")
        a(f"s_cbranch_scc1 LDL_{u}")
        a.label(f"LDB_{u}")
    def qw_src(off): return f"s_mul_i32 s58, s{S_QCB}, {96*1024}\ns_add_u32 s58, s58, {hex(WQKVP + off)}"
    def gw_src(off): return f"s_mul_i32 s58, s{S_GCB}, {224*1024}\ns_add_u32 s58, s58, {hex(WGUP + off)}"
    def lds_rd(dst, addr):
        base = [V_L16, V_B1, V_B2][addr >> 16]
        a(f"ds_read_b128 {vr(dst)}, v{base} offset:{addr & 0xffff}")

    kernel_begin(a, name)
    a("s_cmp_ge_u32 s2, 256")
    a("s_cbranch_scc1 LM_end")
    a("s_load_dwordx2 s[4:5], s[0:1], 72")
    a("s_load_dwordx2 s[6:7], s[0:1], 56")
    a(f"""v_lshrrev_b32 v1, 6, v0
    v_and_b32 v{V_LANE}, 63, v0
    v_readfirstlane_b32 s3, v1
    v_and_b32 v{V_T}, 15, v{V_LANE}
    v_lshrrev_b32 v{V_G}, 4, v{V_LANE}
    v_lshlrev_b32 v{V_L16}, 4, v{V_LANE}
    v_lshlrev_b32 v{V_L4}, 2, v{V_LANE}
    v_cmp_gt_u32 vcc, 16, v{V_LANE}
    v_add_u32 v{V_B1}, 0x10000, v{V_L16}
    v_add_u32 v{V_B2}, 0x20000, v{V_L16}
    v_cndmask_b32 v{V_MASK}, 0, -1, vcc
    s_and_b32 s30, s2, 7
    s_lshr_b32 s31, s2, 3
    s_and_b32 s32, s31, 3
    s_lshr_b32 s33, s31, 2
    s_lshr_b32 s{S_QRB}, s30, 1
    s_lshl_b32 s{S_QRB}, s{S_QRB}, 2
    s_add_u32 s{S_QRB}, s{S_QRB}, s32
    s_and_b32 s{S_QCB}, s30, 1
    s_lshl_b32 s{S_QCB}, s{S_QCB}, 3
    s_add_u32 s{S_QCB}, s{S_QCB}, s33
    s_lshl_b32 s{S_HEAD}, s30, 2
    s_add_u32 s{S_HEAD}, s{S_HEAD}, s32
    s_mov_b32 s{S_QB}, s33
    s_mov_b32 s{S_PRB}, s{S_HEAD}
    s_mov_b32 s{S_PCB}, s33
    s_lshr_b32 s{S_GRB}, s30, 2
    s_lshl_b32 s{S_GRB}, s{S_GRB}, 3
    s_and_b32 s34, s31, 7
    s_add_u32 s{S_GRB}, s{S_GRB}, s34
    s_and_b32 s{S_GCB}, s30, 3
    s_lshl_b32 s{S_GCB}, s{S_GCB}, 2
    s_lshr_b32 s34, s31, 3
    s_add_u32 s{S_GCB}, s{S_GCB}, s34
    s_mov_b32 s{S_LOFF}, 0
    s_mov_b32 s{S_LAYER}, 0
    s_mov_b32 s{S_FLG}, {hex(FLG)}""")
    for i in range(4):
        a(f"s_xor_b32 s34, s3, {i}")
        a("s_lshl_b32 s34, s34, 10")
        a(f"v_add_u32 v{VO[i]}, s34, v{V_L16}")
    a(f"v_lshlrev_b32 v{V_ST}, 8, v{V_G}")
    a(f"v_lshl_add_u32 v{V_ST}, v{V_T}, 3, v{V_ST}")
    if STAMP:
        a("v_mov_b32 v246, 0"); a("v_mov_b32 v247, 0")
        a("s_memrealtime s[62:63]")
    a("s_waitcnt lgkmcnt(0)")
    make_srd(a, 8, 4, WS_SIZE)
    make_srd(a, 12, 6, 2048*512*2)
    stamp("start")

    def qkv_w_dma():
        a(f"s_mul_i32 s30, s{S_QCB}, {96*1024}")
        a(f"s_add_u32 s30, s30, {hex(WQKVP)}")
        a("s_mul_i32 s31, s3, 3072")
        a("s_add_u32 s30, s30, s31")
        for c in range(8):
            a("s_mov_b32 m0, s31")
            a("s_add_u32 s31, s31, 12288")
            for i in range(3):
                a(f"buffer_load_dwordx4 v{V_L16}, s[8:11], s30 offen offset:{1024*i} lds")
            a("s_add_u32 s30, s30, 12288")
        vm.add("qw", 24)
    def xtile_addr(dst, base):
        a(f"s_lshl_b32 s{dst}, s{S_PRB}, 2")
        a(f"s_add_u32 s{dst}, s{dst}, s3")
        a(f"s_and_b32 s45, s{dst}, 1")
        a(f"s_lshr_b32 s{dst}, s{dst}, 1")
        a(f"s_lshl_b32 s{dst}, s{dst}, 4")
        a(f"s_lshl_b32 s46, s{S_PCB}, 1")
        a(f"s_add_u32 s{dst}, s{dst}, s46")
        a(f"s_lshl_b32 s{dst}, s{dst}, 1")
        a(f"s_add_u32 s{dst}, s{dst}, s45")
        a(f"s_lshl_b32 s{dst}, s{dst}, 10")
        a(f"s_add_u32 s{dst}, s{dst}, {hex(base)}")
        a(f"s_add_u32 s{dst}, s{dst}, s{S_LOFF}")
    def cs_load(ntile, csbase, cbreg, dst):
        a(f"v_lshlrev_b32 v7, 2, v{V_T}")
        a(f"s_mul_i32 s32, s{cbreg}, {ntile*64}")
        a(f"s_add_u32 s32, s32, {hex(csbase)}")
        for i in range(ntile):
            a(f"buffer_load_dword v{dst+i}, v7, s[8:11], s32 offen offset:{64*i}")
        vm.add("cs", ntile)
    QCS, QCF = 124, 112
    qkv_w_dma()
    xtile_addr(44, XIN)
    a(f"buffer_load_dwordx4 {vr(RES)}, v{V_L16}, s[8:11], s44 offen")
    a(f"buffer_load_dwordx4 {vr(RES+4)}, v{V_L16}, s[8:11], s44 offen offset:2048")
    a("s_branch LM_q0")

    a.label("LM_layer")
    dma_batch(qw_src(49152), 49152, 48)
    poll(4, S_QRB, 16, prev_layer=True)
    a.label("LM_q0")
    vm.reset()
    stamp("qkv polled")
    a(f"s_lshl_b32 s30, s{S_QRB}, 2")
    a("s_add_u32 s30, s30, s3")
    a("s_lshl_b32 s33, s30, 15")
    a(f"s_add_u32 s33, s33, {hex(XIN)}")
    a(f"s_add_u32 s33, s33, s{S_LOFF}")
    def xload(s, tag="x"):
        a(f"buffer_load_dwordx4 {ar(8*s)}, v{V_L16}, s[8:11], s33 offen offset:{2048*(s%2)} sc1")
        a(f"buffer_load_dwordx4 {ar(8*s+4)}, v{V_L16}, s[8:11], s33 offen offset:{2048*(s%2)+1024} sc1")
        if s % 2 == 1: a("s_add_u32 s33, s33, 4096")
        vm.add(f"{tag}{s}", 2)
    def stats_load(base, dst):
        a("s_lshl_b32 s31, s30, 11")
        a(f"s_add_u32 s31, s31, {hex(base)}")
        a(f"s_add_u32 s31, s31, s{S_LOFF}")
        for tt in range(2):
            a(f"buffer_load_dwordx2 {vr(dst+4*tt,2)}, v{V_ST}, s[8:11], s31 offen offset:{1024*tt} sc1")
            a(f"buffer_load_dwordx2 {vr(dst+4*tt+2,2)}, v{V_ST}, s[8:11], s31 offen offset:{1024*tt+128} sc1")
        vm.add("st", 4)
    PX = 8
    for s in range(2): xload(s)
    QST = 132
    stats_load(STA, QST)
    for s in range(2, PX): xload(s)
    cs_load(6, CSQKV, S_QCB, QCS)
    def acc(tile, tt): return 16 + (tile*2+tt)*4
    def wf(s, i): return 64 + ((s&1)*6 + i)*4
    NM, RS, NF, RSR = 140, 142, 144, 148
    vm.wait(a, "x0")
    a("s_barrier")
    stamp("qkv start")
    for i in range(6): lds_rd(wf(0,i), i*1024)
    for s in range(16):
        vm.wait(a, f"x{s}")
        for i in range(6):
            if s < 15:
                lds_rd(wf(s+1,i), (s+1)*6144 + i*1024)
                a("s_waitcnt lgkmcnt(6)")
            else:
                a(f"s_waitcnt lgkmcnt({5-i})")
            for tt in range(2):
                c = vr(acc(i,tt)) if s else "0"
                if i < 4: a(f"v_mfma_f32_16x16x32_bf16 {vr(acc(i,tt))}, {vr(wf(s,i))}, {ar(8*s+4*tt)}, {c}")
                else: a(f"v_mfma_f32_16x16x32_bf16 {vr(acc(i,tt))}, {ar(8*s+4*tt)}, {vr(wf(s,i))}, {c}")
            if i == 2 and s + PX < 16: xload(s + PX)
        if s == 3:
            stats_finish(a, [QST, QST+4], [156,157,158,159], [NM, NM+1], [RS, RS+1])
            for tt in range(2): build_nmfrag(a, NM+tt, NF+2*tt, 156, V_MASK)
            a("s_lshl_b32 s34, s3, 8")
            a(f"s_add_u32 s34, s34, {SCR}")
            a(f"v_lshl_add_u32 v156, v{V_T}, 2, s34")
            a(f"v_lshl_add_u32 v157, v{V_G}, 4, s34")
            a(f"ds_write_b32 v156, v{RS}")
            a(f"ds_write_b32 v156, v{RS+1} offset:64")
            a("s_waitcnt lgkmcnt(0)")
            a(f"ds_read_b128 {vr(RSR)}, v157")
            a(f"ds_read_b128 {vr(RSR+4)}, v157 offset:64")
            a("s_waitcnt lgkmcnt(0)")
        if s == 8:
            for i in range(6): build_csfrag(a, QCS+i, QCF+2*i, 130, V_MASK)
            a(f"""v_lshrrev_b32 v160, 1, v{V_G}
            v_lshlrev_b32 v160, 9, v160
            v_and_b32 v163, 1, v{V_G}
            v_lshl_add_u32 v161, v163, 8, v160
            v_lshl_add_u32 v161, v{V_T}, 4, v161
            v_lshrrev_b32 v162, 2, v{V_T}
            v_lshlrev_b32 v162, 3, v162
            v_lshl_add_u32 v162, v163, 2, v162
            v_and_b32 v163, 3, v{V_T}
            v_add_u32 v162, v162, v163
            v_lshl_add_u32 v162, v162, 4, v160""")
            a(f"v_mul_f32 v{NM}, {f32hex(0.25*LOG2E)}, v{RS}")
            a(f"v_mul_f32 v{NM+1}, {f32hex(0.25*LOG2E)}, v{RS+1}")
            a(f"s_lshl_b32 s31, s{S_QCB}, 7")
            a("s_add_u32 s31, s31, s30")
            a("s_lshl_b32 s31, s31, 10")
            a(f"s_add_u32 s31, s31, s{S_LOFF}")
    order = (2, 3, 4, 5, 0, 1)
    for i in order:
        for tt in range(2):
            if i < 4: a(f"v_mfma_f32_16x16x16_bf16 {vr(acc(i,tt))}, {vr(QCF+2*i,2)}, {vr(NF+2*tt,2)}, {vr(acc(i,tt))}")
            else: a(f"v_mfma_f32_16x16x16_bf16 {vr(acc(i,tt))}, {vr(NF+2*tt,2)}, {vr(QCF+2*i,2)}, {vr(acc(i,tt))}")
    stamp("qkv mfma done")
    for k, tile in enumerate(order):
        which, hh = tile >> 1, tile & 1
        base = [QF, KF, VF][which] + hh*65536
        a(f"s_add_u32 s32, s31, {hex(base)}")
        if k >= 4: a("s_nop 3")
        for tt in range(2):
            b = acc(tile, tt)
            for r in range(4):
                sc = (NM+tt) if which == 0 else (RS+tt) if which == 1 else (RSR+4*tt+r)
                a(f"v_mul_f32 v{b+r}, v{sc}, v{b+r}")
        d = 64 + tile*4
        for tt in range(2):
            b = acc(tile, tt)
            a(f"v_cvt_pk_bf16_f32 v{d+2*tt}, v{b}, v{b+1}")
            a(f"v_cvt_pk_bf16_f32 v{d+2*tt+1}, v{b+2}, v{b+3}")
        if which < 2:
            a("s_nop 1")
            a(f"v_permlane16_swap_b32 v{d}, v{d+2}")
            a(f"v_permlane16_swap_b32 v{d+1}, v{d+3}")
            a(f"buffer_store_dwordx4 {vr(d)}, v{161+which}, s[8:11], s32 offen sc1")
            vm.add("o", 1)
        else:
            a(f"buffer_store_dwordx4 {vr(d)}, v{V_L16}, s[8:11], s32 offen sc1")
            vm.add("o", 1)
    signal("o", 0, S_QCB, S_QRB)
    stamp("qkv signaled")

    S = lambda u: 72 + 16*(u & 3)
    C = lambda u: 136 + 16*(u & 1)
    O = lambda u: 168 + 16*(u & 1)
    Q = lambda u: 16 + 4*(u & 1)
    KFR = lambda t: 24 + 4*(t & 3)
    V0 = lambda t: 40 + 8*(t & 3)
    V1 = lambda t: 44 + 8*(t & 3)
    IDX, KA, VA0, VA1 = 200, 201, 202, 203
    VB = 65536; VST = 1056
    a(f"""v_and_b32 v24, 31, v{V_LANE}
    v_lshrrev_b32 v25, 1, v24
    s_lshl_b32 s30, s3, 4
    v_add_u32 v25, s30, v25
    v_mul_u32_u24 v25, {VST}, v25
    v_and_b32 v28, 1, v{V_LANE}
    v_lshl_add_u32 v25, v28, 4, v25
    v_add_u32 v25, {VB+1024}, v25
    v_mul_u32_u24 v28, 0x3f80, v28
    v_lshl_or_b32 v28, v28, 16, v28
    v_mov_b32 v29, v28
    v_mov_b32 v30, v28
    v_mov_b32 v31, v28
    ds_write_b128 v25, v[28:31]""")
    a(f"""v_lshrrev_b32 v32, 5, v{V_LANE}
    v_lshlrev_b32 v33, 8, v32
    v_lshl_add_u32 v33, v24, 4, v33
    v_add_u32 v33, {VB}, v33
    v_and_b32 v34, 27, v24
    v_cmp_eq_u32 vcc, 16, v34
    v_mov_b32 v34, {VB+1024}
    v_mov_b32 v35, {VB+1040}
    v_cndmask_b32 v34, v34, v35, vcc
    v_cmp_gt_u32 vcc, 16, v24
    v_subrev_u32 v35, 0x200, v34
    s_nop 0
    v_cndmask_b32 v204, v34, v33, vcc
    v_cndmask_b32 v205, v35, v33, vcc
    v_mov_b32 v{IDX}, 0xdddddddd
    s_lshr_b32 s35, s{S_HEAD}, 1""")
    for i in range(16):
        a(f"v_mov_b32 v{O(0)+i}, 0")
        a(f"v_mov_b32 v{O(1)+i}, 0")
        a(f"v_mov_b32 v{S(3)+i}, 0")
    a(f"""s_lshl_b32 s30, s{S_HEAD}, 16
    s_add_u32 s30, s30, s{S_LOFF}
    s_lshl_b32 s31, s{S_QB}, 3
    s_lshl_b32 s32, s3, 1
    s_add_u32 s31, s31, s32
    s_lshl_b32 s31, s31, 10
    s_add_u32 s31, s31, s30""")
    a(f"s_add_u32 s31, s31, {hex(QF)}")
    a("s_lshl_b32 s32, s3, 10")
    a(f"s_mul_i32 s33, s3, {VST}")
    a(f"s_add_u32 s33, s33, {VB}")
    a("s_add_u32 s36, s30, s32")
    a(f"s_add_u32 s37, s36, {hex(VF)}")
    a(f"s_add_u32 s36, s36, {hex(KF)}")
    a(f"""s_lshl_b32 s56, s{S_PCB}, 4
    s_lshl_b32 s57, s3, 2
    s_add_u32 s56, s56, s57
    s_lshl_b32 s56, s56, 12""")
    a(f"s_add_u32 s56, s56, {hex(WOP)}")
    a(f"s_mul_i32 s54, s{S_PCB}, 56")
    a("s_mul_i32 s55, s3, 14")
    a("s_add_u32 s54, s54, s55")
    a("s_lshl_b32 s54, s54, 12")
    a(f"s_add_u32 s54, s54, {hex(WDP)}")
    a(f"s_mul_i32 s50, s{S_GCB}, {224*1024}")
    a(f"s_add_u32 s50, s50, {hex(WGUP)}")
    a("s_lshl_b32 s51, s3, 13")
    a("s_add_u32 s50, s50, s51")
    a(f"s_add_u32 s50, s50, {5*32768}")
    poll(0, 35, 16)
    stamp("attn polled")
    def kv_round(r):
        a("s_mov_b32 m0, s32")
        a("s_add_u32 s32, s32, 4096")
        a(f"buffer_load_dwordx4 v{V_L16}, s[8:11], s36 offen sc1 lds")
        a("s_mov_b32 m0, s33")
        a(f"s_add_u32 s33, s33, {4*VST}")
        a(f"buffer_load_dwordx4 v{V_L16}, s[8:11], s37 offen sc1 lds")
        a("s_add_u32 s36, s36, 4096")
        a("s_add_u32 s37, s37, 4096")
        vm.add(f"kv{r}", 2)
    a(f"buffer_load_dwordx4 {vr(Q(0))}, v{V_L16}, s[8:11], s31 offen sc1")
    a(f"buffer_load_dwordx4 {vr(Q(1))}, v{V_L16}, s[8:11], s31 offen offset:1024 sc1")
    vm.add("q", 2)
    for r in range(3): kv_round(r)
    for k in range(16):
        s_, ct = divmod(k, 4)
        a(f"buffer_load_dwordx4 {ar(16*s_+4*ct)}, v{V_L16}, s[8:11], s56 offen offset:{1024*ct}")
        if ct == 3: a("s_add_u32 s56, s56, 4096")
    vm.add("wo", 16)
    CH = 32768; NSLOT = 5
    SLOT = [65536, 98304, 131072, 0, 32768]
    def gu_dma(c):
        sl = SLOT[c % NSLOT]
        a(f"s_add_u32 s52, s51, {sl}")
        a("s_mov_b32 m0, s52")
        a("s_add_u32 s53, s50, 4096")
        for i in range(4): a(f"buffer_load_dwordx4 v{V_L16}, s[8:11], s50 offen offset:{1024*i} lds")
        a(f"s_add_u32 s52, s51, {sl+4096}")
        a("s_mov_b32 m0, s52")
        a(f"s_add_u32 s50, s50, {CH}")
        for i in range(4): a(f"buffer_load_dwordx4 v{V_L16}, s[8:11], s53 offen offset:{1024*i} lds")
        vm.add(f"gw{c}", 8)
    def WDR(k):
        if k < 32: return ('a', 128 + 4*k)
        if k < 40: return ('v', 212 + 4*(k-32))
        return ('v', 128 + 4*(k-40))
    def wd_load(k):
        a(f"buffer_load_dwordx4 {R(WDR(k))}, v{V_L16}, s[8:11], s54 offen offset:{1024*(k%4)}")
        if k % 4 == 3: a("s_add_u32 s54, s54, 4096")
        vm.add("wd", 1)
    a("s_mov_b32 s39, 0")
    vm.wait(a, "kv0")
    a("s_waitcnt lgkmcnt(0)")
    a("s_barrier")
    stamp("attn data")
    a(f"ds_read_b128 {vr(KFR(0))}, v{V_L16}")
    a("s_waitcnt lgkmcnt(0)")
    for q in range(2):
        a(f"v_mfma_f32_32x32x16_bf16 {vr(S(q),16)}, {vr(KFR(0))}, {vr(Q(q))}, 0")
    a("s_nop 12")
    for q in range(2):
        m = 206 + q
        if q: a("s_nop 3")
        a(f"v_max3_f32 v{m}, v{S(q)}, v{S(q)+1}, v{S(q)+2}")
        for i in range(3, 15, 2):
            a(f"v_max3_f32 v{m}, v{m}, v{S(q)+i}, v{S(q)+i+1}")
        a(f"v_max_f32 v{m}, v{m}, v{S(q)+15}")
    a.label("LA_restart")
    a("""v_mov_b32 v208, v206
    v_mov_b32 v209, v207
    s_nop 1
    v_permlane32_swap_b32 v206, v208
    v_permlane32_swap_b32 v207, v209
    s_nop 1
    v_max_f32 v206, v206, v208
    v_max_f32 v207, v207, v209""")
    a(f"v_mov_b32 v{KA}, v{V_L16}")
    a(f"v_mov_b32 v{VA0}, v204")
    a(f"v_mov_b32 v{VA1}, v205")
    for t in range(2):
        a(f"ds_read_b128 {vr(KFR(t))}, v{KA} offset:{1024*t}")
    a(f"ds_read_b128 {vr(V0(0))}, v{VA0}")
    a(f"ds_read_b128 {vr(V1(0))}, v{VA1} offset:512")
    a(f"ds_read_b128 {vr(V1(3))}, v{VA1} offset:512")
    for i in range(16): a(f"v_sub_f32 v{C(0)+i}, 0, v206")
    a("s_waitcnt lgkmcnt(0)")
    a("s_nop 0")
    a(f"v_mfma_f32_32x32x16_bf16 {vr(S(0),16)}, {vr(KFR(0))}, {vr(Q(0))}, {vr(C(0),16)}")
    for i in range(16): a(f"v_sub_f32 v{C(1)+i}, 0, v207")
    a("s_nop 1")
    a(f"v_mfma_f32_32x32x16_bf16 {vr(S(1),16)}, {vr(KFR(0))}, {vr(Q(1))}, {vr(C(1),16)}")
    def attn_body(mode):
        for u in range(16):
            t = u >> 1
            def ex(lo, hi):
                for i in range(lo, hi): a(f"v_exp_f32 v{S(u)+i}, v{S(u)+i}")
            ex(0, 4)
            a(f"v_smfmac_f32_32x32x32_bf16 {vr(O(u-1),16)}, {vr(V1((u-1)>>1))}, {vr(S(u-1)+8,8)}, v{IDX}")
            if u % 2 == 0:
                if mode == 1 and u == 2:
                    vm.wait(a, "kv2")
                    a("s_barrier")
                a("s_waitcnt lgkmcnt(0)")
                a(f"ds_read_b128 {vr(KFR(t+2))}, v{KA} offset:{1024*(t+2)}")
                a(f"ds_read_b128 {vr(V0(t+1))}, v{VA0} offset:{VST*(t+1)}")
                a(f"ds_read_b128 {vr(V1(t+1))}, v{VA1} offset:{VST*(t+1)+512}")
            ex(4, 10)
            a(f"v_mfma_f32_32x32x16_bf16 {vr(S(u+2),16)}, {vr(KFR((u+2)>>1))}, {vr(Q(u))}, {vr(C(u),16)}")
            if mode == 1 and u < 13: kv_round(3 + u)
            ex(10, 14)
            a(f"v_smfmac_f32_32x32x32_bf16 {vr(O(u),16)}, {vr(V0(t))}, {vr(S(u),8)}, v{IDX}")
            ex(14, 16)
        a(f"v_add_u32 v{KA}, 0x2000, v{KA}")
        a(f"v_add_u32 v{VA0}, {8*VST}, v{VA0}")
        a(f"v_add_u32 v{VA1}, {8*VST}, v{VA1}")
    a("s_mov_b32 s38, 8")
    a("s_cmp_lg_u32 s39, 0")
    a("s_cbranch_scc1 LA_loop")
    attn_body(1)
    vm.wait(a, "kv15")
    a("s_barrier")
    a("s_mov_b32 s38, 7")
    a.label("LA_loop")
    attn_body(0)
    a("s_sub_u32 s38, s38, 1")
    a("s_cmp_lg_u32 s38, 0")
    a("s_cbranch_scc1 LA_loop")
    a(f"v_smfmac_f32_32x32x32_bf16 {vr(O(1),16)}, {vr(V1(3))}, {vr(S(3)+8,8)}, v{IDX}")
    a(f"""v_and_b32 v24, 31, v{V_LANE}
    v_lshrrev_b32 v25, 4, v24
    v_lshlrev_b32 v25, 10, v25
    v_lshrrev_b32 v26, 5, v{V_LANE}
    v_lshl_add_u32 v25, v26, 8, v25
    v_lshl_add_u32 v25, v{V_T}, 4, v25
    s_lshl_b32 s30, s{S_QB}, 2
    s_add_u32 s30, s30, s3
    s_lshl_b32 s30, s30, 4
    s_lshr_b32 s31, s{S_HEAD}, 1
    s_add_u32 s30, s30, s31
    s_lshl_b32 s30, s30, 12
    s_and_b32 s31, s{S_HEAD}, 1
    s_lshl_b32 s31, s31, 9
    s_add_u32 s30, s30, s31
    s_add_u32 s30, s30, s{S_LOFF}""")
    a(f"s_add_u32 s30, s30, {hex(OF)}")
    a("s_waitcnt lgkmcnt(0)")
    stamp("attn loop done")
    a("s_cmp_lg_u32 s39, 0")
    a("s_cbranch_scc1 LA_fin")
    a("v_mov_b32 v208, 0x4e800000")
    a(f"v_max_f32 v209, v{O(0)+8}, v{O(1)+8}")
    a(f"v_add_f32 v210, v{O(0)+8}, v{O(1)+8}")
    a("v_cmp_nlt_f32 vcc, v209, v208")
    a("v_cmp_u_f32 s[40:41], v210, v210")
    a("s_nop 3")
    a("s_or_b64 vcc, vcc, s[40:41]")
    a("s_cbranch_vccz LA_fin")
    a("s_mov_b32 s39, 1")
    a("v_mov_b32 v206, 0xff800000")
    a("v_mov_b32 v207, 0xff800000")
    a(f"v_mov_b32 v{KA}, v{V_L16}")
    a("s_mov_b32 s38, 64")
    a.label("LA_maxloop")
    a(f"ds_read_b128 {vr(KFR(0))}, v{KA}")
    a("s_waitcnt lgkmcnt(0)")
    for q in range(2):
        a(f"v_mfma_f32_32x32x16_bf16 {vr(S(q),16)}, {vr(KFR(0))}, {vr(Q(q))}, 0")
    a("s_nop 15")
    a("s_nop 3")
    for q in range(2):
        for i in range(0, 16, 2):
            a(f"v_max3_f32 v{206+q}, v{206+q}, v{S(q)+i}, v{S(q)+i+1}")
    a(f"v_add_u32 v{KA}, 0x400, v{KA}")
    a("s_sub_u32 s38, s38, 1")
    a("s_cmp_lg_u32 s38, 0")
    a("s_cbranch_scc1 LA_maxloop")
    for i in range(16):
        a(f"v_mov_b32 v{O(0)+i}, 0")
        a(f"v_mov_b32 v{O(1)+i}, 0")
        a(f"v_mov_b32 v{S(3)+i}, 0")
    a("s_branch LA_restart")
    a.label("LA_fin")
    a(f"v_rcp_f32 v206, v{O(0)+8}")
    a(f"v_rcp_f32 v207, v{O(1)+8}")
    a("s_nop 0")
    for q in range(2):
        for i in range(8): a(f"v_mul_f32 v{O(q)+i}, v{206+q}, v{O(q)+i}")
        for i in range(4): a(f"v_cvt_pk_bf16_f32 v{28+4*q+i}, v{O(q)+2*i}, v{O(q)+2*i+1}")
        a(f"buffer_store_dwordx4 {vr(28+4*q)}, v25, s[8:11], s30 offen offset:{2048*q} sc1")
    vm.add("o", 2)
    signal("o", 1, S_QB, S_HEAD)
    stamp("attn signaled")

    dma_batch(gw_src(0), 65536, 96)
    def pacc(ct, i, base): return base + (i*4 + ct)*4
    a(f"""s_lshr_b32 s35, s{S_PRB}, 2
    s_lshl_b32 s30, s{S_PRB}, 4
    s_lshl_b32 s31, s3, 2
    s_add_u32 s30, s30, s31
    s_lshl_b32 s30, s30, 12
    s_add_u32 s30, s30, s{S_LOFF}""")
    a(f"s_add_u32 s30, s30, {hex(OF)}")
    poll(1, 35, 32)
    stamp("wo polled")
    for s in range(4):
        for i in range(4):
            a(f"buffer_load_dwordx4 {vr(16+16*s+4*i)}, v{VO[i]}, s[8:11], s30 offen sc1")
        a("s_add_u32 s30, s30, 4096")
        vm.add(f"of{s}", 4)
    def red_setup(red):
        for i in range(1, 4):
            a(f"s_xor_b32 s34, s3, {i}")
            a("s_mul_i32 s34, s34, 12288")
            a(f"s_add_u32 s34, s34, {red + (i-1)*4096}")
            a(f"v_add_u32 v{207+i}, s34, v{V_L16}")
        a("s_mul_i32 s34, s3, 12288")
        a(f"s_add_u32 s34, s34, {red}")
        a(f"v_add_u32 v211, s34, v{V_L16}")
    red_setup(RED_WO)
    for s in range(4):
        vm.wait(a, f"of{s}")
        for i in (1, 2, 3, 0):
            for ct in range(4):
                c = vr(pacc(ct,i,80)) if s else "0"
                a(f"v_mfma_f32_16x16x32_bf16 {vr(pacc(ct,i,80))}, {ar(16*s+4*ct)}, {vr(16+16*s+4*i)}, {c}")
    def reduce_and_residual(accbase, rdbase, scale_reg):
        for i in range(1, 4):
            if i == 3: a("s_nop 3")
            for ct in range(4):
                a(f"ds_write_b128 v{207+i}, {vr(pacc(ct,i,accbase))} offset:{ct*1024}")
        X = rdbase + 48
        for i in range(8):
            a(f"v_lshlrev_b32 v{X+2*i}, 16, v{RES+i}")
            a(f"v_and_b32 v{X+2*i+1}, 0xffff0000, v{RES+i}")
        a("s_waitcnt lgkmcnt(0)")
        a("s_barrier")
        for j in range(3):
            for ct in range(4):
                a(f"ds_read_b128 {vr(rdbase + (j*4+ct)*4)}, v211 offset:{j*4096 + ct*1024}")
        A0 = accbase
        a("s_waitcnt lgkmcnt(8)")
        for i in range(16): a(f"v_add_f32 v{A0+i}, v{A0+i}, v{rdbase+i}")
        a("s_waitcnt lgkmcnt(0)")
        for i in range(16): a(f"v_add_f32 v{rdbase+16+i}, v{rdbase+16+i}, v{rdbase+32+i}")
        for i in range(16): a(f"v_add_f32 v{A0+i}, v{A0+i}, v{rdbase+16+i}")
        for i in range(16):
            if scale_reg is not None: a(f"v_fma_f32 v{A0+i}, v{A0+i}, v{scale_reg}, v{X+i}")
            else: a(f"v_add_f32 v{A0+i}, v{A0+i}, v{X+i}")
            if i % 2 == 1: a(f"v_cvt_pk_bf16_f32 v{RES+i//2}, v{A0+i-1}, v{A0+i}")
    def out_addrs(xbase, stbase, extra_off):
        xtile_addr(44, xbase + extra_off)
        a(f"""s_lshl_b32 s47, s{S_PRB}, 2
        s_add_u32 s47, s47, s3
        s_lshl_b32 s47, s47, 10
        s_lshl_b32 s31, s{S_PCB}, 7
        s_add_u32 s47, s47, s31
        s_add_u32 s47, s47, s{S_LOFF}""")
        a(f"s_add_u32 s47, s47, {hex(stbase + extra_off)}")
        a(f"s_lshr_b32 s35, s{S_PRB}, 1")
        a(f"s_and_b32 s36, s{S_PRB}, 1")
        a("s_lshl_b32 s36, s36, 3")
        a(f"s_add_u32 s36, s36, s{S_PCB}")
    def store_x_and_stats():
        a(f"buffer_store_dwordx4 {vr(RES)}, v{V_L16}, s[8:11], s44 offen sc1")
        a(f"buffer_store_dwordx4 {vr(RES+4)}, v{V_L16}, s[8:11], s44 offen offset:2048 sc1")
        a("v_mov_b32 v206, 0x3f803f80")
        a("v_mov_b32 v202, 0")
        a("v_mov_b32 v203, 0")
        for i in range(8):
            a(f"v_dot2_f32_bf16 v202, v{RES+i}, v206, v202")
            a(f"v_dot2_f32_bf16 v203, v{RES+i}, v{RES+i}, v203")
        a("s_nop 3")
        reduce_g_multi(a, [202, 203], [204, 205])
        a("s_mov_b64 exec, 0xffff")
        a(f"buffer_store_dwordx2 v[202:203], v{V_ST}, s[8:11], s47 offen sc1")
        a("s_mov_b64 exec, -1")
        vm.add("o", 3)
    out_addrs(X1F, STB, 0)
    stamp("wo mfma done")
    reduce_and_residual(80, 144, None)
    store_x_and_stats()
    signal("o", 2, 35, 36)
    stamp("wo signaled")

    dma_batch(gw_src(98304), 0, 64)
    GCS, GCF = 212, 160
    a(f"s_lshl_b32 s30, s{S_GRB}, 2")
    a("s_add_u32 s30, s30, s3")
    a("s_lshl_b32 s33, s30, 15")
    a(f"s_add_u32 s33, s33, {hex(X1F)}")
    a(f"s_add_u32 s33, s33, s{S_LOFF}")
    a(f"""s_lshr_b32 s34, s30, 1
    s_lshl_b32 s34, s34, 4
    s_add_u32 s34, s34, s{S_GCB}
    s_mul_i32 s34, s34, 14
    s_and_b32 s35, s30, 1
    s_add_u32 s36, s34, s35
    s_add_u32 s35, s36, s35
    s_lshl_b32 s35, s35, 10
    s_lshl_b32 s36, s36, 10
    s_add_u32 s35, s35, s{S_LOFF}
    s_add_u32 s36, s36, s{S_LOFF}""")
    a(f"s_add_u32 s35, s35, {hex(HF)}")
    a(f"s_add_u32 s36, s36, {hex(HF + 12288)}")
    poll(2, S_GRB, 16)
    stamp("gu polled")
    GST = 188
    for s in range(2): xload(s)
    stats_load(STB, GST)
    for s in range(2, PX): xload(s)
    cs_load(14, CSGU, S_GCB, GCS)
    vm.wait(a, "x0")
    a("s_barrier")
    NM, RS, NF = 196, 198, 200
    RING = 8; AHEAD = 6
    def gwf(n): return 128 + (n % RING)*4
    def rd(n): lds_rd(gwf(n), SLOT[(n // 32) % NSLOT] + (n % 32)*1024)
    TOT = 224
    def nmap(n):
        if n < 128: return divmod(n, 8)
        s_, t6 = divmod(n - 128, 6)
        return s_, 8 + t6
    def epi_pair(i, tt):
        G, U = acc(2*i, tt), acc(2*i+1, tt)
        L = [f"v_max_f32 v{G+r}, 0, v{G+r}" for r in range(4)] + [f"v_mul_f32 v{G+r}, v{G+r}, v{U+r}" for r in range(4)]
        if i < 6: d = U if i % 2 == 0 else acc(2*(i-1)+1, tt) + 2
        else: d = acc(13, 0) + 2*tt if tt == 0 else None
        if i == 6:
            d = 204 + 2*tt
        L += [f"v_cvt_pk_bf16_f32 v{d}, v{G}, v{G+1}", f"v_cvt_pk_bf16_f32 v{d+1}, v{G+2}, v{G+3}"]
        if i < 6 and i % 2 == 1:
            L.append(("ST", f"buffer_store_dwordx4 {vr(d-2)}, v{V_L16}, s[8:11], s35 offen offset:{1024*tt} sc1"))
            if tt == 1: L.append("s_add_u32 s35, s35, 4096")
        if i == 6 and tt == 1:
            L.append(("ST", f"buffer_store_dwordx4 v[204:207], v{V_L16}, s[8:11], s36 offen sc1"))
        return L
    def emit(x):
        if isinstance(x, tuple): a(x[1]); vm.add("o", 1)
        else: a(x)
    epiA = []
    for i in range(4):
        for tt in range(2): epiA += epi_pair(i, tt)
    stamp("gu start")
    for n in range(AHEAD): rd(n)
    wdk = 0
    for n in range(TOT):
        s, i = nmap(n)
        if n < 128 and i == 0: vm.wait(a, f"x{s}")
        m = n + AHEAD
        if m < TOT:
            if m % 32 == 0:
                c = m // 32
                if c in (2, 3):
                    a("s_barrier"); gu_dma(c+3)
                if c in (5, 6):
                    vm.wait(a, f"gw{c}"); a("s_barrier")
            rd(m)
            a(f"s_waitcnt lgkmcnt({AHEAD})")
        else:
            a(f"s_waitcnt lgkmcnt({TOT-1-n})")
        for tt in range(2):
            c = vr(acc(i,tt)) if s else "0"
            a(f"v_mfma_f32_16x16x32_bf16 {vr(acc(i,tt))}, {vr(gwf(n))}, {ar(8*s+4*tt)}, {c}")
        if n < 128 and i == 3 and s + PX < 16: xload(s + PX)
        if n == 40:
            stats_finish(a, [GST, GST+4], [204,205,206,207], [NM, NM+1], [RS, RS+1])
            for tt in range(2): build_nmfrag(a, NM+tt, NF+2*tt, 204, V_MASK)
        if n == 70:
            for i2 in range(14): build_csfrag(a, GCS+i2, GCF+2*i2, 204, V_MASK)
        if n == 127:
            for i2 in range(8):
                for tt in range(2):
                    a(f"v_mfma_f32_16x16x16_bf16 {vr(acc(i2,tt))}, {vr(GCF+2*i2,2)}, {vr(NF+2*tt,2)}, {vr(acc(i2,tt))}")
        if n >= 132:
            for _ in range(2):
                if epiA: emit(epiA.pop(0))
        if n >= 100 and n % 3 == 0 and wdk < 40:
            wd_load(wdk); wdk += 1
    assert not epiA and wdk == 40, (len(epiA), wdk)
    for i in range(8, 14):
        for tt in range(2):
            a(f"v_mfma_f32_16x16x16_bf16 {vr(acc(i,tt))}, {vr(GCF+2*i,2)}, {vr(NF+2*tt,2)}, {vr(acc(i,tt))}")
    stamp("gu mfma done")
    for i in range(4, 7):
        for tt in range(2):
            for x in epi_pair(i, tt): emit(x)
    signal("o", 3, S_GRB, S_GCB)
    stamp("gu signaled")

    def wd_tail(lbl, wave0):
        a("s_cmp_eq_u32 s3, 0")
        a(f"s_cbranch_scc{0 if wave0 else 1} {lbl}")
        save = list(vm.seq)
        for k in range(40, 56): wd_load(k)
        vm.seq = save
        a.label(lbl)
    wd_tail("LWT_a", False)
    a(f"s_cmp_lg_u32 s{S_LAYER}, 0")
    a("s_cbranch_scc1 LM_noqw")
    dma_batch(qw_src(0), 0, 48)
    a.label("LM_noqw")
    a(f"""s_lshr_b32 s35, s{S_PRB}, 1
    s_lshl_b32 s49, s{S_PRB}, 2
    s_add_u32 s49, s49, s3
    s_lshl_b32 s49, s49, 10
    s_add_u32 s49, s49, s{S_LOFF}""")
    a(f"s_add_u32 s49, s49, {hex(STB)}")
    a(f"""s_mul_i32 s48, s{S_PRB}, 56
    s_mul_i32 s34, s3, 14
    s_add_u32 s48, s48, s34
    s_lshl_b32 s48, s48, 12
    s_add_u32 s48, s48, s{S_LOFF}""")
    a(f"s_add_u32 s48, s48, {hex(HF)}")
    red_setup(RED_DN)
    VH = [200, 201, 202, 203]
    for i in range(4):
        a(f"s_xor_b32 s34, s3, {i}")
        a("s_lshr_b32 s37, s34, 1")
        a("s_lshl_b32 s37, s37, 10")
        a("s_and_b32 s34, s34, 1")
        a("s_lshl_b32 s34, s34, 3")
        a("s_add_u32 s34, s34, s37")
        a(f"v_add_u32 v{VH[i]}, s34, v{V_L16}")
    poll(3, 35, 16)
    stamp("down polled")
    HD = 8
    def hload(s):
        half = (s % 4 == 3)
        for i in range(4):
            if half: a(f"buffer_load_dwordx2 {ar(16*(s%HD)+4*i,2)}, v{VH[i]}, s[8:11], s48 offen sc1")
            else: a(f"buffer_load_dwordx4 {ar(16*(s%HD)+4*i)}, v{VO[i]}, s[8:11], s48 offen sc1")
        a(f"s_add_u32 s48, s48, {2048 if half else 4096}")
        vm.add(f"h{s}", 4)
    HP = 6
    hload(0)
    a(f"buffer_load_dwordx2 v[192:193], v{V_ST}, s[8:11], s49 offen sc1")
    a(f"buffer_load_dwordx2 v[194:195], v{V_ST}, s[8:11], s49 offen offset:128 sc1")
    vm.add("st", 2)
    for s in range(1, HP): hload(s)
    wd_tail("LWT_b", True)
    for s in range(16):
        vm.wait(a, f"h{s}")
        cbl, p = divmod(s, 4)
        for i in (1, 2, 3, 0):
            for ct in range(4):
                c = vr(pacc(ct,i,16)) if s else "0"
                if p < 3:
                    a(f"v_mfma_f32_16x16x32_bf16 {vr(pacc(ct,i,16))}, {R(WDR(cbl*14+p*4+ct))}, {ar(16*(s%HD)+4*i)}, {c}")
                else:
                    w_ = WDR(cbl*14 + 12 + (ct >> 1))
                    a(f"v_mfma_f32_16x16x16_bf16 {vr(pacc(ct,i,16))}, {R((w_[0], w_[1]+2*(ct&1)),2)}, {ar(16*(s%HD)+4*i,2)}, {c}")
            if i == 1 and s + HP < 16: hload(s + HP)
        if s == 2:
            stats_finish(a, [192], [196, 197], [198], [199])
            a("v_mul_f32 v199, v199, v199")
            out_addrs(XIN, STA, LSTRIDE)
    stamp("down mfma done")
    reduce_and_residual(16, 80, 199)
    a(f"s_cmp_lg_u32 s{S_LAYER}, 0")
    a("s_cbranch_scc1 LM_final")
    store_x_and_stats()
    signal("o", 4, 35, 36)
    stamp("down signaled")
    a(f"s_mov_b32 s{S_LAYER}, 1")
    a(f"s_mov_b32 s{S_LOFF}, {hex(LSTRIDE)}")
    a(f"s_mov_b32 s{S_FLG}, {hex(FLG + 5*4096)}")
    a("s_branch LM_layer")
    a.label("LM_final")
    a(f"""v_lshlrev_b32 v6, 10, v{V_T}
    v_lshl_add_u32 v6, v{V_G}, 3, v6
    s_lshl_b32 s30, s{S_PRB}, 2
    s_add_u32 s30, s30, s3
    s_lshl_b32 s30, s30, 14
    s_lshl_b32 s31, s{S_PCB}, 7
    s_add_u32 s30, s30, s31""")
    for ct in range(4):
        a(f"buffer_store_dwordx2 {vr(RES+2*ct,2)}, v6, s[12:15], s30 offen offset:{32*ct}")
    if STAMP:
        a("s_waitcnt vmcnt(0)")
        stamp("end")
        a("s_memrealtime s[64:65]")
        a("s_waitcnt lgkmcnt(0)")
        a("v_writelane_b32 v246, s62, 62")
        a("v_writelane_b32 v246, s64, 63")
        a("s_lshl_b32 s30, s2, 2")
        a("s_add_u32 s30, s30, s3")
        a("s_lshl_b32 s30, s30, 9")
        a(f"s_add_u32 s30, s30, {hex(DBGR)}")
        a(f"buffer_store_dword v246, v{V_L4}, s[8:11], s30 offen")
        a(f"buffer_store_dword v247, v{V_L4}, s[8:11], s30 offen offset:256")
    a.label("LM_end")
    a("s_endpgm")
    return kernel_desc(name, 512, 256)

def main(out_path):
    a = Asm()
    hdr = open("cdna_kernels/" + NAME + ".s.ref").read().split("; Override launch")[0]
    launches = [("prep_kernel", PREP_NWG, 256, 65536), ("main_kernel", 256, 256, 163840)]
    out = hdr
    for k, g, b, l in launches:
        out += f"; @launch kernel={k} grid=({g},1,1) block=({b},1,1) lds={l}\n"
    out += '.amdgcn_target "amdgcn-amd-amdhsa--gfx950"\n.text\n'
    descs = [gen_prep(a), gen_main(a)]
    out += a.text()
    out += '.section .rodata,"a"\n' + "".join(descs)
    open(out_path, "w").write(out)
    if STAMP: open(out_path + ".stamps", "w").write("\n".join(STAMP_NAMES))

if __name__ == "__main__":
    main(sys.argv[1] if len(sys.argv) > 1 else "cdna_kernels/" + NAME + ".s")
```

```python
import sys, os, struct

NAME = "interleave_layers__softmax_full_mha__glu_gated_reglu__prompt"
MB = 1 << 20
WQKVP = 0 * MB
WOP   = 2 * MB
WGUP  = 3 * MB
WDP   = 7 * MB
CSQKV = 9 * MB
CSGU  = 9 * MB + 0x4000
FLG   = 9 * MB + 0x10000
DBGR  = 9 * MB + 0x40000
ACT0  = 10 * MB
LSTRIDE = 20 * MB
XIN, QF, KF, VF, OF, X1F, HF = [ACT0 + i*MB for i in (0, 2, 4, 6, 8, 10, 12)]
STA = ACT0 + 19*MB + 0x80000
STB = ACT0 + 19*MB + 0xC0000
WS_SIZE = ACT0 + 2*LSTRIDE + 4*MB
LOG2E = 1.4426950408889634
STAMP = int(os.environ.get("STAMP", "0"))
POLL_LIMIT = 100000

def f32hex(x): return "0x%08x" % struct.unpack("<I", struct.pack("<f", x))[0]

class Asm:
    def __init__(self): self.lines = []
    def __call__(self, s):
        for l in s.split("\n"):
            l = l.strip()
            if l: self.lines.append("    " + l)
    def label(self, l): self.lines.append(l + ":")
    def raw(self, s): self.lines.append(s)
    def text(self): return "\n".join(self.lines) + "\n"

class VM:
    def __init__(self): self.seq = []
    def add(self, tag, n=1): self.seq += [tag]*n
    def wait(self, a, tag):
        idxs = [i for i, t in enumerate(self.seq) if t == tag]
        if not idxs: return
        idx = idxs[-1]
        n = len(self.seq) - 1 - idx
        a(f"s_waitcnt vmcnt({min(n, 63)})")
        self.seq = self.seq[idx+1:]
    def reset(self): self.seq = []

def vr(b, n=4): return f"v[{b}:{b+n-1}]"
def ar(b, n=4): return f"a[{b}:{b+n-1}]"
def R(x, n=4):
    return f"{x[0]}[{x[1]}:{x[1]+n-1}]"

def kernel_begin(a, name):
    a.raw(f".globl {name}"); a.raw(".p2align 8"); a.raw(f".type {name},@function"); a.label(name)

def kernel_desc(name, nvgpr, accum, nsgpr=100):
    return f""".p2align 6
.amdhsa_kernel {name}
  .amdhsa_next_free_vgpr {nvgpr}
  .amdhsa_next_free_sgpr {nsgpr}
  .amdhsa_accum_offset {accum}
  .amdhsa_group_segment_fixed_size 0
  .amdhsa_kernarg_size 80
  .amdhsa_user_sgpr_count 2
  .amdhsa_user_sgpr_kernarg_segment_ptr 1
  .amdhsa_system_sgpr_workgroup_id_x 1
.end_amdhsa_kernel
"""

def make_srd(a, d, src, size):
    a(f"s_mov_b32 s{d}, s{src}"); a(f"s_mov_b32 s{d+1}, s{src+1}")
    a(f"s_mov_b32 s{d+2}, {hex(size)}"); a(f"s_mov_b32 s{d+3}, 0x00020000")

def reduce_g_multi(a, xs, ts):
    for x, t in zip(xs, ts): a(f"v_mov_b32 v{t}, v{x}")
    a("s_nop 1")
    for x, t in zip(xs, ts): a(f"v_permlane32_swap_b32 v{x}, v{t}")
    a("s_nop 1")
    for x, t in zip(xs, ts): a(f"v_add_f32 v{x}, v{x}, v{t}")
    for x, t in zip(xs, ts): a(f"v_mov_b32 v{t}, v{x}")
    a("s_nop 1")
    for x, t in zip(xs, ts): a(f"v_permlane16_swap_b32 v{x}, v{t}")
    a("s_nop 1")
    for x, t in zip(xs, ts): a(f"v_add_f32 v{x}, v{x}, v{t}")

def stats_finish(a, ps, tmps, outs_nm, outs_rs):
    for p in ps:
        a(f"v_add_f32 v{p}, v{p}, v{p+2}")
        a(f"v_add_f32 v{p+1}, v{p+1}, v{p+3}")
    xs = []
    for p in ps: xs += [p, p+1]
    reduce_g_multi(a, xs, tmps[:len(xs)])
    for p, nm, rs in zip(ps, outs_nm, outs_rs):
        a(f"v_mul_f32 v{nm}, {f32hex(-1.0/512)}, v{p}")
        a(f"v_mul_f32 v{p+2}, v{nm}, v{nm}")
        a(f"v_mov_b32 v{p+3}, {f32hex(1.0/512)}")
        a(f"v_fma_f32 v{p+2}, v{p+1}, v{p+3}, -v{p+2}")
        a(f"v_max_f32 v{p+2}, 0, v{p+2}")
        a(f"v_add_f32 v{p+2}, {f32hex(1e-5)}, v{p+2}")
        a(f"v_rsq_f32 v{rs}, v{p+2}")
    a("s_nop 0")

def build_csfrag(a, src, dst, tmp, mask):
    a(f"v_and_b32 v{src}, v{mask}, v{src}")
    a(f"v_and_b32 v{tmp}, 0xffff0000, v{src}")
    a(f"v_sub_f32 v{src}, v{src}, v{tmp}")
    a(f"v_lshrrev_b32 v{dst}, 16, v{tmp}")
    a(f"v_or_b32 v{dst}, v{dst}, v{tmp}")
    a(f"v_cvt_pk_bf16_f32 v{dst+1}, v{src}, 0")

def build_nmfrag(a, nm, dst, tmp, mask):
    a(f"v_and_b32 v{tmp+1}, v{mask}, v{nm}")
    a(f"v_and_b32 v{tmp}, 0xffff0000, v{tmp+1}")
    a(f"v_sub_f32 v{tmp+1}, v{tmp+1}, v{tmp}")
    a(f"v_lshrrev_b32 v{dst+1}, 16, v{tmp}")
    a(f"v_cvt_pk_bf16_f32 v{dst}, v{tmp}, v{tmp+1}")

PREP_NWG = 280
def gen_prep(a):
    name = "prep_kernel"
    kernel_begin(a, name)
    a(f"s_cmp_ge_u32 s2, {PREP_NWG}")
    a("s_cbranch_scc1 LP_end")
    a("s_load_dwordx2 s[4:5], s[0:1], 72")
    a("s_load_dwordx4 s[40:43], s[0:1], 0")
    a("s_load_dwordx2 s[44:45], s[0:1], 16")
    a("s_load_dwordx4 s[48:51], s[0:1], 32")
    a("s_load_dwordx2 s[52:53], s[0:1], 48")
    a("v_lshrrev_b32 v1, 6, v0")
    a("v_and_b32 v2, 63, v0")
    a("v_readfirstlane_b32 s3, v1")
    a("v_and_b32 v3, 15, v2")
    a("v_lshrrev_b32 v4, 4, v2")
    a("s_waitcnt lgkmcnt(0)")
    make_srd(a, 8, 4, WS_SIZE)
    a("s_cmp_ge_u32 s2, 152")
    a("s_cbranch_scc1 LP_x")
    a("s_cmp_ge_u32 s2, 88")
    a("s_cbranch_scc1 LP_down")
    a("s_cmp_ge_u32 s2, 32")
    a("s_cbranch_scc1 LP_gu")
    a("s_cmp_ge_u32 s2, 24")
    a("s_cbranch_scc1 LP_wo")
    make_srd(a, 12, 42, 512*1536*2)
    a("""s_mov_b32 s16, 3072
    s_lshl_b32 s17, s2, 7
    s_mov_b32 s18, 16
    s_lshl_b32 s23, s2, 2
    s_add_u32 s23, s23, s3
    s_lshr_b32 s24, s23, 5
    s_and_b32 s25, s23, 31
    s_lshr_b32 s26, s25, 1
    s_and_b32 s25, s25, 1
    s_lshl_b32 s24, s24, 1
    s_add_u32 s24, s24, s25
    s_mul_i32 s19, s26, 96
    s_add_u32 s19, s19, s24
    s_lshl_b32 s19, s19, 10""")
    a(f"s_add_u32 s19, s19, {hex(WQKVP)}")
    a("""s_mov_b32 s20, 6144
    s_mov_b32 s21, 0
    s_mul_i32 s22, s26, 6
    s_add_u32 s22, s22, s24
    s_lshl_b32 s22, s22, 6""")
    a(f"s_add_u32 s22, s22, {hex(CSQKV)}")
    a("s_branch LP_w")
    a.label("LP_wo")
    make_srd(a, 12, 44, 512*512*2)
    a("""s_sub_u32 s23, s2, 24
    s_mov_b32 s16, 1024
    s_lshl_b32 s17, s23, 7
    s_mov_b32 s18, 16
    s_lshl_b32 s19, s23, 6
    s_add_u32 s19, s19, s3
    s_lshl_b32 s19, s19, 10""")
    a(f"s_add_u32 s19, s19, {hex(WOP)}")
    a("""s_mov_b32 s20, 4096
    s_mov_b32 s21, 1
    s_mov_b32 s22, 0
    s_branch LP_w""")
    a.label("LP_gu")
    a("s_sub_u32 s23, s2, 32")
    a("s_mov_b32 s27, 0")
    make_srd(a, 12, 48, 512*1792*2)
    a("""s_cmp_lt_u32 s23, 28
    s_cbranch_scc1 LP_gu2
    s_sub_u32 s23, s23, 28
    s_mov_b32 s27, 1
    s_mov_b32 s12, s50
    s_mov_b32 s13, s51""")
    a.label("LP_gu2")
    a("""s_mov_b32 s16, 3584
    s_lshl_b32 s17, s23, 7
    s_mov_b32 s18, 16
    s_lshl_b32 s23, s23, 2
    s_add_u32 s23, s23, s3
    s_mul_i32 s26, s23, 147
    s_lshr_b32 s26, s26, 10
    s_mul_i32 s24, s26, 7
    s_sub_u32 s24, s23, s24
    s_lshl_b32 s24, s24, 1
    s_add_u32 s24, s24, s27
    s_mul_i32 s19, s26, 224
    s_add_u32 s19, s19, s24
    s_mov_b32 s20, 8192
    s_cmp_lt_u32 s24, 8
    s_cbranch_scc1 LP_gu3
    s_add_u32 s19, s19, 120
    s_mov_b32 s20, 6144""")
    a.label("LP_gu3")
    a("s_lshl_b32 s19, s19, 10")
    a(f"s_add_u32 s19, s19, {hex(WGUP)}")
    a("""s_mov_b32 s21, 0
    s_mul_i32 s22, s26, 14
    s_add_u32 s22, s22, s24
    s_lshl_b32 s22, s22, 6""")
    a(f"s_add_u32 s22, s22, {hex(CSGU)}")
    a("s_branch LP_w")
    a.label("LP_down")
    make_srd(a, 12, 52, 1792*512*2)
    a("""s_sub_u32 s23, s2, 88
    s_lshr_b32 s24, s23, 3
    s_and_b32 s25, s23, 7
    s_mov_b32 s16, 1024""")
    a(f"s_mul_i32 s17, s24, {224*1024}")
    a("""s_lshl_b32 s26, s25, 7
    s_add_u32 s17, s17, s26
    s_mov_b32 s18, 7
    s_lshl_b32 s19, s25, 4
    s_lshl_b32 s26, s24, 1
    s_add_u32 s19, s19, s26
    s_mul_i32 s19, s19, 14
    s_lshl_b32 s19, s19, 10""")
    a(f"s_add_u32 s19, s19, {hex(WDP)}")
    a("""s_mov_b32 s20, 4096
    s_mov_b32 s21, 2
    s_mov_b32 s22, 0""")
    a.label("LP_w")
    a("""v_lshrrev_b32 v5, 3, v2
    v_mul_lo_u32 v5, v5, s16
    v_and_b32 v6, 7, v2
    v_lshlrev_b32 v6, 4, v6
    v_add_u32 v5, v5, v6
    s_mul_i32 s24, s3, s18
    s_lshl_b32 s25, s24, 10
    s_lshl_b32 s26, s16, 3
    s_mul_i32 s27, s24, s26
    s_add_u32 s27, s27, s17
    s_mov_b32 s28, s18""")
    a.label("LP_dma")
    a("""s_mov_b32 m0, s25
    s_add_u32 s25, s25, 1024
    buffer_load_dwordx4 v5, s[12:15], s27 offen lds
    s_add_u32 s27, s27, s26
    s_sub_u32 s28, s28, 1
    s_cmp_lg_u32 s28, 0
    s_cbranch_scc1 LP_dma
    v_lshrrev_b32 v6, 2, v3
    v_and_b32 v7, 3, v3
    v_lshlrev_b32 v7, 3, v7
    s_lshl_b32 s24, s3, 5
    v_add_u32 v7, s24, v7
    v_lshl_add_u32 v8, v4, 2, v6
    v_lshrrev_b32 v9, 1, v4
    v_lshlrev_b32 v9, 4, v9
    v_and_b32 v10, 1, v4
    v_lshl_add_u32 v9, v10, 2, v9
    v_add_u32 v9, v9, v6
    v_lshl_add_u32 v8, v8, 7, v7
    v_lshl_add_u32 v9, v9, 7, v7
    v_lshlrev_b32 v10, 4, v2""")
    for i in range(4):
        a(f"v_mov_b32 v{12+i}, 0x3f803f80")
        a(f"v_mov_b32 v{16+i}, 0")
    a("""s_waitcnt vmcnt(0)
    s_barrier
    s_cmp_eq_u32 s21, 1
    s_cbranch_scc1 LP_pi2
    s_cmp_eq_u32 s21, 2
    s_cbranch_scc1 LP_dn""")
    def steps(offs, base, colsum):
        n = len(offs)
        for s, (o1, o2) in enumerate(offs):
            a(f"ds_read_b64_tr_b16 {vr(32+4*s,2)}, v{base} offset:{o1}")
            a(f"ds_read_b64_tr_b16 {vr(34+4*s,2)}, v{base} offset:{o2}")
        a("s_mov_b32 s24, s19")
        for s in range(n):
            rem = 2*(n-1-s)
            a(f"s_waitcnt lgkmcnt({min(rem,15)})")
            a(f"buffer_store_dwordx4 {vr(32+4*s)}, v10, s[8:11], s24 offen")
            if colsum:
                a(f"v_mfma_f32_16x16x32_bf16 v[16:19], {vr(32+4*s)}, v[12:15], v[16:19]")
            a("s_add_u32 s24, s24, s20")
    steps([(4096*s, 4096*s+2048) for s in range(16)], 8, True)
    a("""s_nop 7
    s_nop 1
    v_lshlrev_b32 v11, 4, v4
    v_cmp_eq_u32 vcc, 0, v3
    s_and_saveexec_b64 s[30:31], vcc
    buffer_store_dwordx4 v[16:19], v11, s[8:11], s22 offen
    s_branch LP_end""")
    a.label("LP_pi2")
    steps([(4096*s, 4096*s+1024) for s in range(16)], 9, False)
    a("s_branch LP_end")
    a.label("LP_dn")
    for cbl in range(2):
        for p in range(3):
            r = 32 + (cbl*3+p)*4
            a(f"ds_read_b64_tr_b16 {vr(r,2)}, v8 offset:{2048*(7*cbl+2*p)}")
            a(f"ds_read_b64_tr_b16 {vr(r+2,2)}, v8 offset:{2048*(7*cbl+2*p+1)}")
        a(f"ds_read_b64_tr_b16 {vr(56+2*cbl,2)}, v8 offset:{2048*(7*cbl+6)}")
    a("""s_lshl_b32 s24, s3, 10
    s_add_u32 s24, s24, s19
    s_lshr_b32 s25, s3, 1
    s_lshl_b32 s25, s25, 10
    s_and_b32 s26, s3, 1
    s_lshl_b32 s26, s26, 3
    s_add_u32 s25, s25, s26
    s_add_u32 s25, s25, s19
    s_add_u32 s25, s25, 12288
    s_waitcnt lgkmcnt(0)""")
    for cbl in range(2):
        for p in range(3):
            a(f"buffer_store_dwordx4 {vr(32+(cbl*3+p)*4)}, v10, s[8:11], s24 offen")
            a("s_add_u32 s24, s24, 4096")
        a("s_add_u32 s24, s24, 2048")
        a(f"buffer_store_dwordx2 {vr(56+2*cbl,2)}, v10, s[8:11], s25 offen")
        a("s_add_u32 s25, s25, 14336")
    a("s_branch LP_end")
    a.label("LP_x")
    make_srd(a, 12, 40, 2048*512*2)
    a("""s_sub_u32 s23, s2, 152
    s_lshl_b32 s24, s23, 14
    s_lshl_b32 s25, s3, 8
    s_add_u32 s24, s24, s25
    v_lshlrev_b32 v5, 10, v3
    v_lshl_add_u32 v5, v4, 3, v5""")
    for s in range(4):
        a(f"buffer_load_dwordx2 {vr(32+4*s,2)}, v5, s[12:15], s24 offen offset:{64*s}")
        a(f"buffer_load_dwordx2 {vr(34+4*s,2)}, v5, s[12:15], s24 offen offset:{64*s+32}")
    a("""v_lshlrev_b32 v10, 4, v2
    s_lshr_b32 s26, s23, 1
    s_lshl_b32 s26, s26, 4
    s_lshl_b32 s27, s3, 2
    s_add_u32 s26, s26, s27
    s_lshl_b32 s26, s26, 1
    s_and_b32 s27, s23, 1
    s_add_u32 s26, s26, s27
    s_lshl_b32 s26, s26, 10""")
    a(f"s_add_u32 s26, s26, {hex(XIN)}")
    a("s_add_u32 s27, s26, 4096")
    a("v_mov_b32 v12, 0x3f803f80")
    for i in range(4): a(f"v_mov_b32 v{16+i}, 0")
    a("s_cmp_ge_u32 s23, 10")
    a("s_cbranch_scc1 LP_nz")
    a("s_lshl_b32 s28, s23, 2")
    a("s_add_u32 s28, s28, s3")
    a("s_lshl_b32 s28, s28, 10")
    a(f"s_add_u32 s28, s28, {hex(FLG)}")
    a("buffer_store_dwordx4 v[16:19], v10, s[8:11], s28 offen")
    a.label("LP_nz")
    a("s_waitcnt vmcnt(0)")
    a(f"buffer_store_dwordx4 {vr(32)}, v10, s[8:11], s26 offen")
    a(f"buffer_store_dwordx4 {vr(36)}, v10, s[8:11], s26 offen offset:2048")
    a(f"buffer_store_dwordx4 {vr(40)}, v10, s[8:11], s27 offen")
    a(f"buffer_store_dwordx4 {vr(44)}, v10, s[8:11], s27 offen offset:2048")
    for blk in range(2):
        for i in range(8):
            r = 32 + 8*blk + i
            a(f"v_dot2_f32_bf16 v{16+2*blk}, v{r}, v12, v{16+2*blk}")
            a(f"v_dot2_f32_bf16 v{17+2*blk}, v{r}, v{r}, v{17+2*blk}")
    a("s_nop 3")
    reduce_g_multi(a, [16,17,18,19], [20,21,22,23])
    a("""s_lshl_b32 s26, s23, 10
    s_lshl_b32 s27, s3, 8
    s_add_u32 s26, s26, s27""")
    a(f"s_add_u32 s26, s26, {hex(STA)}")
    a("""v_lshlrev_b32 v11, 3, v3
    v_cmp_eq_u32 vcc, 0, v4
    s_and_saveexec_b64 s[30:31], vcc
    buffer_store_dwordx2 v[16:17], v11, s[8:11], s26 offen
    buffer_store_dwordx2 v[18:19], v11, s[8:11], s26 offen offset:128""")
    a.label("LP_end")
    a("s_endpgm")
    return kernel_desc(name, 104, 104)

S_QRB, S_QCB, S_HEAD, S_QB, S_PRB, S_PCB, S_GRB, S_GCB = 16, 17, 18, 19, 20, 21, 22, 23
S_LOFF, S_LAYER, S_FLG = 24, 25, 26
RES = 248
V_L16, V_LANE, V_T, V_G, V_L4 = 1, 2, 3, 4, 5
RED = 98304
nstamp = [0]
STAMP_NAMES = []

def gen_main(a):
    name = "main_kernel"
    vm = VM()
    uid = [0]
    V_MASK = 9
    VO = [10, 11, 12, 13]
    V_ST = 8
    V_B1, V_B2 = 14, 15
    SCR = 162816
    RED_WO, RED_DN = 0, 98304
    def stamp(label):
        if STAMP:
            i = nstamp[0]; nstamp[0] += 1; STAMP_NAMES.append(label)
            a("s_memtime s[60:61]")
            a("s_waitcnt lgkmcnt(0)")
            a("s_cmp_eq_u32 s25, 0")
            a(f"s_cbranch_scc0 LS_{i}")
            a(f"v_writelane_b32 v246, s60, {i}")
            a.label(f"LS_{i}")
            a(f"v_writelane_b32 v247, s60, {i}")
    def signal(tag, phase, grp_sgpr, member_sgpr):
        u = uid[0]; uid[0] += 1
        a(f"s_lshl_b32 s40, s{grp_sgpr}, 8")
        a(f"s_lshl_b32 s41, s{member_sgpr}, 2")
        a("s_add_u32 s40, s40, s41")
        a(f"s_add_u32 s40, s40, s{S_FLG}")
        a(f"s_add_u32 s40, s40, {phase*4096}")
        a("v_mov_b32 v6, 1")
        a("v_mov_b32 v7, 0")
        vm.wait(a, tag)
        a("s_barrier")
        a("s_cmp_lg_u32 s3, 0")
        a(f"s_cbranch_scc1 LSG_{u}")
        a("s_mov_b64 exec, 1")
        a("buffer_store_dword v6, v7, s[8:11], s40 offen sc1")
        a("s_mov_b64 exec, -1")
        a.label(f"LSG_{u}")
    def poll(phase, grp_sgpr, n, prev_layer=False):
        u = uid[0]; uid[0] += 1
        a("s_cmp_lg_u32 s3, 0")
        a(f"s_cbranch_scc1 LPO_{u}")
        a(f"s_lshl_b32 s40, s{grp_sgpr}, 8")
        a(f"s_add_u32 s40, s40, s{S_FLG}")
        off = phase*4096 - (5*4096 if prev_layer else 0)
        if off >= 0: a(f"s_add_u32 s40, s40, {off}")
        else: a(f"s_sub_u32 s40, s40, {-off}")
        a(f"s_mov_b32 s42, {hex((1 << n) - 1)}")
        a("s_mov_b32 s43, 0")
        a("s_mov_b64 exec, s[42:43]")
        a("s_mov_b32 s41, 0")
        a.label(f"LPL_{u}")
        a(f"buffer_load_dword v6, v{V_L4}, s[8:11], s40 offen sc1")
        a("s_add_u32 s41, s41, 1")
        a("s_waitcnt vmcnt(0)")
        a("v_cmp_ne_u32 vcc, 1, v6")
        a(f"s_cmp_gt_u32 s41, {POLL_LIMIT}")
        a(f"s_cbranch_scc1 LPX_{u}")
        a("s_nop 2")
        a(f"s_cbranch_vccnz LPL_{u}")
        a.label(f"LPX_{u}")
        a("s_mov_b64 exec, -1")
        a.label(f"LPO_{u}")
        a("s_barrier")
    def lds_rd(dst, addr):
        base = [V_L16, V_B1, V_B2][addr >> 16]
        a(f"ds_read_b128 {vr(dst)}, v{base} offset:{addr & 0xffff}")

    kernel_begin(a, name)
    a("s_cmp_ge_u32 s2, 256")
    a("s_cbranch_scc1 LM_end")
    a("s_load_dwordx2 s[4:5], s[0:1], 72")
    a("s_load_dwordx2 s[6:7], s[0:1], 56")
    a(f"""v_lshrrev_b32 v1, 6, v0
    v_and_b32 v{V_LANE}, 63, v0
    v_readfirstlane_b32 s3, v1
    v_and_b32 v{V_T}, 15, v{V_LANE}
    v_lshrrev_b32 v{V_G}, 4, v{V_LANE}
    v_lshlrev_b32 v{V_L16}, 4, v{V_LANE}
    v_lshlrev_b32 v{V_L4}, 2, v{V_LANE}
    v_cmp_gt_u32 vcc, 16, v{V_LANE}
    v_add_u32 v{V_B1}, 0x10000, v{V_L16}
    v_add_u32 v{V_B2}, 0x20000, v{V_L16}
    v_cndmask_b32 v{V_MASK}, 0, -1, vcc
    s_and_b32 s30, s2, 7
    s_lshr_b32 s31, s2, 3
    s_and_b32 s32, s31, 3
    s_lshr_b32 s33, s31, 2
    s_lshr_b32 s{S_QRB}, s30, 1
    s_lshl_b32 s{S_QRB}, s{S_QRB}, 2
    s_add_u32 s{S_QRB}, s{S_QRB}, s32
    s_and_b32 s{S_QCB}, s30, 1
    s_lshl_b32 s{S_QCB}, s{S_QCB}, 3
    s_add_u32 s{S_QCB}, s{S_QCB}, s33
    s_lshl_b32 s{S_HEAD}, s30, 2
    s_add_u32 s{S_HEAD}, s{S_HEAD}, s32
    s_mov_b32 s{S_QB}, s33
    s_mov_b32 s{S_PRB}, s{S_HEAD}
    s_mov_b32 s{S_PCB}, s33
    s_lshr_b32 s{S_GRB}, s30, 2
    s_lshl_b32 s{S_GRB}, s{S_GRB}, 3
    s_and_b32 s34, s31, 7
    s_add_u32 s{S_GRB}, s{S_GRB}, s34
    s_and_b32 s{S_GCB}, s30, 3
    s_lshl_b32 s{S_GCB}, s{S_GCB}, 2
    s_lshr_b32 s34, s31, 3
    s_add_u32 s{S_GCB}, s{S_GCB}, s34
    s_mov_b32 s{S_LOFF}, 0
    s_mov_b32 s{S_LAYER}, 0
    s_mov_b32 s{S_FLG}, {hex(FLG)}""")
    for i in range(4):
        a(f"s_xor_b32 s34, s3, {i}")
        a("s_lshl_b32 s34, s34, 10")
        a(f"v_add_u32 v{VO[i]}, s34, v{V_L16}")
    a(f"v_lshlrev_b32 v{V_ST}, 8, v{V_G}")
    a(f"v_lshl_add_u32 v{V_ST}, v{V_T}, 3, v{V_ST}")
    if STAMP:
        a("v_mov_b32 v246, 0"); a("v_mov_b32 v247, 0")
        a("s_memrealtime s[62:63]")
    a("s_waitcnt lgkmcnt(0)")
    make_srd(a, 8, 4, WS_SIZE)
    make_srd(a, 12, 6, 2048*512*2)
    stamp("start")

    def qkv_w_dma():
        a(f"s_mul_i32 s30, s{S_QCB}, {96*1024}")
        a(f"s_add_u32 s30, s30, {hex(WQKVP)}")
        a("s_mul_i32 s31, s3, 3072")
        a("s_add_u32 s30, s30, s31")
        for c in range(8):
            a("s_mov_b32 m0, s31")
            a("s_add_u32 s31, s31, 12288")
            for i in range(3):
                a(f"buffer_load_dwordx4 v{V_L16}, s[8:11], s30 offen offset:{1024*i} lds")
            a("s_add_u32 s30, s30, 12288")
        vm.add("qw", 24)
    def xtile_addr(dst, base):
        a(f"s_lshl_b32 s{dst}, s{S_PRB}, 2")
        a(f"s_add_u32 s{dst}, s{dst}, s3")
        a(f"s_and_b32 s45, s{dst}, 1")
        a(f"s_lshr_b32 s{dst}, s{dst}, 1")
        a(f"s_lshl_b32 s{dst}, s{dst}, 4")
        a(f"s_lshl_b32 s46, s{S_PCB}, 1")
        a(f"s_add_u32 s{dst}, s{dst}, s46")
        a(f"s_lshl_b32 s{dst}, s{dst}, 1")
        a(f"s_add_u32 s{dst}, s{dst}, s45")
        a(f"s_lshl_b32 s{dst}, s{dst}, 10")
        a(f"s_add_u32 s{dst}, s{dst}, {hex(base)}")
        a(f"s_add_u32 s{dst}, s{dst}, s{S_LOFF}")
    def cs_load(ntile, csbase, cbreg, dst):
        a(f"v_lshlrev_b32 v7, 2, v{V_T}")
        a(f"s_mul_i32 s32, s{cbreg}, {ntile*64}")
        a(f"s_add_u32 s32, s32, {hex(csbase)}")
        for i in range(ntile):
            a(f"buffer_load_dword v{dst+i}, v7, s[8:11], s32 offen offset:{64*i}")
        vm.add("cs", ntile)
    QCS, QCF = 124, 112
    cs_load(6, CSQKV, S_QCB, QCS)
    qkv_w_dma()
    xtile_addr(44, XIN)
    a(f"buffer_load_dwordx4 {vr(RES)}, v{V_L16}, s[8:11], s44 offen")
    a(f"buffer_load_dwordx4 {vr(RES+4)}, v{V_L16}, s[8:11], s44 offen offset:2048")
    a("s_branch LM_q0")

    a.label("LM_layer")
    cs_load(6, CSQKV, S_QCB, QCS)
    poll(4, S_QRB, 16, prev_layer=True)
    a.label("LM_q0")
    vm.reset()
    stamp("qkv polled")
    a(f"s_lshl_b32 s30, s{S_QRB}, 2")
    a("s_add_u32 s30, s30, s3")
    a("s_lshl_b32 s33, s30, 15")
    a(f"s_add_u32 s33, s33, {hex(XIN)}")
    a(f"s_add_u32 s33, s33, s{S_LOFF}")
    def xload(s, tag="x"):
        a(f"buffer_load_dwordx4 {ar(8*s)}, v{V_L16}, s[8:11], s33 offen offset:{2048*(s%2)} sc1")
        a(f"buffer_load_dwordx4 {ar(8*s+4)}, v{V_L16}, s[8:11], s33 offen offset:{2048*(s%2)+1024} sc1")
        if s % 2 == 1: a("s_add_u32 s33, s33, 4096")
        vm.add(f"{tag}{s}", 2)
    def stats_load(base, dst):
        a("s_lshl_b32 s31, s30, 11")
        a(f"s_add_u32 s31, s31, {hex(base)}")
        a(f"s_add_u32 s31, s31, s{S_LOFF}")
        for tt in range(2):
            a(f"buffer_load_dwordx2 {vr(dst+4*tt,2)}, v{V_ST}, s[8:11], s31 offen offset:{1024*tt} sc1")
            a(f"buffer_load_dwordx2 {vr(dst+4*tt+2,2)}, v{V_ST}, s[8:11], s31 offen offset:{1024*tt+128} sc1")
        vm.add("st", 4)
    PX = 8
    for s in range(2): xload(s)
    QST = 132
    stats_load(STA, QST)
    for s in range(2, PX): xload(s)
    def acc(tile, tt): return 16 + (tile*2+tt)*4
    def wf(s, i): return 64 + ((s&1)*6 + i)*4
    NM, RS, NF, RSR = 140, 142, 144, 148
    vm.wait(a, "x0")
    a("s_barrier")
    stamp("qkv start")
    for i in range(6): lds_rd(wf(0,i), i*1024)
    for i in range(6): build_csfrag(a, QCS+i, QCF+2*i, 130, V_MASK)
    for s in range(16):
        vm.wait(a, f"x{s}")
        for i in range(6):
            if s < 15:
                lds_rd(wf(s+1,i), (s+1)*6144 + i*1024)
                a("s_waitcnt lgkmcnt(6)")
            else:
                a(f"s_waitcnt lgkmcnt({5-i})")
            for tt in range(2):
                c = vr(acc(i,tt)) if s else "0"
                if i < 4: a(f"v_mfma_f32_16x16x32_bf16 {vr(acc(i,tt))}, {vr(wf(s,i))}, {ar(8*s+4*tt)}, {c}")
                else: a(f"v_mfma_f32_16x16x32_bf16 {vr(acc(i,tt))}, {ar(8*s+4*tt)}, {vr(wf(s,i))}, {c}")
            if i == 2 and s + PX < 16: xload(s + PX)
        if s == 3:
            stats_finish(a, [QST, QST+4], [156,157,158,159], [NM, NM+1], [RS, RS+1])
            for tt in range(2): build_nmfrag(a, NM+tt, NF+2*tt, 156, V_MASK)
            a("s_lshl_b32 s34, s3, 8")
            a(f"s_add_u32 s34, s34, {SCR}")
            a(f"v_lshl_add_u32 v156, v{V_T}, 2, s34")
            a(f"v_lshl_add_u32 v157, v{V_G}, 4, s34")
            a(f"ds_write_b32 v156, v{RS}")
            a(f"ds_write_b32 v156, v{RS+1} offset:64")
            a("s_waitcnt lgkmcnt(0)")
            a(f"ds_read_b128 {vr(RSR)}, v157")
            a(f"ds_read_b128 {vr(RSR+4)}, v157 offset:64")
            a("s_waitcnt lgkmcnt(0)")
        if s == 8:
            a(f"""v_lshrrev_b32 v160, 1, v{V_G}
            v_lshlrev_b32 v160, 9, v160
            v_and_b32 v163, 1, v{V_G}
            v_lshl_add_u32 v161, v163, 8, v160
            v_lshl_add_u32 v161, v{V_T}, 4, v161
            v_lshrrev_b32 v162, 2, v{V_T}
            v_lshlrev_b32 v162, 3, v162
            v_lshl_add_u32 v162, v163, 2, v162
            v_and_b32 v163, 3, v{V_T}
            v_add_u32 v162, v162, v163
            v_lshl_add_u32 v162, v162, 4, v160""")
            a(f"v_mul_f32 v{NM}, {f32hex(0.25*LOG2E)}, v{RS}")
            a(f"v_mul_f32 v{NM+1}, {f32hex(0.25*LOG2E)}, v{RS+1}")
            a(f"s_lshl_b32 s31, s{S_QCB}, 7")
            a("s_add_u32 s31, s31, s30")
            a("s_lshl_b32 s31, s31, 10")
            a(f"s_add_u32 s31, s31, s{S_LOFF}")
    order = (2, 3, 4, 5, 0, 1)
    for i in order:
        for tt in range(2):
            if i < 4: a(f"v_mfma_f32_16x16x16_bf16 {vr(acc(i,tt))}, {vr(QCF+2*i,2)}, {vr(NF+2*tt,2)}, {vr(acc(i,tt))}")
            else: a(f"v_mfma_f32_16x16x16_bf16 {vr(acc(i,tt))}, {vr(NF+2*tt,2)}, {vr(QCF+2*i,2)}, {vr(acc(i,tt))}")
    stamp("qkv mfma done")
    for k, tile in enumerate(order):
        which, hh = tile >> 1, tile & 1
        base = [QF, KF, VF][which] + hh*65536
        a(f"s_add_u32 s32, s31, {hex(base)}")
        if k >= 4: a("s_nop 3")
        for tt in range(2):
            b = acc(tile, tt)
            for r in range(4):
                sc = (NM+tt) if which == 0 else (RS+tt) if which == 1 else (RSR+4*tt+r)
                a(f"v_mul_f32 v{b+r}, v{sc}, v{b+r}")
        d = 64 + tile*4
        for tt in range(2):
            b = acc(tile, tt)
            a(f"v_cvt_pk_bf16_f32 v{d+2*tt}, v{b}, v{b+1}")
            a(f"v_cvt_pk_bf16_f32 v{d+2*tt+1}, v{b+2}, v{b+3}")
        if which < 2:
            a("s_nop 1")
            a(f"v_permlane16_swap_b32 v{d}, v{d+2}")
            a(f"v_permlane16_swap_b32 v{d+1}, v{d+3}")
            a(f"buffer_store_dwordx4 {vr(d)}, v{161+which}, s[8:11], s32 offen sc1")
            vm.add("o", 1)
        else:
            a(f"buffer_store_dwordx4 {vr(d)}, v{V_L16}, s[8:11], s32 offen sc1")
            vm.add("o", 1)
    signal("o", 0, S_QCB, S_QRB)
    stamp("qkv signaled")

    S = lambda u: 72 + 16*(u & 3)
    C = lambda u: 136 + 16*(u & 1)
    O = lambda u: 168 + 16*(u & 1)
    Q = lambda u: 16 + 4*(u & 1)
    KFR = lambda t: 24 + 4*(t & 3)
    V0 = lambda t: 40 + 8*(t & 3)
    V1 = lambda t: 44 + 8*(t & 3)
    IDX, KA, VA0, VA1 = 200, 201, 202, 203
    VB = 65536; VST = 1056
    a(f"""v_and_b32 v24, 31, v{V_LANE}
    v_lshrrev_b32 v25, 1, v24
    s_lshl_b32 s30, s3, 4
    v_add_u32 v25, s30, v25
    v_mul_u32_u24 v25, {VST}, v25
    v_and_b32 v28, 1, v{V_LANE}
    v_lshl_add_u32 v25, v28, 4, v25
    v_add_u32 v25, {VB+1024}, v25
    v_mul_u32_u24 v28, 0x3f80, v28
    v_lshl_or_b32 v28, v28, 16, v28
    v_mov_b32 v29, v28
    v_mov_b32 v30, v28
    v_mov_b32 v31, v28
    ds_write_b128 v25, v[28:31]""")
    a(f"""v_lshrrev_b32 v32, 5, v{V_LANE}
    v_lshlrev_b32 v33, 8, v32
    v_lshl_add_u32 v33, v24, 4, v33
    v_add_u32 v33, {VB}, v33
    v_and_b32 v34, 27, v24
    v_cmp_eq_u32 vcc, 16, v34
    v_mov_b32 v34, {VB+1024}
    v_mov_b32 v35, {VB+1040}
    v_cndmask_b32 v34, v34, v35, vcc
    v_cmp_gt_u32 vcc, 16, v24
    v_subrev_u32 v35, 0x200, v34
    s_nop 0
    v_cndmask_b32 v204, v34, v33, vcc
    v_cndmask_b32 v205, v35, v33, vcc
    v_mov_b32 v{IDX}, 0xdddddddd
    s_lshr_b32 s35, s{S_HEAD}, 1""")
    for i in range(16):
        a(f"v_mov_b32 v{O(0)+i}, 0")
        a(f"v_mov_b32 v{O(1)+i}, 0")
        a(f"v_mov_b32 v{S(3)+i}, 0")
    a(f"""s_lshl_b32 s30, s{S_HEAD}, 16
    s_add_u32 s30, s30, s{S_LOFF}
    s_lshl_b32 s31, s{S_QB}, 3
    s_lshl_b32 s32, s3, 1
    s_add_u32 s31, s31, s32
    s_lshl_b32 s31, s31, 10
    s_add_u32 s31, s31, s30""")
    a(f"s_add_u32 s31, s31, {hex(QF)}")
    a("s_lshl_b32 s32, s3, 10")
    a(f"s_mul_i32 s33, s3, {VST}")
    a(f"s_add_u32 s33, s33, {VB}")
    a("s_add_u32 s36, s30, s32")
    a(f"s_add_u32 s37, s36, {hex(VF)}")
    a(f"s_add_u32 s36, s36, {hex(KF)}")
    a(f"""s_lshl_b32 s56, s{S_PCB}, 4
    s_lshl_b32 s57, s3, 2
    s_add_u32 s56, s56, s57
    s_lshl_b32 s56, s56, 12""")
    a(f"s_add_u32 s56, s56, {hex(WOP)}")
    a(f"s_mul_i32 s54, s{S_PCB}, 56")
    a("s_mul_i32 s55, s3, 14")
    a("s_add_u32 s54, s54, s55")
    a("s_lshl_b32 s54, s54, 12")
    a(f"s_add_u32 s54, s54, {hex(WDP)}")
    a(f"s_mul_i32 s50, s{S_GCB}, {224*1024}")
    a(f"s_add_u32 s50, s50, {hex(WGUP)}")
    a("s_lshl_b32 s51, s3, 13")
    a("s_add_u32 s50, s50, s51")
    for k in range(16):
        s_, ct = divmod(k, 4)
        a(f"buffer_load_dwordx4 {ar(16*s_+4*ct)}, v{V_L16}, s[8:11], s56 offen offset:{1024*ct}")
        if ct == 3: a("s_add_u32 s56, s56, 4096")
    vm.add("wo", 16)
    poll(0, 35, 16)
    stamp("attn polled")
    def kv_round(r):
        a("s_mov_b32 m0, s32")
        a("s_add_u32 s32, s32, 4096")
        a(f"buffer_load_dwordx4 v{V_L16}, s[8:11], s36 offen sc1 lds")
        a("s_mov_b32 m0, s33")
        a(f"s_add_u32 s33, s33, {4*VST}")
        a(f"buffer_load_dwordx4 v{V_L16}, s[8:11], s37 offen sc1 lds")
        a("s_add_u32 s36, s36, 4096")
        a("s_add_u32 s37, s37, 4096")
        vm.add(f"kv{r}", 2)
    a(f"buffer_load_dwordx4 {vr(Q(0))}, v{V_L16}, s[8:11], s31 offen sc1")
    a(f"buffer_load_dwordx4 {vr(Q(1))}, v{V_L16}, s[8:11], s31 offen offset:1024 sc1")
    vm.add("q", 2)
    for r in range(3): kv_round(r)
    CH = 32768; NSLOT = 5
    SLOT = [65536, 98304, 131072, 0, 32768]
    def gu_dma(c):
        sl = SLOT[c % NSLOT]
        a(f"s_add_u32 s52, s51, {sl}")
        a("s_mov_b32 m0, s52")
        a("s_add_u32 s53, s50, 4096")
        for i in range(4): a(f"buffer_load_dwordx4 v{V_L16}, s[8:11], s50 offen offset:{1024*i} lds")
        a(f"s_add_u32 s52, s51, {sl+4096}")
        a("s_mov_b32 m0, s52")
        a(f"s_add_u32 s50, s50, {CH}")
        for i in range(4): a(f"buffer_load_dwordx4 v{V_L16}, s[8:11], s53 offen offset:{1024*i} lds")
        vm.add(f"gw{c}", 8)
    def WDR(k):
        if k < 32: return ('a', 128 + 4*k)
        if k < 40: return ('v', 212 + 4*(k-32))
        return ('v', 128 + 4*(k-40))
    def wd_load(k):
        a(f"buffer_load_dwordx4 {R(WDR(k))}, v{V_L16}, s[8:11], s54 offen offset:{1024*(k%4)}")
        if k % 4 == 3: a("s_add_u32 s54, s54, 4096")
        vm.add("wd", 1)
    a("s_mov_b32 s39, 0")
    vm.wait(a, "kv0")
    a("s_waitcnt lgkmcnt(0)")
    a("s_barrier")
    stamp("attn data")
    a(f"ds_read_b128 {vr(KFR(0))}, v{V_L16}")
    a("s_waitcnt lgkmcnt(0)")
    for q in range(2):
        a(f"v_mfma_f32_32x32x16_bf16 {vr(S(q),16)}, {vr(KFR(0))}, {vr(Q(q))}, 0")
    a("s_nop 12")
    for q in range(2):
        m = 206 + q
        if q: a("s_nop 3")
        a(f"v_max3_f32 v{m}, v{S(q)}, v{S(q)+1}, v{S(q)+2}")
        for i in range(3, 15, 2):
            a(f"v_max3_f32 v{m}, v{m}, v{S(q)+i}, v{S(q)+i+1}")
        a(f"v_max_f32 v{m}, v{m}, v{S(q)+15}")
    a.label("LA_restart")
    a("""v_mov_b32 v208, v206
    v_mov_b32 v209, v207
    s_nop 1
    v_permlane32_swap_b32 v206, v208
    v_permlane32_swap_b32 v207, v209
    s_nop 1
    v_max_f32 v206, v206, v208
    v_max_f32 v207, v207, v209""")
    a(f"v_mov_b32 v{KA}, v{V_L16}")
    a(f"v_mov_b32 v{VA0}, v204")
    a(f"v_mov_b32 v{VA1}, v205")
    for t in range(2):
        a(f"ds_read_b128 {vr(KFR(t))}, v{KA} offset:{1024*t}")
    a(f"ds_read_b128 {vr(V0(0))}, v{VA0}")
    a(f"ds_read_b128 {vr(V1(0))}, v{VA1} offset:512")
    a(f"ds_read_b128 {vr(V1(3))}, v{VA1} offset:512")
    for i in range(16): a(f"v_sub_f32 v{C(0)+i}, 0, v206")
    a("s_waitcnt lgkmcnt(0)")
    a("s_nop 0")
    a(f"v_mfma_f32_32x32x16_bf16 {vr(S(0),16)}, {vr(KFR(0))}, {vr(Q(0))}, {vr(C(0),16)}")
    for i in range(16): a(f"v_sub_f32 v{C(1)+i}, 0, v207")
    a("s_nop 1")
    a(f"v_mfma_f32_32x32x16_bf16 {vr(S(1),16)}, {vr(KFR(0))}, {vr(Q(1))}, {vr(C(1),16)}")
    def attn_body(mode):
        for u in range(16):
            t = u >> 1
            def ex(lo, hi):
                for i in range(lo, hi): a(f"v_exp_f32 v{S(u)+i}, v{S(u)+i}")
            ex(0, 4)
            a(f"v_smfmac_f32_32x32x32_bf16 {vr(O(u-1),16)}, {vr(V1((u-1)>>1))}, {vr(S(u-1)+8,8)}, v{IDX}")
            if u % 2 == 0:
                if mode == 1 and u == 2:
                    vm.wait(a, "kv2")
                    a("s_barrier")
                a("s_waitcnt lgkmcnt(0)")
                a(f"ds_read_b128 {vr(KFR(t+2))}, v{KA} offset:{1024*(t+2)}")
                a(f"ds_read_b128 {vr(V0(t+1))}, v{VA0} offset:{VST*(t+1)}")
                a(f"ds_read_b128 {vr(V1(t+1))}, v{VA1} offset:{VST*(t+1)+512}")
            ex(4, 10)
            a(f"v_mfma_f32_32x32x16_bf16 {vr(S(u+2),16)}, {vr(KFR((u+2)>>1))}, {vr(Q(u))}, {vr(C(u),16)}")
            if mode == 1 and u < 13: kv_round(3 + u)
            ex(10, 14)
            a(f"v_smfmac_f32_32x32x32_bf16 {vr(O(u),16)}, {vr(V0(t))}, {vr(S(u),8)}, v{IDX}")
            ex(14, 16)
        a(f"v_add_u32 v{KA}, 0x2000, v{KA}")
        a(f"v_add_u32 v{VA0}, {8*VST}, v{VA0}")
        a(f"v_add_u32 v{VA1}, {8*VST}, v{VA1}")
    a("s_mov_b32 s38, 8")
    a("s_cmp_lg_u32 s39, 0")
    a("s_cbranch_scc1 LA_loop")
    attn_body(1)
    vm.wait(a, "kv15")
    a("s_barrier")
    a("s_mov_b32 s38, 7")
    a.label("LA_loop")
    attn_body(0)
    a("s_sub_u32 s38, s38, 1")
    a("s_cmp_lg_u32 s38, 0")
    a("s_cbranch_scc1 LA_loop")
    a(f"v_smfmac_f32_32x32x32_bf16 {vr(O(1),16)}, {vr(V1(3))}, {vr(S(3)+8,8)}, v{IDX}")
    a(f"""v_and_b32 v24, 31, v{V_LANE}
    v_lshrrev_b32 v25, 4, v24
    v_lshlrev_b32 v25, 10, v25
    v_lshrrev_b32 v26, 5, v{V_LANE}
    v_lshl_add_u32 v25, v26, 8, v25
    v_lshl_add_u32 v25, v{V_T}, 4, v25
    s_lshl_b32 s30, s{S_QB}, 2
    s_add_u32 s30, s30, s3
    s_lshl_b32 s30, s30, 4
    s_lshr_b32 s31, s{S_HEAD}, 1
    s_add_u32 s30, s30, s31
    s_lshl_b32 s30, s30, 12
    s_and_b32 s31, s{S_HEAD}, 1
    s_lshl_b32 s31, s31, 9
    s_add_u32 s30, s30, s31
    s_add_u32 s30, s30, s{S_LOFF}""")
    a(f"s_add_u32 s30, s30, {hex(OF)}")
    a("s_waitcnt lgkmcnt(0)")
    stamp("attn loop done")
    a("s_cmp_lg_u32 s39, 0")
    a("s_cbranch_scc1 LA_fin")
    a("v_mov_b32 v208, 0x4e800000")
    a(f"v_max_f32 v209, v{O(0)+8}, v{O(1)+8}")
    a(f"v_add_f32 v210, v{O(0)+8}, v{O(1)+8}")
    a("v_cmp_nlt_f32 vcc, v209, v208")
    a("v_cmp_u_f32 s[40:41], v210, v210")
    a("s_nop 3")
    a("s_or_b64 vcc, vcc, s[40:41]")
    a("s_cbranch_vccz LA_fin")
    a("s_mov_b32 s39, 1")
    a("v_mov_b32 v206, 0xff800000")
    a("v_mov_b32 v207, 0xff800000")
    a(f"v_mov_b32 v{KA}, v{V_L16}")
    a("s_mov_b32 s38, 64")
    a.label("LA_maxloop")
    a(f"ds_read_b128 {vr(KFR(0))}, v{KA}")
    a("s_waitcnt lgkmcnt(0)")
    for q in range(2):
        a(f"v_mfma_f32_32x32x16_bf16 {vr(S(q),16)}, {vr(KFR(0))}, {vr(Q(q))}, 0")
    a("s_nop 15")
    a("s_nop 3")
    for q in range(2):
        for i in range(0, 16, 2):
            a(f"v_max3_f32 v{206+q}, v{206+q}, v{S(q)+i}, v{S(q)+i+1}")
    a(f"v_add_u32 v{KA}, 0x400, v{KA}")
    a("s_sub_u32 s38, s38, 1")
    a("s_cmp_lg_u32 s38, 0")
    a("s_cbranch_scc1 LA_maxloop")
    for i in range(16):
        a(f"v_mov_b32 v{O(0)+i}, 0")
        a(f"v_mov_b32 v{O(1)+i}, 0")
        a(f"v_mov_b32 v{S(3)+i}, 0")
    a("s_branch LA_restart")
    a.label("LA_fin")
    a(f"v_rcp_f32 v206, v{O(0)+8}")
    a(f"v_rcp_f32 v207, v{O(1)+8}")
    a("s_nop 0")
    for q in range(2):
        for i in range(8): a(f"v_mul_f32 v{O(q)+i}, v{206+q}, v{O(q)+i}")
        for i in range(4): a(f"v_cvt_pk_bf16_f32 v{28+4*q+i}, v{O(q)+2*i}, v{O(q)+2*i+1}")
        a(f"buffer_store_dwordx4 {vr(28+4*q)}, v25, s[8:11], s30 offen offset:{2048*q} sc1")
    vm.add("o", 2)
    signal("o", 1, S_QB, S_HEAD)
    stamp("attn signaled")

    for c in (0, 1, 2): gu_dma(c)
    def pacc(ct, i, base): return base + (i*4 + ct)*4
    a(f"""s_lshr_b32 s35, s{S_PRB}, 2
    s_lshl_b32 s30, s{S_PRB}, 4
    s_lshl_b32 s31, s3, 2
    s_add_u32 s30, s30, s31
    s_lshl_b32 s30, s30, 12
    s_add_u32 s30, s30, s{S_LOFF}""")
    a(f"s_add_u32 s30, s30, {hex(OF)}")
    poll(1, 35, 32)
    stamp("wo polled")
    for s in range(4):
        for i in range(4):
            a(f"buffer_load_dwordx4 {vr(16+16*s+4*i)}, v{VO[i]}, s[8:11], s30 offen sc1")
        a("s_add_u32 s30, s30, 4096")
        vm.add(f"of{s}", 4)
    def red_setup(red):
        for i in range(1, 4):
            a(f"s_xor_b32 s34, s3, {i}")
            a("s_mul_i32 s34, s34, 12288")
            a(f"s_add_u32 s34, s34, {red + (i-1)*4096}")
            a(f"v_add_u32 v{207+i}, s34, v{V_L16}")
        a("s_mul_i32 s34, s3, 12288")
        a(f"s_add_u32 s34, s34, {red}")
        a(f"v_add_u32 v211, s34, v{V_L16}")
    red_setup(RED_WO)
    for s in range(4):
        vm.wait(a, f"of{s}")
        for i in (1, 2, 3, 0):
            for ct in range(4):
                c = vr(pacc(ct,i,80)) if s else "0"
                a(f"v_mfma_f32_16x16x32_bf16 {vr(pacc(ct,i,80))}, {ar(16*s+4*ct)}, {vr(16+16*s+4*i)}, {c}")
    def reduce_and_residual(accbase, rdbase, scale_reg):
        for i in range(1, 4):
            if i == 3: a("s_nop 3")
            for ct in range(4):
                a(f"ds_write_b128 v{207+i}, {vr(pacc(ct,i,accbase))} offset:{ct*1024}")
        X = rdbase + 48
        for i in range(8):
            a(f"v_lshlrev_b32 v{X+2*i}, 16, v{RES+i}")
            a(f"v_and_b32 v{X+2*i+1}, 0xffff0000, v{RES+i}")
        a("s_waitcnt lgkmcnt(0)")
        a("s_barrier")
        for j in range(3):
            for ct in range(4):
                a(f"ds_read_b128 {vr(rdbase + (j*4+ct)*4)}, v211 offset:{j*4096 + ct*1024}")
        A0 = accbase
        a("s_waitcnt lgkmcnt(8)")
        for i in range(16): a(f"v_add_f32 v{A0+i}, v{A0+i}, v{rdbase+i}")
        a("s_waitcnt lgkmcnt(0)")
        for i in range(16): a(f"v_add_f32 v{rdbase+16+i}, v{rdbase+16+i}, v{rdbase+32+i}")
        for i in range(16): a(f"v_add_f32 v{A0+i}, v{A0+i}, v{rdbase+16+i}")
        for i in range(16):
            if scale_reg is not None: a(f"v_fma_f32 v{A0+i}, v{A0+i}, v{scale_reg}, v{X+i}")
            else: a(f"v_add_f32 v{A0+i}, v{A0+i}, v{X+i}")
            if i % 2 == 1: a(f"v_cvt_pk_bf16_f32 v{RES+i//2}, v{A0+i-1}, v{A0+i}")
    def out_addrs(xbase, stbase, extra_off):
        xtile_addr(44, xbase + extra_off)
        a(f"""s_lshl_b32 s47, s{S_PRB}, 2
        s_add_u32 s47, s47, s3
        s_lshl_b32 s47, s47, 10
        s_lshl_b32 s31, s{S_PCB}, 7
        s_add_u32 s47, s47, s31
        s_add_u32 s47, s47, s{S_LOFF}""")
        a(f"s_add_u32 s47, s47, {hex(stbase + extra_off)}")
        a(f"s_lshr_b32 s35, s{S_PRB}, 1")
        a(f"s_and_b32 s36, s{S_PRB}, 1")
        a("s_lshl_b32 s36, s36, 3")
        a(f"s_add_u32 s36, s36, s{S_PCB}")
    def store_x_and_stats():
        a(f"buffer_store_dwordx4 {vr(RES)}, v{V_L16}, s[8:11], s44 offen sc1")
        a(f"buffer_store_dwordx4 {vr(RES+4)}, v{V_L16}, s[8:11], s44 offen offset:2048 sc1")
        a("v_mov_b32 v206, 0x3f803f80")
        a("v_mov_b32 v202, 0")
        a("v_mov_b32 v203, 0")
        for i in range(8):
            a(f"v_dot2_f32_bf16 v202, v{RES+i}, v206, v202")
            a(f"v_dot2_f32_bf16 v203, v{RES+i}, v{RES+i}, v203")
        a("s_nop 3")
        reduce_g_multi(a, [202, 203], [204, 205])
        a("s_mov_b64 exec, 0xffff")
        a(f"buffer_store_dwordx2 v[202:203], v{V_ST}, s[8:11], s47 offen sc1")
        a("s_mov_b64 exec, -1")
        vm.add("o", 3)
    out_addrs(X1F, STB, 0)
    stamp("wo mfma done")
    reduce_and_residual(80, 144, None)
    store_x_and_stats()
    signal("o", 2, 35, 36)
    stamp("wo signaled")

    gu_dma(3); gu_dma(4)
    GCS, GCF = 188, 160
    cs_load(14, CSGU, S_GCB, GCS)
    a(f"s_lshl_b32 s30, s{S_GRB}, 2")
    a("s_add_u32 s30, s30, s3")
    a("s_lshl_b32 s33, s30, 15")
    a(f"s_add_u32 s33, s33, {hex(X1F)}")
    a(f"s_add_u32 s33, s33, s{S_LOFF}")
    a(f"""s_lshr_b32 s34, s30, 1
    s_lshl_b32 s34, s34, 4
    s_add_u32 s34, s34, s{S_GCB}
    s_mul_i32 s34, s34, 14
    s_and_b32 s35, s30, 1
    s_add_u32 s36, s34, s35
    s_add_u32 s35, s36, s35
    s_lshl_b32 s35, s35, 10
    s_lshl_b32 s36, s36, 10
    s_add_u32 s35, s35, s{S_LOFF}
    s_add_u32 s36, s36, s{S_LOFF}""")
    a(f"s_add_u32 s35, s35, {hex(HF)}")
    a(f"s_add_u32 s36, s36, {hex(HF + 12288)}")
    vm.wait(a, "cs")
    for i in range(14): build_csfrag(a, GCS+i, GCF+2*i, 202, V_MASK)
    poll(2, S_GRB, 16)
    stamp("gu polled")
    GST = 188
    for s in range(2): xload(s)
    stats_load(STB, GST)
    for s in range(2, PX): xload(s)
    NM, RS, NF = 196, 198, 200
    RING = 8; AHEAD = 6
    def gwf(n): return 128 + (n % RING)*4
    def rd(n): lds_rd(gwf(n), SLOT[(n // 32) % NSLOT] + (n % 32)*1024)
    TOT = 224
    def nmap(n):
        if n < 128: return divmod(n, 8)
        s_, t6 = divmod(n - 128, 6)
        return s_, 8 + t6
    def epi_pair(i, tt):
        G, U = acc(2*i, tt), acc(2*i+1, tt)
        L = [f"v_max_f32 v{G+r}, 0, v{G+r}" for r in range(4)] + [f"v_mul_f32 v{G+r}, v{G+r}, v{U+r}" for r in range(4)]
        if i < 6: d = U if i % 2 == 0 else acc(2*(i-1)+1, tt) + 2
        else: d = acc(13, 0) + 2*tt if tt == 0 else None
        if i == 6:
            d = 204 + 2*tt
        L += [f"v_cvt_pk_bf16_f32 v{d}, v{G}, v{G+1}", f"v_cvt_pk_bf16_f32 v{d+1}, v{G+2}, v{G+3}"]
        if i < 6 and i % 2 == 1:
            L.append(("ST", f"buffer_store_dwordx4 {vr(d-2)}, v{V_L16}, s[8:11], s35 offen offset:{1024*tt} sc1"))
            if tt == 1: L.append("s_add_u32 s35, s35, 4096")
        if i == 6 and tt == 1:
            L.append(("ST", f"buffer_store_dwordx4 v[204:207], v{V_L16}, s[8:11], s36 offen sc1"))
        return L
    def emit(x):
        if isinstance(x, tuple): a(x[1]); vm.add("o", 1)
        else: a(x)
    epiA = []
    for i in range(4):
        for tt in range(2): epiA += epi_pair(i, tt)
    stamp("gu start")
    for n in range(AHEAD): rd(n)
    wdk = 0
    for n in range(TOT):
        s, i = nmap(n)
        if n < 128 and i == 0: vm.wait(a, f"x{s}")
        m = n + AHEAD
        if m < TOT:
            if m % 32 == 0:
                c = m // 32
                if c in (2, 3):
                    a("s_barrier"); gu_dma(c+3)
                if c in (5, 6):
                    vm.wait(a, f"gw{c}"); a("s_barrier")
            rd(m)
            a(f"s_waitcnt lgkmcnt({AHEAD})")
        else:
            a(f"s_waitcnt lgkmcnt({TOT-1-n})")
        for tt in range(2):
            c = vr(acc(i,tt)) if s else "0"
            a(f"v_mfma_f32_16x16x32_bf16 {vr(acc(i,tt))}, {vr(gwf(n))}, {ar(8*s+4*tt)}, {c}")
        if n < 128 and i == 3 and s + PX < 16: xload(s + PX)
        if n == 40:
            stats_finish(a, [GST, GST+4], [204,205,206,207], [NM, NM+1], [RS, RS+1])
            for tt in range(2): build_nmfrag(a, NM+tt, NF+2*tt, 204, V_MASK)
        if n == 127:
            for i2 in range(8):
                for tt in range(2):
                    a(f"v_mfma_f32_16x16x16_bf16 {vr(acc(i2,tt))}, {vr(GCF+2*i2,2)}, {vr(NF+2*tt,2)}, {vr(acc(i2,tt))}")
        if n >= 132:
            for _ in range(2):
                if epiA: emit(epiA.pop(0))
        if n >= 100 and n % 3 == 0 and wdk < 40:
            wd_load(wdk); wdk += 1
    assert not epiA and wdk == 40, (len(epiA), wdk)
    for i in range(8, 14):
        for tt in range(2):
            a(f"v_mfma_f32_16x16x16_bf16 {vr(acc(i,tt))}, {vr(GCF+2*i,2)}, {vr(NF+2*tt,2)}, {vr(acc(i,tt))}")
    stamp("gu mfma done")
    for i in range(4, 7):
        for tt in range(2):
            for x in epi_pair(i, tt): emit(x)
    signal("o", 3, S_GRB, S_GCB)
    stamp("gu signaled")

    for k in range(40, 56): wd_load(k)
    a(f"""s_lshr_b32 s35, s{S_PRB}, 1
    s_lshl_b32 s49, s{S_PRB}, 2
    s_add_u32 s49, s49, s3
    s_lshl_b32 s49, s49, 10
    s_add_u32 s49, s49, s{S_LOFF}""")
    a(f"s_add_u32 s49, s49, {hex(STB)}")
    a(f"""s_mul_i32 s48, s{S_PRB}, 56
    s_mul_i32 s34, s3, 14
    s_add_u32 s48, s48, s34
    s_lshl_b32 s48, s48, 12
    s_add_u32 s48, s48, s{S_LOFF}""")
    a(f"s_add_u32 s48, s48, {hex(HF)}")
    red_setup(RED_DN)
    VH = [200, 201, 202, 203]
    for i in range(4):
        a(f"s_xor_b32 s34, s3, {i}")
        a("s_lshr_b32 s37, s34, 1")
        a("s_lshl_b32 s37, s37, 10")
        a("s_and_b32 s34, s34, 1")
        a("s_lshl_b32 s34, s34, 3")
        a("s_add_u32 s34, s34, s37")
        a(f"v_add_u32 v{VH[i]}, s34, v{V_L16}")
    poll(3, 35, 16)
    stamp("down polled")
    HD = 8
    def hload(s):
        half = (s % 4 == 3)
        for i in range(4):
            if half: a(f"buffer_load_dwordx2 {ar(16*(s%HD)+4*i,2)}, v{VH[i]}, s[8:11], s48 offen sc1")
            else: a(f"buffer_load_dwordx4 {ar(16*(s%HD)+4*i)}, v{VO[i]}, s[8:11], s48 offen sc1")
        a(f"s_add_u32 s48, s48, {2048 if half else 4096}")
        vm.add(f"h{s}", 4)
    HP = 6
    hload(0)
    a(f"buffer_load_dwordx2 v[192:193], v{V_ST}, s[8:11], s49 offen sc1")
    a(f"buffer_load_dwordx2 v[194:195], v{V_ST}, s[8:11], s49 offen offset:128 sc1")
    vm.add("st", 2)
    for s in range(1, HP): hload(s)
    for s in range(16):
        vm.wait(a, f"h{s}")
        cbl, p = divmod(s, 4)
        for i in (1, 2, 3, 0):
            for ct in range(4):
                c = vr(pacc(ct,i,16)) if s else "0"
                if p < 3:
                    a(f"v_mfma_f32_16x16x32_bf16 {vr(pacc(ct,i,16))}, {R(WDR(cbl*14+p*4+ct))}, {ar(16*(s%HD)+4*i)}, {c}")
                else:
                    w_ = WDR(cbl*14 + 12 + (ct >> 1))
                    a(f"v_mfma_f32_16x16x16_bf16 {vr(pacc(ct,i,16))}, {R((w_[0], w_[1]+2*(ct&1)),2)}, {ar(16*(s%HD)+4*i,2)}, {c}")
            if i == 1 and s + HP < 16: hload(s + HP)
        if s == 2:
            stats_finish(a, [192], [196, 197], [198], [199])
            a("v_mul_f32 v199, v199, v199")
            out_addrs(XIN, STA, LSTRIDE)
    stamp("down mfma done")
    reduce_and_residual(16, 80, 199)
    a(f"s_cmp_lg_u32 s{S_LAYER}, 0")
    a("s_cbranch_scc1 LM_final")
    store_x_and_stats()
    signal("o", 4, 35, 36)
    stamp("down signaled")
    qkv_w_dma()
    a(f"s_mov_b32 s{S_LAYER}, 1")
    a(f"s_mov_b32 s{S_LOFF}, {hex(LSTRIDE)}")
    a(f"s_mov_b32 s{S_FLG}, {hex(FLG + 5*4096)}")
    a("s_branch LM_layer")
    a.label("LM_final")
    a(f"""v_lshlrev_b32 v6, 10, v{V_T}
    v_lshl_add_u32 v6, v{V_G}, 3, v6
    s_lshl_b32 s30, s{S_PRB}, 2
    s_add_u32 s30, s30, s3
    s_lshl_b32 s30, s30, 14
    s_lshl_b32 s31, s{S_PCB}, 7
    s_add_u32 s30, s30, s31""")
    for ct in range(4):
        a(f"buffer_store_dwordx2 {vr(RES+2*ct,2)}, v6, s[12:15], s30 offen offset:{32*ct}")
    if STAMP:
        a("s_waitcnt vmcnt(0)")
        stamp("end")
        a("s_memrealtime s[64:65]")
        a("s_waitcnt lgkmcnt(0)")
        a("v_writelane_b32 v246, s62, 62")
        a("v_writelane_b32 v246, s64, 63")
        a("s_lshl_b32 s30, s2, 2")
        a("s_add_u32 s30, s30, s3")
        a("s_lshl_b32 s30, s30, 9")
        a(f"s_add_u32 s30, s30, {hex(DBGR)}")
        a(f"buffer_store_dword v246, v{V_L4}, s[8:11], s30 offen")
        a(f"buffer_store_dword v247, v{V_L4}, s[8:11], s30 offen offset:256")
    a.label("LM_end")
    a("s_endpgm")
    return kernel_desc(name, 512, 256)

def main(out_path):
    a = Asm()
    hdr = open("cdna_kernels/" + NAME + ".s.ref").read().split("; Override launch")[0]
    launches = [("prep_kernel", PREP_NWG, 256, 65536), ("main_kernel", 256, 256, 163840)]
    out = hdr
    for k, g, b, l in launches:
        out += f"; @launch kernel={k} grid=({g},1,1) block=({b},1,1) lds={l}\n"
    out += '.amdgcn_target "amdgcn-amd-amdhsa--gfx950"\n.text\n'
    descs = [gen_prep(a), gen_main(a)]
    out += a.text()
    out += '.section .rodata,"a"\n' + "".join(descs)
    open(out_path, "w").write(out)
    if STAMP: open(out_path + ".stamps", "w").write("\n".join(STAMP_NAMES))

if __name__ == "__main__":
    main(sys.argv[1] if len(sys.argv) > 1 else "cdna_kernels/" + NAME + ".s")
```

```python
import sys, os, struct

NAME = "interleave_layers__softmax_full_mha__glu_gated_reglu__prompt"
MB = 1 << 20
WQKVP = 0 * MB
WOP   = 2 * MB
WGUP  = 3 * MB
WDP   = 7 * MB
CSQKV = 9 * MB
CSGU  = 9 * MB + 0x4000
FLG   = 9 * MB + 0x10000
DBGR  = 9 * MB + 0x40000
ACT0  = 10 * MB
LSTRIDE = 20 * MB
XIN, QF, KF, VF, OF, X1F, HF = [ACT0 + i*MB for i in (0, 2, 4, 6, 8, 10, 12)]
STA = ACT0 + 19*MB + 0x80000
STB = ACT0 + 19*MB + 0xC0000
WS_SIZE = ACT0 + 2*LSTRIDE + 4*MB
LOG2E = 1.4426950408889634
STAMP = int(os.environ.get("STAMP", "0"))
POLL_LIMIT = 100000

def f32hex(x): return "0x%08x" % struct.unpack("<I", struct.pack("<f", x))[0]

class Asm:
    def __init__(self): self.lines = []
    def __call__(self, s):
        for l in s.split("\n"):
            l = l.strip()
            if l: self.lines.append("    " + l)
    def label(self, l): self.lines.append(l + ":")
    def raw(self, s): self.lines.append(s)
    def text(self): return "\n".join(self.lines) + "\n"

class VM:
    def __init__(self): self.seq = []
    def add(self, tag, n=1): self.seq += [tag]*n
    def wait(self, a, tag):
        idxs = [i for i, t in enumerate(self.seq) if t == tag]
        if not idxs: return
        idx = idxs[-1]
        n = len(self.seq) - 1 - idx
        a(f"s_waitcnt vmcnt({min(n, 63)})")
        self.seq = self.seq[idx+1:]
    def reset(self): self.seq = []

def vr(b, n=4): return f"v[{b}:{b+n-1}]"
def ar(b, n=4): return f"a[{b}:{b+n-1}]"
def R(x, n=4):
    return f"{x[0]}[{x[1]}:{x[1]+n-1}]"

def kernel_begin(a, name):
    a.raw(f".globl {name}"); a.raw(".p2align 8"); a.raw(f".type {name},@function"); a.label(name)

def kernel_desc(name, nvgpr, accum, nsgpr=100):
    return f""".p2align 6
.amdhsa_kernel {name}
  .amdhsa_next_free_vgpr {nvgpr}
  .amdhsa_next_free_sgpr {nsgpr}
  .amdhsa_accum_offset {accum}
  .amdhsa_group_segment_fixed_size 0
  .amdhsa_kernarg_size 80
  .amdhsa_user_sgpr_count 2
  .amdhsa_user_sgpr_kernarg_segment_ptr 1
  .amdhsa_system_sgpr_workgroup_id_x 1
.end_amdhsa_kernel
"""

def make_srd(a, d, src, size):
    a(f"s_mov_b32 s{d}, s{src}"); a(f"s_mov_b32 s{d+1}, s{src+1}")
    a(f"s_mov_b32 s{d+2}, {hex(size)}"); a(f"s_mov_b32 s{d+3}, 0x00020000")

def reduce_g_multi(a, xs, ts):
    for x, t in zip(xs, ts): a(f"v_mov_b32 v{t}, v{x}")
    a("s_nop 1")
    for x, t in zip(xs, ts): a(f"v_permlane32_swap_b32 v{x}, v{t}")
    a("s_nop 1")
    for x, t in zip(xs, ts): a(f"v_add_f32 v{x}, v{x}, v{t}")
    for x, t in zip(xs, ts): a(f"v_mov_b32 v{t}, v{x}")
    a("s_nop 1")
    for x, t in zip(xs, ts): a(f"v_permlane16_swap_b32 v{x}, v{t}")
    a("s_nop 1")
    for x, t in zip(xs, ts): a(f"v_add_f32 v{x}, v{x}, v{t}")

def stats_finish(a, ps, tmps, outs_nm, outs_rs):
    for p in ps:
        a(f"v_add_f32 v{p}, v{p}, v{p+2}")
        a(f"v_add_f32 v{p+1}, v{p+1}, v{p+3}")
    xs = []
    for p in ps: xs += [p, p+1]
    reduce_g_multi(a, xs, tmps[:len(xs)])
    for p, nm, rs in zip(ps, outs_nm, outs_rs):
        a(f"v_mul_f32 v{nm}, {f32hex(-1.0/512)}, v{p}")
        a(f"v_mul_f32 v{p+2}, v{nm}, v{nm}")
        a(f"v_mov_b32 v{p+3}, {f32hex(1.0/512)}")
        a(f"v_fma_f32 v{p+2}, v{p+1}, v{p+3}, -v{p+2}")
        a(f"v_max_f32 v{p+2}, 0, v{p+2}")
        a(f"v_add_f32 v{p+2}, {f32hex(1e-5)}, v{p+2}")
        a(f"v_rsq_f32 v{rs}, v{p+2}")
    a("s_nop 0")

def build_csfrag(a, src, dst, tmp, mask):
    a(f"v_and_b32 v{src}, v{mask}, v{src}")
    a(f"v_and_b32 v{tmp}, 0xffff0000, v{src}")
    a(f"v_sub_f32 v{src}, v{src}, v{tmp}")
    a(f"v_lshrrev_b32 v{dst}, 16, v{tmp}")
    a(f"v_or_b32 v{dst}, v{dst}, v{tmp}")
    a(f"v_cvt_pk_bf16_f32 v{dst+1}, v{src}, 0")

def build_nmfrag(a, nm, dst, tmp, mask):
    a(f"v_and_b32 v{tmp+1}, v{mask}, v{nm}")
    a(f"v_and_b32 v{tmp}, 0xffff0000, v{tmp+1}")
    a(f"v_sub_f32 v{tmp+1}, v{tmp+1}, v{tmp}")
    a(f"v_lshrrev_b32 v{dst+1}, 16, v{tmp}")
    a(f"v_cvt_pk_bf16_f32 v{dst}, v{tmp}, v{tmp+1}")

PREP_NWG = 280
def gen_prep(a):
    name = "prep_kernel"
    kernel_begin(a, name)
    a(f"s_cmp_ge_u32 s2, {PREP_NWG}")
    a("s_cbranch_scc1 LP_end")
    a("s_load_dwordx2 s[4:5], s[0:1], 72")
    a("s_load_dwordx4 s[40:43], s[0:1], 0")
    a("s_load_dwordx2 s[44:45], s[0:1], 16")
    a("s_load_dwordx4 s[48:51], s[0:1], 32")
    a("s_load_dwordx2 s[52:53], s[0:1], 48")
    a("v_lshrrev_b32 v1, 6, v0")
    a("v_and_b32 v2, 63, v0")
    a("v_readfirstlane_b32 s3, v1")
    a("v_and_b32 v3, 15, v2")
    a("v_lshrrev_b32 v4, 4, v2")
    a("s_waitcnt lgkmcnt(0)")
    make_srd(a, 8, 4, WS_SIZE)
    a("s_cmp_ge_u32 s2, 152")
    a("s_cbranch_scc1 LP_x")
    a("s_cmp_ge_u32 s2, 88")
    a("s_cbranch_scc1 LP_down")
    a("s_cmp_ge_u32 s2, 32")
    a("s_cbranch_scc1 LP_gu")
    a("s_cmp_ge_u32 s2, 24")
    a("s_cbranch_scc1 LP_wo")
    make_srd(a, 12, 42, 512*1536*2)
    a("""s_mov_b32 s16, 3072
    s_lshl_b32 s17, s2, 7
    s_mov_b32 s18, 16
    s_lshl_b32 s23, s2, 2
    s_add_u32 s23, s23, s3
    s_lshr_b32 s24, s23, 5
    s_and_b32 s25, s23, 31
    s_lshr_b32 s26, s25, 1
    s_and_b32 s25, s25, 1
    s_lshl_b32 s24, s24, 1
    s_add_u32 s24, s24, s25
    s_mul_i32 s19, s26, 96
    s_add_u32 s19, s19, s24
    s_lshl_b32 s19, s19, 10""")
    a(f"s_add_u32 s19, s19, {hex(WQKVP)}")
    a("""s_mov_b32 s20, 6144
    s_mov_b32 s21, 0
    s_mul_i32 s22, s26, 6
    s_add_u32 s22, s22, s24
    s_lshl_b32 s22, s22, 6""")
    a(f"s_add_u32 s22, s22, {hex(CSQKV)}")
    a("s_branch LP_w")
    a.label("LP_wo")
    make_srd(a, 12, 44, 512*512*2)
    a("""s_sub_u32 s23, s2, 24
    s_mov_b32 s16, 1024
    s_lshl_b32 s17, s23, 7
    s_mov_b32 s18, 16
    s_lshl_b32 s19, s23, 6
    s_add_u32 s19, s19, s3
    s_lshl_b32 s19, s19, 10""")
    a(f"s_add_u32 s19, s19, {hex(WOP)}")
    a("""s_mov_b32 s20, 4096
    s_mov_b32 s21, 1
    s_mov_b32 s22, 0
    s_branch LP_w""")
    a.label("LP_gu")
    a("s_sub_u32 s23, s2, 32")
    a("s_mov_b32 s27, 0")
    make_srd(a, 12, 48, 512*1792*2)
    a("""s_cmp_lt_u32 s23, 28
    s_cbranch_scc1 LP_gu2
    s_sub_u32 s23, s23, 28
    s_mov_b32 s27, 1
    s_mov_b32 s12, s50
    s_mov_b32 s13, s51""")
    a.label("LP_gu2")
    a("""s_mov_b32 s16, 3584
    s_lshl_b32 s17, s23, 7
    s_mov_b32 s18, 16
    s_lshl_b32 s23, s23, 2
    s_add_u32 s23, s23, s3
    s_mul_i32 s26, s23, 147
    s_lshr_b32 s26, s26, 10
    s_mul_i32 s24, s26, 7
    s_sub_u32 s24, s23, s24
    s_lshl_b32 s24, s24, 1
    s_add_u32 s24, s24, s27
    s_mul_i32 s19, s26, 224
    s_add_u32 s19, s19, s24
    s_mov_b32 s20, 8192
    s_cmp_lt_u32 s24, 8
    s_cbranch_scc1 LP_gu3
    s_add_u32 s19, s19, 120
    s_mov_b32 s20, 6144""")
    a.label("LP_gu3")
    a("s_lshl_b32 s19, s19, 10")
    a(f"s_add_u32 s19, s19, {hex(WGUP)}")
    a("""s_mov_b32 s21, 0
    s_mul_i32 s22, s26, 14
    s_add_u32 s22, s22, s24
    s_lshl_b32 s22, s22, 6""")
    a(f"s_add_u32 s22, s22, {hex(CSGU)}")
    a("s_branch LP_w")
    a.label("LP_down")
    make_srd(a, 12, 52, 1792*512*2)
    a("""s_sub_u32 s23, s2, 88
    s_lshr_b32 s24, s23, 3
    s_and_b32 s25, s23, 7
    s_mov_b32 s16, 1024""")
    a(f"s_mul_i32 s17, s24, {224*1024}")
    a("""s_lshl_b32 s26, s25, 7
    s_add_u32 s17, s17, s26
    s_mov_b32 s18, 7
    s_lshl_b32 s19, s25, 4
    s_lshl_b32 s26, s24, 1
    s_add_u32 s19, s19, s26
    s_mul_i32 s19, s19, 14
    s_lshl_b32 s19, s19, 10""")
    a(f"s_add_u32 s19, s19, {hex(WDP)}")
    a("""s_mov_b32 s20, 4096
    s_mov_b32 s21, 2
    s_mov_b32 s22, 0""")
    a.label("LP_w")
    a("""v_lshrrev_b32 v5, 3, v2
    v_mul_lo_u32 v5, v5, s16
    v_and_b32 v6, 7, v2
    v_lshlrev_b32 v6, 4, v6
    v_add_u32 v5, v5, v6
    s_mul_i32 s24, s3, s18
    s_lshl_b32 s25, s24, 10
    s_lshl_b32 s26, s16, 3
    s_mul_i32 s27, s24, s26
    s_add_u32 s27, s27, s17
    s_mov_b32 s28, s18""")
    a.label("LP_dma")
    a("""s_mov_b32 m0, s25
    s_add_u32 s25, s25, 1024
    buffer_load_dwordx4 v5, s[12:15], s27 offen lds
    s_add_u32 s27, s27, s26
    s_sub_u32 s28, s28, 1
    s_cmp_lg_u32 s28, 0
    s_cbranch_scc1 LP_dma
    v_lshrrev_b32 v6, 2, v3
    v_and_b32 v7, 3, v3
    v_lshlrev_b32 v7, 3, v7
    s_lshl_b32 s24, s3, 5
    v_add_u32 v7, s24, v7
    v_lshl_add_u32 v8, v4, 2, v6
    v_lshrrev_b32 v9, 1, v4
    v_lshlrev_b32 v9, 4, v9
    v_and_b32 v10, 1, v4
    v_lshl_add_u32 v9, v10, 2, v9
    v_add_u32 v9, v9, v6
    v_lshl_add_u32 v8, v8, 7, v7
    v_lshl_add_u32 v9, v9, 7, v7
    v_lshlrev_b32 v10, 4, v2""")
    for i in range(4):
        a(f"v_mov_b32 v{12+i}, 0x3f803f80")
        a(f"v_mov_b32 v{16+i}, 0")
    a("""s_waitcnt vmcnt(0)
    s_barrier
    s_cmp_eq_u32 s21, 1
    s_cbranch_scc1 LP_pi2
    s_cmp_eq_u32 s21, 2
    s_cbranch_scc1 LP_dn""")
    def steps(offs, base, colsum):
        n = len(offs)
        for s, (o1, o2) in enumerate(offs):
            a(f"ds_read_b64_tr_b16 {vr(32+4*s,2)}, v{base} offset:{o1}")
            a(f"ds_read_b64_tr_b16 {vr(34+4*s,2)}, v{base} offset:{o2}")
        a("s_mov_b32 s24, s19")
        for s in range(n):
            rem = 2*(n-1-s)
            a(f"s_waitcnt lgkmcnt({min(rem,15)})")
            a(f"buffer_store_dwordx4 {vr(32+4*s)}, v10, s[8:11], s24 offen")
            if colsum:
                a(f"v_mfma_f32_16x16x32_bf16 v[16:19], {vr(32+4*s)}, v[12:15], v[16:19]")
            a("s_add_u32 s24, s24, s20")
    steps([(4096*s, 4096*s+2048) for s in range(16)], 8, True)
    a("""s_nop 7
    s_nop 1
    v_lshlrev_b32 v11, 4, v4
    v_cmp_eq_u32 vcc, 0, v3
    s_and_saveexec_b64 s[30:31], vcc
    buffer_store_dwordx4 v[16:19], v11, s[8:11], s22 offen
    s_branch LP_end""")
    a.label("LP_pi2")
    steps([(4096*s, 4096*s+1024) for s in range(16)], 9, False)
    a("s_branch LP_end")
    a.label("LP_dn")
    for cbl in range(2):
        for p in range(3):
            r = 32 + (cbl*3+p)*4
            a(f"ds_read_b64_tr_b16 {vr(r,2)}, v8 offset:{2048*(7*cbl+2*p)}")
            a(f"ds_read_b64_tr_b16 {vr(r+2,2)}, v8 offset:{2048*(7*cbl+2*p+1)}")
        a(f"ds_read_b64_tr_b16 {vr(56+2*cbl,2)}, v8 offset:{2048*(7*cbl+6)}")
    a("""s_lshl_b32 s24, s3, 10
    s_add_u32 s24, s24, s19
    s_lshr_b32 s25, s3, 1
    s_lshl_b32 s25, s25, 10
    s_and_b32 s26, s3, 1
    s_lshl_b32 s26, s26, 3
    s_add_u32 s25, s25, s26
    s_add_u32 s25, s25, s19
    s_add_u32 s25, s25, 12288
    s_waitcnt lgkmcnt(0)""")
    for cbl in range(2):
        for p in range(3):
            a(f"buffer_store_dwordx4 {vr(32+(cbl*3+p)*4)}, v10, s[8:11], s24 offen")
            a("s_add_u32 s24, s24, 4096")
        a("s_add_u32 s24, s24, 2048")
        a(f"buffer_store_dwordx2 {vr(56+2*cbl,2)}, v10, s[8:11], s25 offen")
        a("s_add_u32 s25, s25, 14336")
    a("s_branch LP_end")
    a.label("LP_x")
    make_srd(a, 12, 40, 2048*512*2)
    a("""s_sub_u32 s23, s2, 152
    s_lshl_b32 s24, s23, 14
    s_lshl_b32 s25, s3, 8
    s_add_u32 s24, s24, s25
    v_lshlrev_b32 v5, 10, v3
    v_lshl_add_u32 v5, v4, 3, v5""")
    for s in range(4):
        a(f"buffer_load_dwordx2 {vr(32+4*s,2)}, v5, s[12:15], s24 offen offset:{64*s}")
        a(f"buffer_load_dwordx2 {vr(34+4*s,2)}, v5, s[12:15], s24 offen offset:{64*s+32}")
    a("""v_lshlrev_b32 v10, 4, v2
    s_lshr_b32 s26, s23, 1
    s_lshl_b32 s26, s26, 4
    s_lshl_b32 s27, s3, 2
    s_add_u32 s26, s26, s27
    s_lshl_b32 s26, s26, 1
    s_and_b32 s27, s23, 1
    s_add_u32 s26, s26, s27
    s_lshl_b32 s26, s26, 10""")
    a(f"s_add_u32 s26, s26, {hex(XIN)}")
    a("s_add_u32 s27, s26, 4096")
    a("v_mov_b32 v12, 0x3f803f80")
    for i in range(4): a(f"v_mov_b32 v{16+i}, 0")
    a("s_cmp_ge_u32 s23, 10")
    a("s_cbranch_scc1 LP_nz")
    a("s_lshl_b32 s28, s23, 2")
    a("s_add_u32 s28, s28, s3")
    a("s_lshl_b32 s28, s28, 10")
    a(f"s_add_u32 s28, s28, {hex(FLG)}")
    a("buffer_store_dwordx4 v[16:19], v10, s[8:11], s28 offen")
    a.label("LP_nz")
    a("s_waitcnt vmcnt(0)")
    a(f"buffer_store_dwordx4 {vr(32)}, v10, s[8:11], s26 offen")
    a(f"buffer_store_dwordx4 {vr(36)}, v10, s[8:11], s26 offen offset:2048")
    a(f"buffer_store_dwordx4 {vr(40)}, v10, s[8:11], s27 offen")
    a(f"buffer_store_dwordx4 {vr(44)}, v10, s[8:11], s27 offen offset:2048")
    for blk in range(2):
        for i in range(8):
            r = 32 + 8*blk + i
            a(f"v_dot2_f32_bf16 v{16+2*blk}, v{r}, v12, v{16+2*blk}")
            a(f"v_dot2_f32_bf16 v{17+2*blk}, v{r}, v{r}, v{17+2*blk}")
    a("s_nop 3")
    reduce_g_multi(a, [16,17,18,19], [20,21,22,23])
    a("""s_lshl_b32 s26, s23, 10
    s_lshl_b32 s27, s3, 8
    s_add_u32 s26, s26, s27""")
    a(f"s_add_u32 s26, s26, {hex(STA)}")
    a("""v_lshlrev_b32 v11, 3, v3
    v_cmp_eq_u32 vcc, 0, v4
    s_and_saveexec_b64 s[30:31], vcc
    buffer_store_dwordx2 v[16:17], v11, s[8:11], s26 offen
    buffer_store_dwordx2 v[18:19], v11, s[8:11], s26 offen offset:128""")
    a.label("LP_end")
    a("s_endpgm")
    return kernel_desc(name, 104, 104)

S_QRB, S_QCB, S_HEAD, S_QB, S_PRB, S_PCB, S_GRB, S_GCB = 16, 17, 18, 19, 20, 21, 22, 23
S_LOFF, S_LAYER, S_FLG = 24, 25, 26
RES = 248
V_L16, V_LANE, V_T, V_G, V_L4 = 1, 2, 3, 4, 5
RED = 98304
nstamp = [0]
STAMP_NAMES = []

def gen_main(a):
    name = "main_kernel"
    vm = VM()
    uid = [0]
    V_MASK = 9
    VO = [10, 11, 12, 13]
    V_ST = 8
    V_B1, V_B2 = 14, 15
    SCR = 162816
    RED_WO, RED_DN = 0, 98304
    def stamp(label):
        if STAMP:
            i = nstamp[0]; nstamp[0] += 1; STAMP_NAMES.append(label)
            a("s_memtime s[60:61]")
            a("s_waitcnt lgkmcnt(0)")
            a("s_cmp_eq_u32 s25, 0")
            a(f"s_cbranch_scc0 LS_{i}")
            a(f"v_writelane_b32 v246, s60, {i}")
            a.label(f"LS_{i}")
            a(f"v_writelane_b32 v247, s60, {i}")
    def signal(tag, phase, grp_sgpr, member_sgpr):
        u = uid[0]; uid[0] += 1
        a(f"s_lshl_b32 s40, s{grp_sgpr}, 8")
        a(f"s_lshl_b32 s41, s{member_sgpr}, 2")
        a("s_add_u32 s40, s40, s41")
        a(f"s_add_u32 s40, s40, s{S_FLG}")
        a(f"s_add_u32 s40, s40, {phase*4096}")
        a("v_mov_b32 v6, 1")
        a("v_mov_b32 v7, 0")
        vm.wait(a, tag)
        a("s_barrier")
        a("s_cmp_lg_u32 s3, 0")
        a(f"s_cbranch_scc1 LSG_{u}")
        a("s_mov_b64 exec, 1")
        a("buffer_store_dword v6, v7, s[8:11], s40 offen sc1")
        a("s_mov_b64 exec, -1")
        a.label(f"LSG_{u}")
    def poll(phase, grp_sgpr, n, prev_layer=False):
        u = uid[0]; uid[0] += 1
        a("s_cmp_lg_u32 s3, 0")
        a(f"s_cbranch_scc1 LPO_{u}")
        a(f"s_lshl_b32 s40, s{grp_sgpr}, 8")
        a(f"s_add_u32 s40, s40, s{S_FLG}")
        off = phase*4096 - (5*4096 if prev_layer else 0)
        if off >= 0: a(f"s_add_u32 s40, s40, {off}")
        else: a(f"s_sub_u32 s40, s40, {-off}")
        a(f"s_mov_b32 s42, {hex((1 << n) - 1)}")
        a("s_mov_b32 s43, 0")
        a("s_mov_b64 exec, s[42:43]")
        a("s_mov_b32 s41, 0")
        a.label(f"LPL_{u}")
        a(f"buffer_load_dword v6, v{V_L4}, s[8:11], s40 offen sc1")
        a("s_add_u32 s41, s41, 1")
        a("s_waitcnt vmcnt(0)")
        a("v_cmp_ne_u32 vcc, 1, v6")
        a(f"s_cmp_gt_u32 s41, {POLL_LIMIT}")
        a(f"s_cbranch_scc1 LPX_{u}")
        a("s_nop 2")
        a(f"s_cbranch_vccnz LPL_{u}")
        a.label(f"LPX_{u}")
        a("s_mov_b64 exec, -1")
        a.label(f"LPO_{u}")
        a("s_barrier")
    def lds_rd(dst, addr):
        base = [V_L16, V_B1, V_B2][addr >> 16]
        a(f"ds_read_b128 {vr(dst)}, v{base} offset:{addr & 0xffff}")

    kernel_begin(a, name)
    a("s_cmp_ge_u32 s2, 256")
    a("s_cbranch_scc1 LM_end")
    a("s_load_dwordx2 s[4:5], s[0:1], 72")
    a("s_load_dwordx2 s[6:7], s[0:1], 56")
    a("s_load_dwordx2 s[70:71], s[0:1], 64")
    a("s_memtime s[72:73]")
    a("s_memrealtime s[74:75]")
    a(f"""v_lshrrev_b32 v1, 6, v0
    v_and_b32 v{V_LANE}, 63, v0
    v_readfirstlane_b32 s3, v1
    v_and_b32 v{V_T}, 15, v{V_LANE}
    v_lshrrev_b32 v{V_G}, 4, v{V_LANE}
    v_lshlrev_b32 v{V_L16}, 4, v{V_LANE}
    v_lshlrev_b32 v{V_L4}, 2, v{V_LANE}
    v_cmp_gt_u32 vcc, 16, v{V_LANE}
    v_add_u32 v{V_B1}, 0x10000, v{V_L16}
    v_add_u32 v{V_B2}, 0x20000, v{V_L16}
    v_cndmask_b32 v{V_MASK}, 0, -1, vcc
    s_and_b32 s30, s2, 7
    s_lshr_b32 s31, s2, 3
    s_and_b32 s32, s31, 3
    s_lshr_b32 s33, s31, 2
    s_lshr_b32 s{S_QRB}, s30, 1
    s_lshl_b32 s{S_QRB}, s{S_QRB}, 2
    s_add_u32 s{S_QRB}, s{S_QRB}, s32
    s_and_b32 s{S_QCB}, s30, 1
    s_lshl_b32 s{S_QCB}, s{S_QCB}, 3
    s_add_u32 s{S_QCB}, s{S_QCB}, s33
    s_lshl_b32 s{S_HEAD}, s30, 2
    s_add_u32 s{S_HEAD}, s{S_HEAD}, s32
    s_mov_b32 s{S_QB}, s33
    s_mov_b32 s{S_PRB}, s{S_HEAD}
    s_mov_b32 s{S_PCB}, s33
    s_lshr_b32 s{S_GRB}, s30, 2
    s_lshl_b32 s{S_GRB}, s{S_GRB}, 3
    s_and_b32 s34, s31, 7
    s_add_u32 s{S_GRB}, s{S_GRB}, s34
    s_and_b32 s{S_GCB}, s30, 3
    s_lshl_b32 s{S_GCB}, s{S_GCB}, 2
    s_lshr_b32 s34, s31, 3
    s_add_u32 s{S_GCB}, s{S_GCB}, s34
    s_mov_b32 s{S_LOFF}, 0
    s_mov_b32 s{S_LAYER}, 0
    s_mov_b32 s{S_FLG}, {hex(FLG)}""")
    for i in range(4):
        a(f"s_xor_b32 s34, s3, {i}")
        a("s_lshl_b32 s34, s34, 10")
        a(f"v_add_u32 v{VO[i]}, s34, v{V_L16}")
    a(f"v_lshlrev_b32 v{V_ST}, 8, v{V_G}")
    a(f"v_lshl_add_u32 v{V_ST}, v{V_T}, 3, v{V_ST}")
    if STAMP:
        a("v_mov_b32 v246, 0"); a("v_mov_b32 v247, 0")
        a("s_memrealtime s[62:63]")
    a("s_waitcnt lgkmcnt(0)")
    make_srd(a, 8, 4, WS_SIZE)
    make_srd(a, 12, 6, 2048*512*2)
    stamp("start")

    def qkv_w_dma():
        a(f"s_mul_i32 s30, s{S_QCB}, {96*1024}")
        a(f"s_add_u32 s30, s30, {hex(WQKVP)}")
        a("s_mul_i32 s31, s3, 3072")
        a("s_add_u32 s30, s30, s31")
        for c in range(8):
            a("s_mov_b32 m0, s31")
            a("s_add_u32 s31, s31, 12288")
            for i in range(3):
                a(f"buffer_load_dwordx4 v{V_L16}, s[8:11], s30 offen offset:{1024*i} lds")
            a("s_add_u32 s30, s30, 12288")
        vm.add("qw", 24)
    def xtile_addr(dst, base):
        a(f"s_lshl_b32 s{dst}, s{S_PRB}, 2")
        a(f"s_add_u32 s{dst}, s{dst}, s3")
        a(f"s_and_b32 s45, s{dst}, 1")
        a(f"s_lshr_b32 s{dst}, s{dst}, 1")
        a(f"s_lshl_b32 s{dst}, s{dst}, 4")
        a(f"s_lshl_b32 s46, s{S_PCB}, 1")
        a(f"s_add_u32 s{dst}, s{dst}, s46")
        a(f"s_lshl_b32 s{dst}, s{dst}, 1")
        a(f"s_add_u32 s{dst}, s{dst}, s45")
        a(f"s_lshl_b32 s{dst}, s{dst}, 10")
        a(f"s_add_u32 s{dst}, s{dst}, {hex(base)}")
        a(f"s_add_u32 s{dst}, s{dst}, s{S_LOFF}")
    def cs_load(ntile, csbase, cbreg, dst):
        a(f"v_lshlrev_b32 v7, 2, v{V_T}")
        a(f"s_mul_i32 s32, s{cbreg}, {ntile*64}")
        a(f"s_add_u32 s32, s32, {hex(csbase)}")
        for i in range(ntile):
            a(f"buffer_load_dword v{dst+i}, v7, s[8:11], s32 offen offset:{64*i}")
        vm.add("cs", ntile)
    QCS, QCF = 124, 112
    cs_load(6, CSQKV, S_QCB, QCS)
    qkv_w_dma()
    xtile_addr(44, XIN)
    a(f"buffer_load_dwordx4 {vr(RES)}, v{V_L16}, s[8:11], s44 offen")
    a(f"buffer_load_dwordx4 {vr(RES+4)}, v{V_L16}, s[8:11], s44 offen offset:2048")
    a("s_branch LM_q0")

    a.label("LM_layer")
    cs_load(6, CSQKV, S_QCB, QCS)
    poll(4, S_QRB, 16, prev_layer=True)
    a.label("LM_q0")
    vm.reset()
    stamp("qkv polled")
    a(f"s_lshl_b32 s30, s{S_QRB}, 2")
    a("s_add_u32 s30, s30, s3")
    a("s_lshl_b32 s33, s30, 15")
    a(f"s_add_u32 s33, s33, {hex(XIN)}")
    a(f"s_add_u32 s33, s33, s{S_LOFF}")
    def xload(s, tag="x"):
        a(f"buffer_load_dwordx4 {ar(8*s)}, v{V_L16}, s[8:11], s33 offen offset:{2048*(s%2)} sc1")
        a(f"buffer_load_dwordx4 {ar(8*s+4)}, v{V_L16}, s[8:11], s33 offen offset:{2048*(s%2)+1024} sc1")
        if s % 2 == 1: a("s_add_u32 s33, s33, 4096")
        vm.add(f"{tag}{s}", 2)
    def stats_load(base, dst):
        a("s_lshl_b32 s31, s30, 11")
        a(f"s_add_u32 s31, s31, {hex(base)}")
        a(f"s_add_u32 s31, s31, s{S_LOFF}")
        for tt in range(2):
            a(f"buffer_load_dwordx2 {vr(dst+4*tt,2)}, v{V_ST}, s[8:11], s31 offen offset:{1024*tt} sc1")
            a(f"buffer_load_dwordx2 {vr(dst+4*tt+2,2)}, v{V_ST}, s[8:11], s31 offen offset:{1024*tt+128} sc1")
        vm.add("st", 4)
    PX = 8
    for s in range(2): xload(s)
    QST = 132
    stats_load(STA, QST)
    for s in range(2, PX): xload(s)
    def acc(tile, tt): return 16 + (tile*2+tt)*4
    def wf(s, i): return 64 + ((s&1)*6 + i)*4
    NM, RS, NF, RSR = 140, 142, 144, 148
    vm.wait(a, "x0")
    a("s_barrier")
    stamp("qkv start")
    for i in range(6): lds_rd(wf(0,i), i*1024)
    for i in range(6): build_csfrag(a, QCS+i, QCF+2*i, 130, V_MASK)
    for s in range(16):
        vm.wait(a, f"x{s}")
        for i in range(6):
            if s < 15:
                lds_rd(wf(s+1,i), (s+1)*6144 + i*1024)
                a("s_waitcnt lgkmcnt(6)")
            else:
                a(f"s_waitcnt lgkmcnt({5-i})")
            for tt in range(2):
                c = vr(acc(i,tt)) if s else "0"
                if i < 4: a(f"v_mfma_f32_16x16x32_bf16 {vr(acc(i,tt))}, {vr(wf(s,i))}, {ar(8*s+4*tt)}, {c}")
                else: a(f"v_mfma_f32_16x16x32_bf16 {vr(acc(i,tt))}, {ar(8*s+4*tt)}, {vr(wf(s,i))}, {c}")
            if i == 2 and s + PX < 16: xload(s + PX)
        if s == 3:
            stats_finish(a, [QST, QST+4], [156,157,158,159], [NM, NM+1], [RS, RS+1])
            for tt in range(2): build_nmfrag(a, NM+tt, NF+2*tt, 156, V_MASK)
            a("s_lshl_b32 s34, s3, 8")
            a(f"s_add_u32 s34, s34, {SCR}")
            a(f"v_lshl_add_u32 v156, v{V_T}, 2, s34")
            a(f"v_lshl_add_u32 v157, v{V_G}, 4, s34")
            a(f"ds_write_b32 v156, v{RS}")
            a(f"ds_write_b32 v156, v{RS+1} offset:64")
            a("s_waitcnt lgkmcnt(0)")
            a(f"ds_read_b128 {vr(RSR)}, v157")
            a(f"ds_read_b128 {vr(RSR+4)}, v157 offset:64")
            a("s_waitcnt lgkmcnt(0)")
        if s == 8:
            a(f"""v_lshrrev_b32 v160, 1, v{V_G}
            v_lshlrev_b32 v160, 9, v160
            v_and_b32 v163, 1, v{V_G}
            v_lshl_add_u32 v161, v163, 8, v160
            v_lshl_add_u32 v161, v{V_T}, 4, v161
            v_lshrrev_b32 v162, 2, v{V_T}
            v_lshlrev_b32 v162, 3, v162
            v_lshl_add_u32 v162, v163, 2, v162
            v_and_b32 v163, 3, v{V_T}
            v_add_u32 v162, v162, v163
            v_lshl_add_u32 v162, v162, 4, v160""")
            a(f"v_mul_f32 v{NM}, {f32hex(0.25*LOG2E)}, v{RS}")
            a(f"v_mul_f32 v{NM+1}, {f32hex(0.25*LOG2E)}, v{RS+1}")
            a(f"s_lshl_b32 s31, s{S_QCB}, 7")
            a("s_add_u32 s31, s31, s30")
            a("s_lshl_b32 s31, s31, 10")
            a(f"s_add_u32 s31, s31, s{S_LOFF}")
    order = (2, 3, 4, 5, 0, 1)
    for i in order:
        for tt in range(2):
            if i < 4: a(f"v_mfma_f32_16x16x16_bf16 {vr(acc(i,tt))}, {vr(QCF+2*i,2)}, {vr(NF+2*tt,2)}, {vr(acc(i,tt))}")
            else: a(f"v_mfma_f32_16x16x16_bf16 {vr(acc(i,tt))}, {vr(NF+2*tt,2)}, {vr(QCF+2*i,2)}, {vr(acc(i,tt))}")
    stamp("qkv mfma done")
    for k, tile in enumerate(order):
        which, hh = tile >> 1, tile & 1
        base = [QF, KF, VF][which] + hh*65536
        a(f"s_add_u32 s32, s31, {hex(base)}")
        if k >= 4: a("s_nop 3")
        for tt in range(2):
            b = acc(tile, tt)
            for r in range(4):
                sc = (NM+tt) if which == 0 else (RS+tt) if which == 1 else (RSR+4*tt+r)
                a(f"v_mul_f32 v{b+r}, v{sc}, v{b+r}")
        d = 64 + tile*4
        for tt in range(2):
            b = acc(tile, tt)
            a(f"v_cvt_pk_bf16_f32 v{d+2*tt}, v{b}, v{b+1}")
            a(f"v_cvt_pk_bf16_f32 v{d+2*tt+1}, v{b+2}, v{b+3}")
        if which < 2:
            a("s_nop 1")
            a(f"v_permlane16_swap_b32 v{d}, v{d+2}")
            a(f"v_permlane16_swap_b32 v{d+1}, v{d+3}")
            a(f"buffer_store_dwordx4 {vr(d)}, v{161+which}, s[8:11], s32 offen sc1")
            vm.add("o", 1)
        else:
            a(f"buffer_store_dwordx4 {vr(d)}, v{V_L16}, s[8:11], s32 offen sc1")
            vm.add("o", 1)
    signal("o", 0, S_QCB, S_QRB)
    stamp("qkv signaled")

    S = lambda u: 72 + 16*(u & 3)
    C = lambda u: 136 + 16*(u & 1)
    O = lambda u: 168 + 16*(u & 1)
    Q = lambda u: 16 + 4*(u & 1)
    KFR = lambda t: 24 + 4*(t & 3)
    V0 = lambda t: 40 + 8*(t & 3)
    V1 = lambda t: 44 + 8*(t & 3)
    IDX, KA, VA0, VA1 = 200, 201, 202, 203
    VB = 65536; VST = 1056
    a(f"""v_and_b32 v24, 31, v{V_LANE}
    v_lshrrev_b32 v25, 1, v24
    s_lshl_b32 s30, s3, 4
    v_add_u32 v25, s30, v25
    v_mul_u32_u24 v25, {VST}, v25
    v_and_b32 v28, 1, v{V_LANE}
    v_lshl_add_u32 v25, v28, 4, v25
    v_add_u32 v25, {VB+1024}, v25
    v_mul_u32_u24 v28, 0x3f80, v28
    v_lshl_or_b32 v28, v28, 16, v28
    v_mov_b32 v29, v28
    v_mov_b32 v30, v28
    v_mov_b32 v31, v28
    ds_write_b128 v25, v[28:31]""")
    a(f"""v_lshrrev_b32 v32, 5, v{V_LANE}
    v_lshlrev_b32 v33, 8, v32
    v_lshl_add_u32 v33, v24, 4, v33
    v_add_u32 v33, {VB}, v33
    v_and_b32 v34, 27, v24
    v_cmp_eq_u32 vcc, 16, v34
    v_mov_b32 v34, {VB+1024}
    v_mov_b32 v35, {VB+1040}
    v_cndmask_b32 v34, v34, v35, vcc
    v_cmp_gt_u32 vcc, 16, v24
    v_subrev_u32 v35, 0x200, v34
    s_nop 0
    v_cndmask_b32 v204, v34, v33, vcc
    v_cndmask_b32 v205, v35, v33, vcc
    v_mov_b32 v{IDX}, 0xdddddddd
    s_lshr_b32 s35, s{S_HEAD}, 1""")
    for i in range(16):
        a(f"v_mov_b32 v{O(0)+i}, 0")
        a(f"v_mov_b32 v{O(1)+i}, 0")
        a(f"v_mov_b32 v{S(3)+i}, 0")
    a(f"""s_lshl_b32 s30, s{S_HEAD}, 16
    s_add_u32 s30, s30, s{S_LOFF}
    s_lshl_b32 s31, s{S_QB}, 3
    s_lshl_b32 s32, s3, 1
    s_add_u32 s31, s31, s32
    s_lshl_b32 s31, s31, 10
    s_add_u32 s31, s31, s30""")
    a(f"s_add_u32 s31, s31, {hex(QF)}")
    a("s_lshl_b32 s32, s3, 10")
    a(f"s_mul_i32 s33, s3, {VST}")
    a(f"s_add_u32 s33, s33, {VB}")
    a("s_add_u32 s36, s30, s32")
    a(f"s_add_u32 s37, s36, {hex(VF)}")
    a(f"s_add_u32 s36, s36, {hex(KF)}")
    a(f"""s_lshl_b32 s56, s{S_PCB}, 4
    s_lshl_b32 s57, s3, 2
    s_add_u32 s56, s56, s57
    s_lshl_b32 s56, s56, 12""")
    a(f"s_add_u32 s56, s56, {hex(WOP)}")
    a(f"s_mul_i32 s54, s{S_PCB}, 56")
    a("s_mul_i32 s55, s3, 14")
    a("s_add_u32 s54, s54, s55")
    a("s_lshl_b32 s54, s54, 12")
    a(f"s_add_u32 s54, s54, {hex(WDP)}")
    a(f"s_mul_i32 s50, s{S_GCB}, {224*1024}")
    a(f"s_add_u32 s50, s50, {hex(WGUP)}")
    a("s_lshl_b32 s51, s3, 13")
    a("s_add_u32 s50, s50, s51")
    for k in range(16):
        s_, ct = divmod(k, 4)
        a(f"buffer_load_dwordx4 {ar(16*s_+4*ct)}, v{V_L16}, s[8:11], s56 offen offset:{1024*ct}")
        if ct == 3: a("s_add_u32 s56, s56, 4096")
    vm.add("wo", 16)
    poll(0, 35, 16)
    stamp("attn polled")
    def kv_round(r):
        a("s_mov_b32 m0, s32")
        a("s_add_u32 s32, s32, 4096")
        a(f"buffer_load_dwordx4 v{V_L16}, s[8:11], s36 offen sc1 lds")
        a("s_mov_b32 m0, s33")
        a(f"s_add_u32 s33, s33, {4*VST}")
        a(f"buffer_load_dwordx4 v{V_L16}, s[8:11], s37 offen sc1 lds")
        a("s_add_u32 s36, s36, 4096")
        a("s_add_u32 s37, s37, 4096")
        vm.add(f"kv{r}", 2)
    a(f"buffer_load_dwordx4 {vr(Q(0))}, v{V_L16}, s[8:11], s31 offen sc1")
    a(f"buffer_load_dwordx4 {vr(Q(1))}, v{V_L16}, s[8:11], s31 offen offset:1024 sc1")
    vm.add("q", 2)
    for r in range(3): kv_round(r)
    CH = 32768; NSLOT = 5
    SLOT = [65536, 98304, 131072, 0, 32768]
    def gu_dma(c):
        sl = SLOT[c % NSLOT]
        a(f"s_add_u32 s52, s51, {sl}")
        a("s_mov_b32 m0, s52")
        a("s_add_u32 s53, s50, 4096")
        for i in range(4): a(f"buffer_load_dwordx4 v{V_L16}, s[8:11], s50 offen offset:{1024*i} lds")
        a(f"s_add_u32 s52, s51, {sl+4096}")
        a("s_mov_b32 m0, s52")
        a(f"s_add_u32 s50, s50, {CH}")
        for i in range(4): a(f"buffer_load_dwordx4 v{V_L16}, s[8:11], s53 offen offset:{1024*i} lds")
        vm.add(f"gw{c}", 8)
    def WDR(k):
        if k < 32: return ('a', 128 + 4*k)
        if k < 40: return ('v', 212 + 4*(k-32))
        return ('v', 128 + 4*(k-40))
    def wd_load(k):
        a(f"buffer_load_dwordx4 {R(WDR(k))}, v{V_L16}, s[8:11], s54 offen offset:{1024*(k%4)}")
        if k % 4 == 3: a("s_add_u32 s54, s54, 4096")
        vm.add("wd", 1)
    a("s_mov_b32 s39, 0")
    vm.wait(a, "kv0")
    a("s_waitcnt lgkmcnt(0)")
    a("s_barrier")
    stamp("attn data")
    a(f"ds_read_b128 {vr(KFR(0))}, v{V_L16}")
    a("s_waitcnt lgkmcnt(0)")
    for q in range(2):
        a(f"v_mfma_f32_32x32x16_bf16 {vr(S(q),16)}, {vr(KFR(0))}, {vr(Q(q))}, 0")
    a("s_nop 12")
    for q in range(2):
        m = 206 + q
        if q: a("s_nop 3")
        a(f"v_max3_f32 v{m}, v{S(q)}, v{S(q)+1}, v{S(q)+2}")
        for i in range(3, 15, 2):
            a(f"v_max3_f32 v{m}, v{m}, v{S(q)+i}, v{S(q)+i+1}")
        a(f"v_max_f32 v{m}, v{m}, v{S(q)+15}")
    a.label("LA_restart")
    a("""v_mov_b32 v208, v206
    v_mov_b32 v209, v207
    s_nop 1
    v_permlane32_swap_b32 v206, v208
    v_permlane32_swap_b32 v207, v209
    s_nop 1
    v_max_f32 v206, v206, v208
    v_max_f32 v207, v207, v209""")
    a(f"v_mov_b32 v{KA}, v{V_L16}")
    a(f"v_mov_b32 v{VA0}, v204")
    a(f"v_mov_b32 v{VA1}, v205")
    for t in range(2):
        a(f"ds_read_b128 {vr(KFR(t))}, v{KA} offset:{1024*t}")
    a(f"ds_read_b128 {vr(V0(0))}, v{VA0}")
    a(f"ds_read_b128 {vr(V1(0))}, v{VA1} offset:512")
    a(f"ds_read_b128 {vr(V1(3))}, v{VA1} offset:512")
    for i in range(16): a(f"v_sub_f32 v{C(0)+i}, 0, v206")
    a("s_waitcnt lgkmcnt(0)")
    a("s_nop 0")
    a(f"v_mfma_f32_32x32x16_bf16 {vr(S(0),16)}, {vr(KFR(0))}, {vr(Q(0))}, {vr(C(0),16)}")
    for i in range(16): a(f"v_sub_f32 v{C(1)+i}, 0, v207")
    a("s_nop 1")
    a(f"v_mfma_f32_32x32x16_bf16 {vr(S(1),16)}, {vr(KFR(0))}, {vr(Q(1))}, {vr(C(1),16)}")
    def attn_body(mode):
        for u in range(16):
            t = u >> 1
            def ex(lo, hi):
                for i in range(lo, hi): a(f"v_exp_f32 v{S(u)+i}, v{S(u)+i}")
            ex(0, 4)
            a(f"v_smfmac_f32_32x32x32_bf16 {vr(O(u-1),16)}, {vr(V1((u-1)>>1))}, {vr(S(u-1)+8,8)}, v{IDX}")
            if u % 2 == 0:
                if mode == 1 and u == 2:
                    vm.wait(a, "kv2")
                    a("s_barrier")
                a("s_waitcnt lgkmcnt(0)")
                a(f"ds_read_b128 {vr(KFR(t+2))}, v{KA} offset:{1024*(t+2)}")
                a(f"ds_read_b128 {vr(V0(t+1))}, v{VA0} offset:{VST*(t+1)}")
                a(f"ds_read_b128 {vr(V1(t+1))}, v{VA1} offset:{VST*(t+1)+512}")
            ex(4, 10)
            a(f"v_mfma_f32_32x32x16_bf16 {vr(S(u+2),16)}, {vr(KFR((u+2)>>1))}, {vr(Q(u))}, {vr(C(u),16)}")
            if mode == 1 and u < 13: kv_round(3 + u)
            ex(10, 14)
            a(f"v_smfmac_f32_32x32x32_bf16 {vr(O(u),16)}, {vr(V0(t))}, {vr(S(u),8)}, v{IDX}")
            ex(14, 16)
        a(f"v_add_u32 v{KA}, 0x2000, v{KA}")
        a(f"v_add_u32 v{VA0}, {8*VST}, v{VA0}")
        a(f"v_add_u32 v{VA1}, {8*VST}, v{VA1}")
    a("s_mov_b32 s38, 8")
    a("s_cmp_lg_u32 s39, 0")
    a("s_cbranch_scc1 LA_loop")
    attn_body(1)
    vm.wait(a, "kv15")
    a("s_barrier")
    a("s_mov_b32 s38, 7")
    a.label("LA_loop")
    attn_body(0)
    a("s_sub_u32 s38, s38, 1")
    a("s_cmp_lg_u32 s38, 0")
    a("s_cbranch_scc1 LA_loop")
    a(f"v_smfmac_f32_32x32x32_bf16 {vr(O(1),16)}, {vr(V1(3))}, {vr(S(3)+8,8)}, v{IDX}")
    a(f"""v_and_b32 v24, 31, v{V_LANE}
    v_lshrrev_b32 v25, 4, v24
    v_lshlrev_b32 v25, 10, v25
    v_lshrrev_b32 v26, 5, v{V_LANE}
    v_lshl_add_u32 v25, v26, 8, v25
    v_lshl_add_u32 v25, v{V_T}, 4, v25
    s_lshl_b32 s30, s{S_QB}, 2
    s_add_u32 s30, s30, s3
    s_lshl_b32 s30, s30, 4
    s_lshr_b32 s31, s{S_HEAD}, 1
    s_add_u32 s30, s30, s31
    s_lshl_b32 s30, s30, 12
    s_and_b32 s31, s{S_HEAD}, 1
    s_lshl_b32 s31, s31, 9
    s_add_u32 s30, s30, s31
    s_add_u32 s30, s30, s{S_LOFF}""")
    a(f"s_add_u32 s30, s30, {hex(OF)}")
    a("s_waitcnt lgkmcnt(0)")
    stamp("attn loop done")
    a("s_cmp_lg_u32 s39, 0")
    a("s_cbranch_scc1 LA_fin")
    a("v_mov_b32 v208, 0x4e800000")
    a(f"v_max_f32 v209, v{O(0)+8}, v{O(1)+8}")
    a(f"v_add_f32 v210, v{O(0)+8}, v{O(1)+8}")
    a("v_cmp_nlt_f32 vcc, v209, v208")
    a("v_cmp_u_f32 s[40:41], v210, v210")
    a("s_nop 3")
    a("s_or_b64 vcc, vcc, s[40:41]")
    a("s_cbranch_vccz LA_fin")
    a("s_mov_b32 s39, 1")
    a("v_mov_b32 v206, 0xff800000")
    a("v_mov_b32 v207, 0xff800000")
    a(f"v_mov_b32 v{KA}, v{V_L16}")
    a("s_mov_b32 s38, 64")
    a.label("LA_maxloop")
    a(f"ds_read_b128 {vr(KFR(0))}, v{KA}")
    a("s_waitcnt lgkmcnt(0)")
    for q in range(2):
        a(f"v_mfma_f32_32x32x16_bf16 {vr(S(q),16)}, {vr(KFR(0))}, {vr(Q(q))}, 0")
    a("s_nop 15")
    a("s_nop 3")
    for q in range(2):
        for i in range(0, 16, 2):
            a(f"v_max3_f32 v{206+q}, v{206+q}, v{S(q)+i}, v{S(q)+i+1}")
    a(f"v_add_u32 v{KA}, 0x400, v{KA}")
    a("s_sub_u32 s38, s38, 1")
    a("s_cmp_lg_u32 s38, 0")
    a("s_cbranch_scc1 LA_maxloop")
    for i in range(16):
        a(f"v_mov_b32 v{O(0)+i}, 0")
        a(f"v_mov_b32 v{O(1)+i}, 0")
        a(f"v_mov_b32 v{S(3)+i}, 0")
    a("s_branch LA_restart")
    a.label("LA_fin")
    a(f"v_rcp_f32 v206, v{O(0)+8}")
    a(f"v_rcp_f32 v207, v{O(1)+8}")
    a("s_nop 0")
    for q in range(2):
        for i in range(8): a(f"v_mul_f32 v{O(q)+i}, v{206+q}, v{O(q)+i}")
        for i in range(4): a(f"v_cvt_pk_bf16_f32 v{28+4*q+i}, v{O(q)+2*i}, v{O(q)+2*i+1}")
        a(f"buffer_store_dwordx4 {vr(28+4*q)}, v25, s[8:11], s30 offen offset:{2048*q} sc1")
    vm.add("o", 2)
    signal("o", 1, S_QB, S_HEAD)
    stamp("attn signaled")

    for c in (0, 1, 2): gu_dma(c)
    def pacc(ct, i, base): return base + (i*4 + ct)*4
    a(f"""s_lshr_b32 s35, s{S_PRB}, 2
    s_lshl_b32 s30, s{S_PRB}, 4
    s_lshl_b32 s31, s3, 2
    s_add_u32 s30, s30, s31
    s_lshl_b32 s30, s30, 12
    s_add_u32 s30, s30, s{S_LOFF}""")
    a(f"s_add_u32 s30, s30, {hex(OF)}")
    poll(1, 35, 32)
    stamp("wo polled")
    for s in range(4):
        for i in range(4):
            a(f"buffer_load_dwordx4 {vr(16+16*s+4*i)}, v{VO[i]}, s[8:11], s30 offen sc1")
        a("s_add_u32 s30, s30, 4096")
        vm.add(f"of{s}", 4)
    def red_setup(red):
        for i in range(1, 4):
            a(f"s_xor_b32 s34, s3, {i}")
            a("s_mul_i32 s34, s34, 12288")
            a(f"s_add_u32 s34, s34, {red + (i-1)*4096}")
            a(f"v_add_u32 v{207+i}, s34, v{V_L16}")
        a("s_mul_i32 s34, s3, 12288")
        a(f"s_add_u32 s34, s34, {red}")
        a(f"v_add_u32 v211, s34, v{V_L16}")
    red_setup(RED_WO)
    for s in range(4):
        vm.wait(a, f"of{s}")
        for i in (1, 2, 3, 0):
            for ct in range(4):
                c = vr(pacc(ct,i,80)) if s else "0"
                a(f"v_mfma_f32_16x16x32_bf16 {vr(pacc(ct,i,80))}, {ar(16*s+4*ct)}, {vr(16+16*s+4*i)}, {c}")
    def reduce_and_residual(accbase, rdbase, scale_reg):
        for i in range(1, 4):
            if i == 3: a("s_nop 3")
            for ct in range(4):
                a(f"ds_write_b128 v{207+i}, {vr(pacc(ct,i,accbase))} offset:{ct*1024}")
        X = rdbase + 48
        for i in range(8):
            a(f"v_lshlrev_b32 v{X+2*i}, 16, v{RES+i}")
            a(f"v_and_b32 v{X+2*i+1}, 0xffff0000, v{RES+i}")
        a("s_waitcnt lgkmcnt(0)")
        a("s_barrier")
        for j in range(3):
            for ct in range(4):
                a(f"ds_read_b128 {vr(rdbase + (j*4+ct)*4)}, v211 offset:{j*4096 + ct*1024}")
        A0 = accbase
        a("s_waitcnt lgkmcnt(8)")
        for i in range(16): a(f"v_add_f32 v{A0+i}, v{A0+i}, v{rdbase+i}")
        a("s_waitcnt lgkmcnt(0)")
        for i in range(16): a(f"v_add_f32 v{rdbase+16+i}, v{rdbase+16+i}, v{rdbase+32+i}")
        for i in range(16): a(f"v_add_f32 v{A0+i}, v{A0+i}, v{rdbase+16+i}")
        for i in range(16):
            if scale_reg is not None: a(f"v_fma_f32 v{A0+i}, v{A0+i}, v{scale_reg}, v{X+i}")
            else: a(f"v_add_f32 v{A0+i}, v{A0+i}, v{X+i}")
            if i % 2 == 1: a(f"v_cvt_pk_bf16_f32 v{RES+i//2}, v{A0+i-1}, v{A0+i}")
    def out_addrs(xbase, stbase, extra_off):
        xtile_addr(44, xbase + extra_off)
        a(f"""s_lshl_b32 s47, s{S_PRB}, 2
        s_add_u32 s47, s47, s3
        s_lshl_b32 s47, s47, 10
        s_lshl_b32 s31, s{S_PCB}, 7
        s_add_u32 s47, s47, s31
        s_add_u32 s47, s47, s{S_LOFF}""")
        a(f"s_add_u32 s47, s47, {hex(stbase + extra_off)}")
        a(f"s_lshr_b32 s35, s{S_PRB}, 1")
        a(f"s_and_b32 s36, s{S_PRB}, 1")
        a("s_lshl_b32 s36, s36, 3")
        a(f"s_add_u32 s36, s36, s{S_PCB}")
    def store_x_and_stats():
        a(f"buffer_store_dwordx4 {vr(RES)}, v{V_L16}, s[8:11], s44 offen sc1")
        a(f"buffer_store_dwordx4 {vr(RES+4)}, v{V_L16}, s[8:11], s44 offen offset:2048 sc1")
        a("v_mov_b32 v206, 0x3f803f80")
        a("v_mov_b32 v202, 0")
        a("v_mov_b32 v203, 0")
        for i in range(8):
            a(f"v_dot2_f32_bf16 v202, v{RES+i}, v206, v202")
            a(f"v_dot2_f32_bf16 v203, v{RES+i}, v{RES+i}, v203")
        a("s_nop 3")
        reduce_g_multi(a, [202, 203], [204, 205])
        a("s_mov_b64 exec, 0xffff")
        a(f"buffer_store_dwordx2 v[202:203], v{V_ST}, s[8:11], s47 offen sc1")
        a("s_mov_b64 exec, -1")
        vm.add("o", 3)
    out_addrs(X1F, STB, 0)
    stamp("wo mfma done")
    reduce_and_residual(80, 144, None)
    store_x_and_stats()
    signal("o", 2, 35, 36)
    stamp("wo signaled")

    gu_dma(3); gu_dma(4)
    GCS, GCF = 188, 160
    cs_load(14, CSGU, S_GCB, GCS)
    a(f"s_lshl_b32 s30, s{S_GRB}, 2")
    a("s_add_u32 s30, s30, s3")
    a("s_lshl_b32 s33, s30, 15")
    a(f"s_add_u32 s33, s33, {hex(X1F)}")
    a(f"s_add_u32 s33, s33, s{S_LOFF}")
    a(f"""s_lshr_b32 s34, s30, 1
    s_lshl_b32 s34, s34, 4
    s_add_u32 s34, s34, s{S_GCB}
    s_mul_i32 s34, s34, 14
    s_and_b32 s35, s30, 1
    s_add_u32 s36, s34, s35
    s_add_u32 s35, s36, s35
    s_lshl_b32 s35, s35, 10
    s_lshl_b32 s36, s36, 10
    s_add_u32 s35, s35, s{S_LOFF}
    s_add_u32 s36, s36, s{S_LOFF}""")
    a(f"s_add_u32 s35, s35, {hex(HF)}")
    a(f"s_add_u32 s36, s36, {hex(HF + 12288)}")
    vm.wait(a, "cs")
    for i in range(14): build_csfrag(a, GCS+i, GCF+2*i, 202, V_MASK)
    poll(2, S_GRB, 16)
    stamp("gu polled")
    GST = 188
    for s in range(2): xload(s)
    stats_load(STB, GST)
    for s in range(2, PX): xload(s)
    NM, RS, NF = 196, 198, 200
    RING = 8; AHEAD = 6
    def gwf(n): return 128 + (n % RING)*4
    def rd(n): lds_rd(gwf(n), SLOT[(n // 32) % NSLOT] + (n % 32)*1024)
    TOT = 224
    def nmap(n):
        if n < 128: return divmod(n, 8)
        s_, t6 = divmod(n - 128, 6)
        return s_, 8 + t6
    def epi_pair(i, tt):
        G, U = acc(2*i, tt), acc(2*i+1, tt)
        L = [f"v_max_f32 v{G+r}, 0, v{G+r}" for r in range(4)] + [f"v_mul_f32 v{G+r}, v{G+r}, v{U+r}" for r in range(4)]
        if i < 6: d = U if i % 2 == 0 else acc(2*(i-1)+1, tt) + 2
        else: d = acc(13, 0) + 2*tt if tt == 0 else None
        if i == 6:
            d = 204 + 2*tt
        L += [f"v_cvt_pk_bf16_f32 v{d}, v{G}, v{G+1}", f"v_cvt_pk_bf16_f32 v{d+1}, v{G+2}, v{G+3}"]
        if i < 6 and i % 2 == 1:
            L.append(("ST", f"buffer_store_dwordx4 {vr(d-2)}, v{V_L16}, s[8:11], s35 offen offset:{1024*tt} sc1"))
            if tt == 1: L.append("s_add_u32 s35, s35, 4096")
        if i == 6 and tt == 1:
            L.append(("ST", f"buffer_store_dwordx4 v[204:207], v{V_L16}, s[8:11], s36 offen sc1"))
        return L
    def emit(x):
        if isinstance(x, tuple): a(x[1]); vm.add("o", 1)
        else: a(x)
    epiA = []
    for i in range(4):
        for tt in range(2): epiA += epi_pair(i, tt)
    stamp("gu start")
    for n in range(AHEAD): rd(n)
    wdk = 0
    for n in range(TOT):
        s, i = nmap(n)
        if n < 128 and i == 0: vm.wait(a, f"x{s}")
        m = n + AHEAD
        if m < TOT:
            if m % 32 == 0:
                c = m // 32
                if c in (2, 3):
                    a("s_barrier"); gu_dma(c+3)
                if c in (5, 6):
                    vm.wait(a, f"gw{c}"); a("s_barrier")
            rd(m)
            a(f"s_waitcnt lgkmcnt({AHEAD})")
        else:
            a(f"s_waitcnt lgkmcnt({TOT-1-n})")
        for tt in range(2):
            c = vr(acc(i,tt)) if s else "0"
            a(f"v_mfma_f32_16x16x32_bf16 {vr(acc(i,tt))}, {vr(gwf(n))}, {ar(8*s+4*tt)}, {c}")
        if n < 128 and i == 3 and s + PX < 16: xload(s + PX)
        if n == 40:
            stats_finish(a, [GST, GST+4], [204,205,206,207], [NM, NM+1], [RS, RS+1])
            for tt in range(2): build_nmfrag(a, NM+tt, NF+2*tt, 204, V_MASK)
        if n == 127:
            for i2 in range(8):
                for tt in range(2):
                    a(f"v_mfma_f32_16x16x16_bf16 {vr(acc(i2,tt))}, {vr(GCF+2*i2,2)}, {vr(NF+2*tt,2)}, {vr(acc(i2,tt))}")
        if n >= 132:
            for _ in range(2):
                if epiA: emit(epiA.pop(0))
        if n >= 100 and n % 3 == 0 and wdk < 40:
            wd_load(wdk); wdk += 1
    assert not epiA and wdk == 40, (len(epiA), wdk)
    for i in range(8, 14):
        for tt in range(2):
            a(f"v_mfma_f32_16x16x16_bf16 {vr(acc(i,tt))}, {vr(GCF+2*i,2)}, {vr(NF+2*tt,2)}, {vr(acc(i,tt))}")
    stamp("gu mfma done")
    for i in range(4, 7):
        for tt in range(2):
            for x in epi_pair(i, tt): emit(x)
    signal("o", 3, S_GRB, S_GCB)
    stamp("gu signaled")

    for k in range(40, 56): wd_load(k)
    a(f"""s_lshr_b32 s35, s{S_PRB}, 1
    s_lshl_b32 s49, s{S_PRB}, 2
    s_add_u32 s49, s49, s3
    s_lshl_b32 s49, s49, 10
    s_add_u32 s49, s49, s{S_LOFF}""")
    a(f"s_add_u32 s49, s49, {hex(STB)}")
    a(f"""s_mul_i32 s48, s{S_PRB}, 56
    s_mul_i32 s34, s3, 14
    s_add_u32 s48, s48, s34
    s_lshl_b32 s48, s48, 12
    s_add_u32 s48, s48, s{S_LOFF}""")
    a(f"s_add_u32 s48, s48, {hex(HF)}")
    red_setup(RED_DN)
    VH = [200, 201, 202, 203]
    for i in range(4):
        a(f"s_xor_b32 s34, s3, {i}")
        a("s_lshr_b32 s37, s34, 1")
        a("s_lshl_b32 s37, s37, 10")
        a("s_and_b32 s34, s34, 1")
        a("s_lshl_b32 s34, s34, 3")
        a("s_add_u32 s34, s34, s37")
        a(f"v_add_u32 v{VH[i]}, s34, v{V_L16}")
    poll(3, 35, 16)
    stamp("down polled")
    HD = 8
    def hload(s):
        half = (s % 4 == 3)
        for i in range(4):
            if half: a(f"buffer_load_dwordx2 {ar(16*(s%HD)+4*i,2)}, v{VH[i]}, s[8:11], s48 offen sc1")
            else: a(f"buffer_load_dwordx4 {ar(16*(s%HD)+4*i)}, v{VO[i]}, s[8:11], s48 offen sc1")
        a(f"s_add_u32 s48, s48, {2048 if half else 4096}")
        vm.add(f"h{s}", 4)
    HP = 6
    hload(0)
    a(f"buffer_load_dwordx2 v[192:193], v{V_ST}, s[8:11], s49 offen sc1")
    a(f"buffer_load_dwordx2 v[194:195], v{V_ST}, s[8:11], s49 offen offset:128 sc1")
    vm.add("st", 2)
    for s in range(1, HP): hload(s)
    for s in range(16):
        vm.wait(a, f"h{s}")
        cbl, p = divmod(s, 4)
        for i in (1, 2, 3, 0):
            for ct in range(4):
                c = vr(pacc(ct,i,16)) if s else "0"
                if p < 3:
                    a(f"v_mfma_f32_16x16x32_bf16 {vr(pacc(ct,i,16))}, {R(WDR(cbl*14+p*4+ct))}, {ar(16*(s%HD)+4*i)}, {c}")
                else:
                    w_ = WDR(cbl*14 + 12 + (ct >> 1))
                    a(f"v_mfma_f32_16x16x16_bf16 {vr(pacc(ct,i,16))}, {R((w_[0], w_[1]+2*(ct&1)),2)}, {ar(16*(s%HD)+4*i,2)}, {c}")
            if i == 1 and s + HP < 16: hload(s + HP)
        if s == 2:
            stats_finish(a, [192], [196, 197], [198], [199])
            a("v_mul_f32 v199, v199, v199")
            out_addrs(XIN, STA, LSTRIDE)
    stamp("down mfma done")
    reduce_and_residual(16, 80, 199)
    a(f"s_cmp_lg_u32 s{S_LAYER}, 0")
    a("s_cbranch_scc1 LM_final")
    store_x_and_stats()
    signal("o", 4, 35, 36)
    stamp("down signaled")
    qkv_w_dma()
    a(f"s_mov_b32 s{S_LAYER}, 1")
    a(f"s_mov_b32 s{S_LOFF}, {hex(LSTRIDE)}")
    a(f"s_mov_b32 s{S_FLG}, {hex(FLG + 5*4096)}")
    a("s_branch LM_layer")
    a.label("LM_final")
    a(f"""v_lshlrev_b32 v6, 10, v{V_T}
    v_lshl_add_u32 v6, v{V_G}, 3, v6
    s_lshl_b32 s30, s{S_PRB}, 2
    s_add_u32 s30, s30, s3
    s_lshl_b32 s30, s30, 14
    s_lshl_b32 s31, s{S_PCB}, 7
    s_add_u32 s30, s30, s31""")
    for ct in range(4):
        a(f"buffer_store_dwordx2 {vr(RES+2*ct,2)}, v6, s[12:15], s30 offen offset:{32*ct}")
    if STAMP:
        a("s_waitcnt vmcnt(0)")
        stamp("end")
        a("s_memrealtime s[64:65]")
        a("s_waitcnt lgkmcnt(0)")
        a("v_writelane_b32 v246, s62, 62")
        a("v_writelane_b32 v246, s64, 63")
        a("s_lshl_b32 s30, s2, 2")
        a("s_add_u32 s30, s30, s3")
        a("s_lshl_b32 s30, s30, 9")
        a(f"s_add_u32 s30, s30, {hex(DBGR)}")
        a(f"buffer_store_dword v246, v{V_L4}, s[8:11], s30 offen")
        a(f"buffer_store_dword v247, v{V_L4}, s[8:11], s30 offen offset:256")
    a("s_waitcnt vmcnt(0)")
    a("s_memtime s[76:77]")
    a("s_memrealtime s[78:79]")
    a("s_waitcnt lgkmcnt(0)")
    a("s_sub_u32 s76, s76, s72")
    a("s_sub_u32 s78, s78, s74")
    a("s_mov_b32 s80, s70\ns_mov_b32 s81, s71\ns_mov_b32 s82, 256\ns_mov_b32 s83, 0x00020000")
    a("v_mov_b32 v20, s76\nv_mov_b32 v21, s78\nv_mov_b32 v22, 0")
    a("s_cmp_gt_u32 s2, 7")
    a("s_cbranch_scc1 LM_end")
    a("s_lshl_b32 s84, s2, 3")
    a("s_mov_b64 exec, 1")
    a("buffer_store_dwordx2 v[20:21], v22, s[80:83], s84 offen")
    a.label("LM_end")
    a("s_endpgm")
    return kernel_desc(name, 512, 256)

def main(out_path):
    a = Asm()
    hdr = open("cdna_kernels/" + NAME + ".s.ref").read().split("; Override launch")[0]
    launches = [("prep_kernel", PREP_NWG, 256, 65536), ("main_kernel", 256, 256, 163840)]
    out = hdr
    for k, g, b, l in launches:
        out += f"; @launch kernel={k} grid=({g},1,1) block=({b},1,1) lds={l}\n"
    out += '.amdgcn_target "amdgcn-amd-amdhsa--gfx950"\n.text\n'
    descs = [gen_prep(a), gen_main(a)]
    out += a.text()
    out += '.section .rodata,"a"\n' + "".join(descs)
    open(out_path, "w").write(out)
    if STAMP: open(out_path + ".stamps", "w").write("\n".join(STAMP_NAMES))

if __name__ == "__main__":
    main(sys.argv[1] if len(sys.argv) > 1 else "cdna_kernels/" + NAME + ".s")
```

```python
import sys, os, struct

NAME = "interleave_layers__softmax_full_mha__glu_gated_reglu__prompt"
MB = 1 << 20
WQKVP = 0 * MB
WOP   = 2 * MB
WGUP  = 3 * MB
WDP   = 7 * MB
CSQKV = 9 * MB
CSGU  = 9 * MB + 0x10000
FLG   = 9 * MB + 0x30000
FW1   = FLG + 0xF000
FW2   = FLG + 0xF400
EPOCH = FLG + 0xF800
DBGR  = 9 * MB + 0x40000
ACT0  = 10 * MB
LSTRIDE = 20 * MB
XIN, QF, KF, VF, OF, X1F, HF = [ACT0 + i*MB for i in (0, 2, 4, 6, 8, 10, 12)]
STA = ACT0 + 19*MB + 0x80000
STB = ACT0 + 19*MB + 0xC0000
WS_SIZE = ACT0 + 2*LSTRIDE + 4*MB
LOG2E = 1.4426950408889634
STAMP = int(os.environ.get("STAMP", "0"))
POLL_LIMIT = 100000

def f32hex(x): return "0x%08x" % struct.unpack("<I", struct.pack("<f", x))[0]

class Asm:
    def __init__(self): self.lines = []
    def __call__(self, s):
        for l in s.split("\n"):
            l = l.strip()
            if l: self.lines.append("    " + l)
    def label(self, l): self.lines.append(l + ":")
    def raw(self, s): self.lines.append(s)
    def text(self): return "\n".join(self.lines) + "\n"

class VM:
    def __init__(self): self.seq = []
    def add(self, tag, n=1): self.seq += [tag]*n
    def wait(self, a, tag):
        idxs = [i for i, t in enumerate(self.seq) if t == tag]
        if not idxs: return
        idx = idxs[-1]
        n = len(self.seq) - 1 - idx
        a(f"s_waitcnt vmcnt({min(n, 63)})")
        self.seq = self.seq[idx+1:]
    def reset(self): self.seq = []

def vr(b, n=4): return f"v[{b}:{b+n-1}]"
def ar(b, n=4): return f"a[{b}:{b+n-1}]"
def R(x, n=4):
    return f"{x[0]}[{x[1]}:{x[1]+n-1}]"

def kernel_begin(a, name):
    a.raw(f".globl {name}"); a.raw(".p2align 8"); a.raw(f".type {name},@function"); a.label(name)

def kernel_desc(name, nvgpr, accum, nsgpr=102):
    return f""".p2align 6
.amdhsa_kernel {name}
  .amdhsa_next_free_vgpr {nvgpr}
  .amdhsa_next_free_sgpr {nsgpr}
  .amdhsa_accum_offset {accum}
  .amdhsa_group_segment_fixed_size 0
  .amdhsa_kernarg_size 80
  .amdhsa_user_sgpr_count 2
  .amdhsa_user_sgpr_kernarg_segment_ptr 1
  .amdhsa_system_sgpr_workgroup_id_x 1
.end_amdhsa_kernel
"""

def make_srd(a, d, src, size):
    a(f"s_mov_b32 s{d}, s{src}"); a(f"s_mov_b32 s{d+1}, s{src+1}")
    a(f"s_mov_b32 s{d+2}, {hex(size)}"); a(f"s_mov_b32 s{d+3}, 0x00020000")

def reduce_g_multi(a, xs, ts):
    for x, t in zip(xs, ts): a(f"v_mov_b32 v{t}, v{x}")
    a("s_nop 1")
    for x, t in zip(xs, ts): a(f"v_permlane32_swap_b32 v{x}, v{t}")
    a("s_nop 1")
    for x, t in zip(xs, ts): a(f"v_add_f32 v{x}, v{x}, v{t}")
    for x, t in zip(xs, ts): a(f"v_mov_b32 v{t}, v{x}")
    a("s_nop 1")
    for x, t in zip(xs, ts): a(f"v_permlane16_swap_b32 v{x}, v{t}")
    a("s_nop 1")
    for x, t in zip(xs, ts): a(f"v_add_f32 v{x}, v{x}, v{t}")

def stats_finish(a, ps, tmps, outs_nm, outs_rs):
    for p in ps:
        a(f"v_add_f32 v{p}, v{p}, v{p+2}")
        a(f"v_add_f32 v{p+1}, v{p+1}, v{p+3}")
    xs = []
    for p in ps: xs += [p, p+1]
    reduce_g_multi(a, xs, tmps[:len(xs)])
    for p, nm, rs in zip(ps, outs_nm, outs_rs):
        a(f"v_mul_f32 v{nm}, {f32hex(-1.0/512)}, v{p}")
        a(f"v_mul_f32 v{p+2}, v{nm}, v{nm}")
        a(f"v_mov_b32 v{p+3}, {f32hex(1.0/512)}")
        a(f"v_fma_f32 v{p+2}, v{p+1}, v{p+3}, -v{p+2}")
        a(f"v_max_f32 v{p+2}, 0, v{p+2}")
        a(f"v_add_f32 v{p+2}, {f32hex(1e-5)}, v{p+2}")
        a(f"v_rsq_f32 v{rs}, v{p+2}")
    a("s_nop 0")

def build_csfrag(a, src, dst, tmp, mask):
    a(f"v_and_b32 v{tmp}, 0xffff0000, v{src}")
    a(f"v_sub_f32 v{src}, v{src}, v{tmp}")
    a(f"v_lshrrev_b32 v{dst}, 16, v{tmp}")
    a(f"v_or_b32 v{dst}, v{dst}, v{tmp}")
    a(f"v_cvt_pk_bf16_f32 v{dst+1}, v{src}, 0")

def build_nmfrag(a, nm, dst, tmp, mask):
    a(f"v_and_b32 v{tmp}, 0xffff0000, v{nm}")
    a(f"v_sub_f32 v{tmp+1}, v{nm}, v{tmp}")
    a(f"v_lshrrev_b32 v{dst+1}, 16, v{tmp}")
    a(f"v_cvt_pk_bf16_f32 v{dst}, v{tmp}, v{tmp+1}")

PREP_NWG = 280
def gen_prep(a):
    name = "prep_kernel"
    kernel_begin(a, name)
    a(f"s_cmp_ge_u32 s2, {PREP_NWG}")
    a("s_cbranch_scc1 LP_end")
    a("s_load_dwordx2 s[4:5], s[0:1], 72")
    a("s_load_dwordx4 s[40:43], s[0:1], 0")
    a("s_load_dwordx2 s[44:45], s[0:1], 16")
    a("s_load_dwordx4 s[48:51], s[0:1], 32")
    a("s_load_dwordx2 s[52:53], s[0:1], 48")
    a("v_lshrrev_b32 v1, 6, v0")
    a("v_and_b32 v2, 63, v0")
    a("v_readfirstlane_b32 s3, v1")
    a("v_and_b32 v3, 15, v2")
    a("v_lshrrev_b32 v4, 4, v2")
    a("s_waitcnt lgkmcnt(0)")
    make_srd(a, 8, 4, WS_SIZE)
    a("s_cmp_ge_u32 s2, 152")
    a("s_cbranch_scc1 LP_x")
    a("s_cmp_ge_u32 s2, 88")
    a("s_cbranch_scc1 LP_down")
    a("s_cmp_ge_u32 s2, 32")
    a("s_cbranch_scc1 LP_gu")
    a("s_cmp_ge_u32 s2, 24")
    a("s_cbranch_scc1 LP_wo")
    make_srd(a, 12, 42, 512*1536*2)
    a("""s_mov_b32 s16, 3072
    s_lshl_b32 s17, s2, 7
    s_mov_b32 s18, 16
    s_lshl_b32 s23, s2, 2
    s_add_u32 s23, s23, s3
    s_lshr_b32 s24, s23, 5
    s_and_b32 s25, s23, 31
    s_lshr_b32 s26, s25, 1
    s_and_b32 s25, s25, 1
    s_lshl_b32 s24, s24, 1
    s_add_u32 s24, s24, s25
    s_mul_i32 s19, s26, 96
    s_add_u32 s19, s19, s24
    s_lshl_b32 s19, s19, 10""")
    a(f"s_add_u32 s19, s19, {hex(WQKVP)}")
    a("""s_mov_b32 s20, 6144
    s_mov_b32 s21, 0
    s_mul_i32 s22, s26, 6
    s_add_u32 s22, s22, s24
    s_lshl_b32 s22, s22, 6""")
    a(f"s_add_u32 s22, s22, {hex(CSQKV)}")
    a("s_branch LP_w")
    a.label("LP_wo")
    make_srd(a, 12, 44, 512*512*2)
    a("""s_sub_u32 s23, s2, 24
    s_mov_b32 s16, 1024
    s_lshl_b32 s17, s23, 7
    s_mov_b32 s18, 16
    s_lshl_b32 s19, s23, 6
    s_add_u32 s19, s19, s3
    s_lshl_b32 s19, s19, 10""")
    a(f"s_add_u32 s19, s19, {hex(WOP)}")
    a("""s_mov_b32 s20, 4096
    s_mov_b32 s21, 1
    s_mov_b32 s22, 0
    s_branch LP_w""")
    a.label("LP_gu")
    a("s_sub_u32 s23, s2, 32")
    a("s_mov_b32 s27, 0")
    make_srd(a, 12, 48, 512*1792*2)
    a("""s_cmp_lt_u32 s23, 28
    s_cbranch_scc1 LP_gu2
    s_sub_u32 s23, s23, 28
    s_mov_b32 s27, 1
    s_mov_b32 s12, s50
    s_mov_b32 s13, s51""")
    a.label("LP_gu2")
    a("""s_mov_b32 s16, 3584
    s_lshl_b32 s17, s23, 7
    s_mov_b32 s18, 16
    s_lshl_b32 s23, s23, 2
    s_add_u32 s23, s23, s3
    s_mul_i32 s26, s23, 147
    s_lshr_b32 s26, s26, 10
    s_mul_i32 s24, s26, 7
    s_sub_u32 s24, s23, s24
    s_lshl_b32 s24, s24, 1
    s_add_u32 s24, s24, s27
    s_mul_i32 s19, s26, 224
    s_add_u32 s19, s19, s24
    s_mov_b32 s20, 8192
    s_cmp_lt_u32 s24, 8
    s_cbranch_scc1 LP_gu3
    s_add_u32 s19, s19, 120
    s_mov_b32 s20, 6144""")
    a.label("LP_gu3")
    a("s_lshl_b32 s19, s19, 10")
    a(f"s_add_u32 s19, s19, {hex(WGUP)}")
    a("""s_mov_b32 s21, 0
    s_mul_i32 s22, s26, 14
    s_add_u32 s22, s22, s24
    s_lshl_b32 s22, s22, 6""")
    a(f"s_add_u32 s22, s22, {hex(CSGU)}")
    a("s_branch LP_w")
    a.label("LP_down")
    make_srd(a, 12, 52, 1792*512*2)
    a("""s_sub_u32 s23, s2, 88
    s_lshr_b32 s24, s23, 3
    s_and_b32 s25, s23, 7
    s_mov_b32 s16, 1024""")
    a(f"s_mul_i32 s17, s24, {224*1024}")
    a("""s_lshl_b32 s26, s25, 7
    s_add_u32 s17, s17, s26
    s_mov_b32 s18, 7
    s_lshl_b32 s19, s25, 4
    s_lshl_b32 s26, s24, 1
    s_add_u32 s19, s19, s26
    s_mul_i32 s19, s19, 14
    s_lshl_b32 s19, s19, 10""")
    a(f"s_add_u32 s19, s19, {hex(WDP)}")
    a("""s_mov_b32 s20, 4096
    s_mov_b32 s21, 2
    s_mov_b32 s22, 0""")
    a.label("LP_w")
    a("""v_lshrrev_b32 v5, 3, v2
    v_mul_lo_u32 v5, v5, s16
    v_and_b32 v6, 7, v2
    v_lshlrev_b32 v6, 4, v6
    v_add_u32 v5, v5, v6
    s_mul_i32 s24, s3, s18
    s_lshl_b32 s25, s24, 10
    s_lshl_b32 s26, s16, 3
    s_mul_i32 s27, s24, s26
    s_add_u32 s27, s27, s17
    s_mov_b32 s28, s18""")
    a.label("LP_dma")
    a("""s_mov_b32 m0, s25
    s_add_u32 s25, s25, 1024
    buffer_load_dwordx4 v5, s[12:15], s27 offen lds
    s_add_u32 s27, s27, s26
    s_sub_u32 s28, s28, 1
    s_cmp_lg_u32 s28, 0
    s_cbranch_scc1 LP_dma
    v_lshrrev_b32 v6, 2, v3
    v_and_b32 v7, 3, v3
    v_lshlrev_b32 v7, 3, v7
    s_lshl_b32 s24, s3, 5
    v_add_u32 v7, s24, v7
    v_lshl_add_u32 v8, v4, 2, v6
    v_lshrrev_b32 v9, 1, v4
    v_lshlrev_b32 v9, 4, v9
    v_and_b32 v10, 1, v4
    v_lshl_add_u32 v9, v10, 2, v9
    v_add_u32 v9, v9, v6
    v_lshl_add_u32 v8, v8, 7, v7
    v_lshl_add_u32 v9, v9, 7, v7
    v_lshlrev_b32 v10, 4, v2""")
    for i in range(4):
        a(f"v_mov_b32 v{12+i}, 0x3f803f80")
        a(f"v_mov_b32 v{16+i}, 0")
    a("""s_waitcnt vmcnt(0)
    s_barrier
    s_cmp_eq_u32 s21, 1
    s_cbranch_scc1 LP_pi2
    s_cmp_eq_u32 s21, 2
    s_cbranch_scc1 LP_dn""")
    def steps(offs, base, colsum):
        n = len(offs)
        for s, (o1, o2) in enumerate(offs):
            a(f"ds_read_b64_tr_b16 {vr(32+4*s,2)}, v{base} offset:{o1}")
            a(f"ds_read_b64_tr_b16 {vr(34+4*s,2)}, v{base} offset:{o2}")
        a("s_mov_b32 s24, s19")
        for s in range(n):
            rem = 2*(n-1-s)
            a(f"s_waitcnt lgkmcnt({min(rem,15)})")
            a(f"buffer_store_dwordx4 {vr(32+4*s)}, v10, s[8:11], s24 offen")
            if colsum:
                a(f"v_mfma_f32_16x16x32_bf16 v[16:19], {vr(32+4*s)}, v[12:15], v[16:19]")
            a("s_add_u32 s24, s24, s20")
    steps([(4096*s, 4096*s+2048) for s in range(16)], 8, True)
    a("""s_nop 7
    s_nop 1
    v_lshlrev_b32 v11, 4, v4
    v_cmp_eq_u32 vcc, 0, v3
    s_and_saveexec_b64 s[30:31], vcc
    buffer_store_dwordx4 v[16:19], v11, s[8:11], s22 offen
    s_branch LP_end""")
    a.label("LP_pi2")
    steps([(4096*s, 4096*s+1024) for s in range(16)], 9, False)
    a("s_branch LP_end")
    a.label("LP_dn")
    for cbl in range(2):
        for p in range(3):
            r = 32 + (cbl*3+p)*4
            a(f"ds_read_b64_tr_b16 {vr(r,2)}, v8 offset:{2048*(7*cbl+2*p)}")
            a(f"ds_read_b64_tr_b16 {vr(r+2,2)}, v8 offset:{2048*(7*cbl+2*p+1)}")
        a(f"ds_read_b64_tr_b16 {vr(56+2*cbl,2)}, v8 offset:{2048*(7*cbl+6)}")
    a("""s_lshl_b32 s24, s3, 10
    s_add_u32 s24, s24, s19
    s_lshr_b32 s25, s3, 1
    s_lshl_b32 s25, s25, 10
    s_and_b32 s26, s3, 1
    s_lshl_b32 s26, s26, 3
    s_add_u32 s25, s25, s26
    s_add_u32 s25, s25, s19
    s_add_u32 s25, s25, 12288
    s_waitcnt lgkmcnt(0)""")
    for cbl in range(2):
        for p in range(3):
            a(f"buffer_store_dwordx4 {vr(32+(cbl*3+p)*4)}, v10, s[8:11], s24 offen")
            a("s_add_u32 s24, s24, 4096")
        a("s_add_u32 s24, s24, 2048")
        a(f"buffer_store_dwordx2 {vr(56+2*cbl,2)}, v10, s[8:11], s25 offen")
        a("s_add_u32 s25, s25, 14336")
    a("s_branch LP_end")
    a.label("LP_x")
    make_srd(a, 12, 40, 2048*512*2)
    a("""s_sub_u32 s23, s2, 152
    s_lshl_b32 s24, s23, 14
    s_lshl_b32 s25, s3, 8
    s_add_u32 s24, s24, s25
    v_lshlrev_b32 v5, 10, v3
    v_lshl_add_u32 v5, v4, 3, v5""")
    for s in range(4):
        a(f"buffer_load_dwordx2 {vr(32+4*s,2)}, v5, s[12:15], s24 offen offset:{64*s}")
        a(f"buffer_load_dwordx2 {vr(34+4*s,2)}, v5, s[12:15], s24 offen offset:{64*s+32}")
    a("""v_lshlrev_b32 v10, 4, v2
    s_lshr_b32 s26, s23, 1
    s_lshl_b32 s26, s26, 4
    s_lshl_b32 s27, s3, 2
    s_add_u32 s26, s26, s27
    s_lshl_b32 s26, s26, 1
    s_and_b32 s27, s23, 1
    s_add_u32 s26, s26, s27
    s_lshl_b32 s26, s26, 10""")
    a(f"s_add_u32 s26, s26, {hex(XIN)}")
    a("s_add_u32 s27, s26, 4096")
    a("v_mov_b32 v12, 0x3f803f80")
    for i in range(4): a(f"v_mov_b32 v{16+i}, 0")
    a("s_cmp_ge_u32 s23, 10")
    a("s_cbranch_scc1 LP_nz")
    a("s_lshl_b32 s28, s23, 2")
    a("s_add_u32 s28, s28, s3")
    a("s_lshl_b32 s28, s28, 10")
    a(f"s_add_u32 s28, s28, {hex(FLG)}")
    a("buffer_store_dwordx4 v[16:19], v10, s[8:11], s28 offen")
    a.label("LP_nz")
    a("s_waitcnt vmcnt(0)")
    a(f"buffer_store_dwordx4 {vr(32)}, v10, s[8:11], s26 offen")
    a(f"buffer_store_dwordx4 {vr(36)}, v10, s[8:11], s26 offen offset:2048")
    a(f"buffer_store_dwordx4 {vr(40)}, v10, s[8:11], s27 offen")
    a(f"buffer_store_dwordx4 {vr(44)}, v10, s[8:11], s27 offen offset:2048")
    for blk in range(2):
        for i in range(8):
            r = 32 + 8*blk + i
            a(f"v_dot2_f32_bf16 v{16+2*blk}, v{r}, v12, v{16+2*blk}")
            a(f"v_dot2_f32_bf16 v{17+2*blk}, v{r}, v{r}, v{17+2*blk}")
    a("s_nop 3")
    reduce_g_multi(a, [16,17,18,19], [20,21,22,23])
    a("""s_lshl_b32 s26, s23, 10
    s_lshl_b32 s27, s3, 8
    s_add_u32 s26, s26, s27""")
    a(f"s_add_u32 s26, s26, {hex(STA)}")
    a("""v_lshlrev_b32 v11, 3, v3
    v_cmp_eq_u32 vcc, 0, v4
    s_and_saveexec_b64 s[30:31], vcc
    buffer_store_dwordx2 v[16:17], v11, s[8:11], s26 offen
    buffer_store_dwordx2 v[18:19], v11, s[8:11], s26 offen offset:128""")
    a.label("LP_end")
    a("s_endpgm")
    return kernel_desc(name, 104, 104)

S_QRB, S_QCB, S_HEAD, S_QB, S_PRB, S_PCB, S_GRB, S_GCB = 16, 17, 18, 19, 20, 21, 22, 23
S_LOFF, S_LAYER, S_FLG, S_NONCE = 24, 25, 26, 27
RES = 248
V_L16, V_LANE, V_T, V_G, V_L4 = 1, 2, 3, 4, 5
RED = 98304
nstamp = [0]
STAMP_NAMES = []

def gen_main(a):
    name = NAME + "_kernel"
    vm = VM()
    uid = [0]
    V_MASK = 9
    VO = [10, 11, 12, 13]
    V_ST = 8
    V_B1, V_B2 = 14, 15
    SCR = 162816
    RED_WO, RED_DN = 0, 98304
    def stamp(label):
        if STAMP:
            i = nstamp[0]; nstamp[0] += 1; STAMP_NAMES.append(label)
            a("s_memtime s[60:61]")
            a("s_waitcnt lgkmcnt(0)")
            a("s_cmp_eq_u32 s25, 0")
            a(f"s_cbranch_scc0 LS_{i}")
            a(f"v_writelane_b32 v246, s60, {i}")
            a.label(f"LS_{i}")
            a(f"v_writelane_b32 v247, s60, {i}")
    def signal(tag, phase, grp_sgpr, member_sgpr):
        u = uid[0]; uid[0] += 1
        a(f"s_lshl_b32 s40, s{grp_sgpr}, 8")
        a(f"s_lshl_b32 s41, s{member_sgpr}, 2")
        a("s_add_u32 s40, s40, s41")
        a(f"s_add_u32 s40, s40, s{S_FLG}")
        a(f"s_add_u32 s40, s40, {phase*4096}")
        a(f"v_mov_b32 v6, s{S_NONCE}")
        a("v_mov_b32 v7, 0")
        vm.wait(a, tag)
        a("s_barrier")
        a("s_cmp_lg_u32 s3, 0")
        a(f"s_cbranch_scc1 LSG_{u}")
        a("s_mov_b64 exec, 1")
        a("buffer_store_dword v6, v7, s[8:11], s40 offen sc1")
        a("s_mov_b64 exec, -1")
        a.label(f"LSG_{u}")
    def poll(phase, grp_sgpr, n, prev_layer=False):
        u = uid[0]; uid[0] += 1
        a("s_cmp_lg_u32 s3, 0")
        a(f"s_cbranch_scc1 LPO_{u}")
        a(f"s_lshl_b32 s40, s{grp_sgpr}, 8")
        a(f"s_add_u32 s40, s40, s{S_FLG}")
        off = phase*4096 - (5*4096 if prev_layer else 0)
        if off >= 0: a(f"s_add_u32 s40, s40, {off}")
        else: a(f"s_sub_u32 s40, s40, {-off}")
        a(f"s_mov_b32 s42, {hex((1 << n) - 1)}")
        a("s_mov_b32 s43, 0")
        a("s_mov_b64 exec, s[42:43]")
        a("s_mov_b32 s41, 0")
        a.label(f"LPL_{u}")
        a(f"buffer_load_dword v6, v{V_L4}, s[8:11], s40 offen sc1")
        a("s_add_u32 s41, s41, 1")
        a("s_waitcnt vmcnt(0)")
        a(f"v_cmp_ne_u32 vcc, s{S_NONCE}, v6")
        a(f"s_cmp_gt_u32 s41, {POLL_LIMIT}")
        a(f"s_cbranch_scc1 LPX_{u}")
        a("s_nop 2")
        a(f"s_cbranch_vccnz LPL_{u}")
        a.label(f"LPX_{u}")
        a("s_mov_b64 exec, -1")
        a.label(f"LPO_{u}")
        a("s_barrier")
    def poll_wide(addr, nlanes, tmp):
        u = uid[0]; uid[0] += 1
        a("s_cmp_lg_u32 s3, 0")
        a(f"s_cbranch_scc1 LPO_{u}")
        a(f"s_mov_b32 s40, {hex(addr)}")
        m = (1 << nlanes) - 1
        a(f"s_mov_b32 s42, {hex(m & 0xffffffff)}")
        a(f"s_mov_b32 s43, {hex(m >> 32)}")
        a("s_mov_b64 exec, s[42:43]")
        a("s_mov_b32 s41, 0")
        a.label(f"LPL_{u}")
        a(f"buffer_load_dwordx4 {vr(tmp)}, v{V_L16}, s[8:11], s40 offen sc1")
        a("s_add_u32 s41, s41, 1")
        a("s_waitcnt vmcnt(0)")
        for i in range(4): a(f"v_xor_b32 v{tmp+i}, s{S_NONCE}, v{tmp+i}")
        a(f"v_or3_b32 v{tmp}, v{tmp}, v{tmp+1}, v{tmp+2}")
        a(f"v_or_b32 v{tmp}, v{tmp}, v{tmp+3}")
        a(f"v_cmp_ne_u32 vcc, 0, v{tmp}")
        a(f"s_cmp_gt_u32 s41, {POLL_LIMIT}")
        a(f"s_cbranch_scc1 LPX_{u}")
        a("s_sleep 2")
        a(f"s_cbranch_vccnz LPL_{u}")
        a.label(f"LPX_{u}")
        a("s_mov_b64 exec, -1")
        a.label(f"LPO_{u}")
    def flag_store(addr_code):
        u = uid[0]; uid[0] += 1
        a("s_cmp_lg_u32 s3, 0")
        a(f"s_cbranch_scc1 LSG_{u}")
        a(addr_code)
        a(f"v_mov_b32 v6, s{S_NONCE}")
        a("v_mov_b32 v7, 0")
        a("s_mov_b64 exec, 1")
        a("buffer_store_dword v6, v7, s[8:11], s40 offen sc1")
        a("s_mov_b64 exec, -1")
        a.label(f"LSG_{u}")
    def lds_rd(dst, addr):
        base = [V_L16, V_B1, V_B2][addr >> 16]
        a(f"ds_read_b128 {vr(dst)}, v{base} offset:{addr & 0xffff}")

    kernel_begin(a, name)
    a("s_cmp_ge_u32 s2, 256")
    a("s_cbranch_scc1 LM_end")
    a("s_load_dwordx2 s[4:5], s[0:1], 72")
    a("s_load_dwordx4 s[64:67], s[0:1], 56")
    a("s_load_dwordx4 s[68:71], s[0:1], 0")
    a("s_load_dwordx2 s[72:73], s[0:1], 16")
    a("s_load_dwordx4 s[76:79], s[0:1], 32")
    a("s_load_dwordx2 s[74:75], s[0:1], 48")
    a(f"""v_lshrrev_b32 v1, 6, v0
    v_and_b32 v{V_LANE}, 63, v0
    v_readfirstlane_b32 s3, v1
    v_and_b32 v{V_T}, 15, v{V_LANE}
    v_lshrrev_b32 v{V_G}, 4, v{V_LANE}
    v_lshlrev_b32 v{V_L16}, 4, v{V_LANE}
    v_lshlrev_b32 v{V_L4}, 2, v{V_LANE}
    v_cmp_gt_u32 vcc, 16, v{V_LANE}
    v_add_u32 v{V_B1}, 0x10000, v{V_L16}
    v_add_u32 v{V_B2}, 0x20000, v{V_L16}
    v_cndmask_b32 v{V_MASK}, 0, -1, vcc
    s_and_b32 s30, s2, 7
    s_lshr_b32 s31, s2, 3
    s_and_b32 s32, s31, 3
    s_lshr_b32 s33, s31, 2
    s_lshr_b32 s{S_QRB}, s30, 1
    s_lshl_b32 s{S_QRB}, s{S_QRB}, 2
    s_add_u32 s{S_QRB}, s{S_QRB}, s32
    s_and_b32 s{S_QCB}, s30, 1
    s_lshl_b32 s{S_QCB}, s{S_QCB}, 3
    s_add_u32 s{S_QCB}, s{S_QCB}, s33
    s_lshl_b32 s{S_HEAD}, s30, 2
    s_add_u32 s{S_HEAD}, s{S_HEAD}, s32
    s_mov_b32 s{S_QB}, s33
    s_mov_b32 s{S_PRB}, s{S_HEAD}
    s_mov_b32 s{S_PCB}, s33
    s_lshr_b32 s{S_GRB}, s30, 2
    s_lshl_b32 s{S_GRB}, s{S_GRB}, 3
    s_and_b32 s34, s31, 7
    s_add_u32 s{S_GRB}, s{S_GRB}, s34
    s_and_b32 s{S_GCB}, s30, 3
    s_lshl_b32 s{S_GCB}, s{S_GCB}, 2
    s_lshr_b32 s34, s31, 3
    s_add_u32 s{S_GCB}, s{S_GCB}, s34
    s_mov_b32 s{S_LOFF}, 0
    s_mov_b32 s{S_LAYER}, 0
    s_mov_b32 s{S_FLG}, {hex(FLG + 5*4096)}""")
    for i in range(4):
        a(f"s_xor_b32 s34, s3, {i}")
        a("s_lshl_b32 s34, s34, 10")
        a(f"v_add_u32 v{VO[i]}, s34, v{V_L16}")
    a(f"v_lshlrev_b32 v{V_ST}, 8, v{V_G}")
    a(f"v_lshl_add_u32 v{V_ST}, v{V_T}, 3, v{V_ST}")
    if STAMP:
        a("v_mov_b32 v246, 0"); a("v_mov_b32 v247, 0")
        a("s_memrealtime s[96:97]")
    a("s_waitcnt lgkmcnt(0)")
    make_srd(a, 8, 4, WS_SIZE)
    make_srd(a, 12, 64, 2048*512*2)
    stamp("start")

    def qkv_w_dma():
        a(f"s_mul_i32 s30, s{S_QCB}, {96*1024}")
        a(f"s_add_u32 s30, s30, {hex(WQKVP)}")
        a("s_mul_i32 s31, s3, 3072")
        a("s_add_u32 s30, s30, s31")
        for c in range(8):
            a("s_mov_b32 m0, s31")
            a("s_add_u32 s31, s31, 12288")
            for i in range(3):
                a(f"buffer_load_dwordx4 v{V_L16}, s[8:11], s30 offen offset:{1024*i} sc1 lds")
            a("s_add_u32 s30, s30, 12288")
        vm.add("qw", 24)
    def xtile_addr(dst, base):
        a(f"s_lshl_b32 s{dst}, s{S_PRB}, 2")
        a(f"s_add_u32 s{dst}, s{dst}, s3")
        a(f"s_and_b32 s45, s{dst}, 1")
        a(f"s_lshr_b32 s{dst}, s{dst}, 1")
        a(f"s_lshl_b32 s{dst}, s{dst}, 4")
        a(f"s_lshl_b32 s46, s{S_PCB}, 1")
        a(f"s_add_u32 s{dst}, s{dst}, s46")
        a(f"s_lshl_b32 s{dst}, s{dst}, 1")
        a(f"s_add_u32 s{dst}, s{dst}, s45")
        a(f"s_lshl_b32 s{dst}, s{dst}, 10")
        a(f"s_add_u32 s{dst}, s{dst}, {hex(base)}")
        a(f"s_add_u32 s{dst}, s{dst}, s{S_LOFF}")
    def cs_load(ntile, csbase, cbreg, dst):
        a(f"v_lshlrev_b32 v7, 3, v{V_LANE}")
        a(f"s_mul_i32 s32, s{cbreg}, {ntile*512}")
        a(f"s_add_u32 s32, s32, {hex(csbase)}")
        for i in range(ntile):
            if i == 8: a("s_add_u32 s32, s32, 4096")
            a(f"buffer_load_dwordx2 {vr(dst+2*i,2)}, v7, s[8:11], s32 offen offset:{512*(i%8)} sc1")
        vm.add("cs", ntile)
    QCF = 112
    def out_addrs(xbase, stbase, extra_off):
        xtile_addr(44, xbase + extra_off)
        a(f"""s_lshl_b32 s47, s{S_PRB}, 2
        s_add_u32 s47, s47, s3
        s_lshl_b32 s47, s47, 10
        s_lshl_b32 s31, s{S_PCB}, 7
        s_add_u32 s47, s47, s31
        s_add_u32 s47, s47, s{S_LOFF}""")
        a(f"s_add_u32 s47, s47, {hex(stbase + extra_off)}")
        a(f"s_lshr_b32 s35, s{S_PRB}, 1")
        a(f"s_and_b32 s36, s{S_PRB}, 1")
        a("s_lshl_b32 s36, s36, 3")
        a(f"s_add_u32 s36, s36, s{S_PCB}")
    def store_x_and_stats():
        a(f"buffer_store_dwordx4 {vr(RES)}, v{V_L16}, s[8:11], s44 offen sc1")
        a(f"buffer_store_dwordx4 {vr(RES+4)}, v{V_L16}, s[8:11], s44 offen offset:2048 sc1")
        a("v_mov_b32 v206, 0x3f803f80")
        a("v_mov_b32 v202, 0")
        a("v_mov_b32 v203, 0")
        for i in range(8):
            a(f"v_dot2_f32_bf16 v202, v{RES+i}, v206, v202")
            a(f"v_dot2_f32_bf16 v203, v{RES+i}, v{RES+i}, v203")
        a("s_nop 3")
        reduce_g_multi(a, [202, 203], [204, 205])
        a("s_mov_b64 exec, 0xffff")
        a(f"buffer_store_dwordx2 v[202:203], v{V_ST}, s[8:11], s47 offen sc1")
        a("s_mov_b64 exec, -1")
        vm.add("o", 3)
    make_srd(a, 80, 66, 256)
    a("s_or_b32 s30, s2, s3")
    a("s_cmp_lg_u32 s30, 0")
    a("s_cbranch_scc1 LPP_ne")
    a(f"s_mov_b32 s30, {hex(EPOCH)}")
    a("v_mov_b32 v7, 0")
    a("s_mov_b64 exec, 1")
    a("buffer_load_dword v6, v7, s[8:11], s30 offen sc1")
    a("s_waitcnt vmcnt(0)")
    a("v_add_u32 v6, 1, v6")
    a("v_max_u32 v6, 1, v6")
    a("buffer_store_dword v6, v7, s[80:83], 0 offen sc1")
    a("buffer_store_dword v6, v7, s[8:11], s30 offen sc1")
    a("s_mov_b64 exec, -1")
    a.label("LPP_ne")
    make_srd(a, 84, 68, 2048*512*2)
    a(f"""v_lshlrev_b32 v16, 10, v{V_T}
    v_lshl_add_u32 v16, v{V_G}, 3, v16
    s_lshl_b32 s30, s{S_PRB}, 2
    s_add_u32 s30, s30, s3
    s_lshl_b32 s30, s30, 14
    s_lshl_b32 s31, s{S_PCB}, 7
    s_add_u32 s30, s30, s31""")
    for k in range(4):
        a(f"buffer_load_dwordx2 {vr(RES+2*k,2)}, v16, s[84:87], s30 offen offset:{32*k}")
    vm.add("xt", 4)
    def job_params_A():
        P = 30; SR = 88
        a("s_cmp_ge_u32 s2, 128")
        a("s_cbranch_scc1 LJA_d")
        a("s_cmp_ge_u32 s2, 96")
        a("s_cbranch_scc1 LJA_o")
        make_srd(a, SR, 70, 512*1536*2)
        a(f"""s_lshr_b32 s46, s2, 2
        s_and_b32 s47, s2, 3
        s_mov_b32 s{P}, 3072
        s_mul_i32 s{P+1}, s47, {128*3072}
        s_lshl_b32 s48, s46, 7
        s_add_u32 s{P+1}, s{P+1}, s48
        s_lshl_b32 s48, s46, 2
        s_add_u32 s48, s48, s3
        s_lshr_b32 s49, s48, 5
        s_and_b32 s50, s48, 31
        s_lshr_b32 s51, s50, 1
        s_and_b32 s50, s50, 1
        s_lshl_b32 s49, s49, 1
        s_add_u32 s49, s49, s50
        s_lshl_b32 s{P+2}, s51, 4
        s_lshl_b32 s50, s47, 2
        s_add_u32 s{P+2}, s{P+2}, s50
        s_mul_i32 s{P+2}, s{P+2}, 6
        s_add_u32 s{P+2}, s{P+2}, s49
        s_lshl_b32 s{P+2}, s{P+2}, 10
        s_add_u32 s{P+2}, s{P+2}, {hex(WQKVP)}
        s_mov_b32 s{P+3}, 6144
        s_mov_b32 s{P+4}, 0
        s_mul_i32 s{P+5}, s51, 6
        s_add_u32 s{P+5}, s{P+5}, s49
        s_lshl_b32 s{P+5}, s{P+5}, 9
        s_lshl_b32 s50, s47, 7
        s_add_u32 s{P+5}, s{P+5}, s50
        s_add_u32 s{P+5}, s{P+5}, {hex(CSQKV)}
        s_branch LJA_done""")
        a.label("LJA_o")
        make_srd(a, SR, 72, 512*512*2)
        a(f"""s_sub_u32 s46, s2, 96
        s_and_b32 s47, s46, 3
        s_lshr_b32 s46, s46, 2
        s_mov_b32 s{P}, 1024
        s_lshl_b32 s{P+1}, s47, 17
        s_lshl_b32 s48, s46, 7
        s_add_u32 s{P+1}, s{P+1}, s48
        s_lshl_b32 s{P+2}, s46, 4
        s_lshl_b32 s50, s47, 2
        s_add_u32 s{P+2}, s{P+2}, s50
        s_lshl_b32 s{P+2}, s{P+2}, 2
        s_add_u32 s{P+2}, s{P+2}, s3
        s_lshl_b32 s{P+2}, s{P+2}, 10
        s_add_u32 s{P+2}, s{P+2}, {hex(WOP)}
        s_mov_b32 s{P+3}, 4096
        s_mov_b32 s{P+4}, 1
        s_mov_b32 s{P+5}, 0
        s_branch LJA_done""")
        a.label("LJA_d")
        make_srd(a, SR, 74, 1792*512*2)
        a(f"""s_sub_u32 s46, s2, 128
        s_and_b32 s47, s46, 7
        s_lshr_b32 s46, s46, 3
        s_mov_b32 s{P}, 1024
        s_mul_i32 s{P+1}, s46, {112*1024}
        s_lshl_b32 s48, s47, 7
        s_add_u32 s{P+1}, s{P+1}, s48
        s_lshl_b32 s{P+2}, s47, 4
        s_add_u32 s{P+2}, s{P+2}, s46
        s_mul_i32 s{P+2}, s{P+2}, {14*1024}
        s_add_u32 s{P+2}, s{P+2}, {hex(WDP)}
        s_mov_b32 s{P+3}, 4096
        s_mov_b32 s{P+4}, 2
        s_mov_b32 s{P+5}, 0""")
        a.label("LJA_done")
    def job_params_B():
        P = 38; SR = 92
        make_srd(a, SR, 76, 512*1792*2)
        a("s_mov_b32 s46, s2")
        a("s_mov_b32 s52, 0")
        a("s_cmp_lt_u32 s2, 112")
        a("s_cbranch_scc1 LJB_g")
        a("s_sub_u32 s46, s2, 112")
        a("s_mov_b32 s52, 1")
        a(f"s_mov_b32 s{SR}, s78")
        a(f"s_mov_b32 s{SR+1}, s79")
        a.label("LJB_g")
        a(f"""s_and_b32 s47, s46, 3
        s_lshr_b32 s46, s46, 2
        s_mov_b32 s{P}, 3584
        s_mul_i32 s{P+1}, s47, {128*3584}
        s_lshl_b32 s48, s46, 7
        s_add_u32 s{P+1}, s{P+1}, s48
        s_lshl_b32 s48, s46, 2
        s_add_u32 s48, s48, s3
        s_mul_i32 s51, s48, 147
        s_lshr_b32 s51, s51, 10
        s_mul_i32 s49, s51, 7
        s_sub_u32 s49, s48, s49
        s_lshl_b32 s49, s49, 1
        s_add_u32 s49, s49, s52
        s_mul_i32 s{P+2}, s51, 224
        s_add_u32 s{P+2}, s{P+2}, s49
        s_mov_b32 s{P+3}, 8192
        s_cmp_lt_u32 s49, 8
        s_cbranch_scc1 LJB_a
        s_add_u32 s{P+2}, s{P+2}, 120
        s_mov_b32 s{P+3}, 6144""")
        a.label("LJB_a")
        a(f"""s_lshl_b32 s{P+2}, s{P+2}, 10
        s_lshl_b32 s50, s{P+3}, 2
        s_mul_i32 s50, s50, s47
        s_add_u32 s{P+2}, s{P+2}, s50
        s_add_u32 s{P+2}, s{P+2}, {hex(WGUP)}
        s_mov_b32 s{P+4}, 0
        s_mul_i32 s{P+5}, s51, 14
        s_add_u32 s{P+5}, s{P+5}, s49
        s_lshl_b32 s{P+5}, s{P+5}, 9
        s_lshl_b32 s50, s47, 7
        s_add_u32 s{P+5}, s{P+5}, s50
        s_add_u32 s{P+5}, s{P+5}, {hex(CSGU)}""")
    def job_dma(P, SR, lds, tag):
        a(f"""v_lshrrev_b32 v17, 3, v{V_LANE}
        v_mul_lo_u32 v17, v17, s{P}
        v_and_b32 v18, 7, v{V_LANE}
        v_lshl_add_u32 v17, v18, 4, v17
        s_lshl_b32 s46, s{P}, 3
        s_lshl_b32 s47, s3, 2
        s_mul_i32 s47, s47, s46
        s_add_u32 s47, s47, s{P+1}
        s_lshl_b32 s48, s3, 12
        s_add_u32 s48, s48, {lds}""")
        for i in range(4):
            a("s_mov_b32 m0, s48")
            a("s_add_u32 s48, s48, 1024")
            a(f"buffer_load_dwordx4 v17, s[{SR}:{SR+3}], s47 offen lds")
            a("s_add_u32 s47, s47, s46")
        vm.add(tag, 4)
    job_params_A()
    job_dma(30, 88, 0, "ja")
    a("s_cmp_ge_u32 s2, 224")
    a("s_cbranch_scc1 LJB_skip")
    job_params_B()
    save = list(vm.seq)
    job_dma(38, 92, 16384, "jb")
    vm.seq = save
    a.label("LJB_skip")
    a(f"""v_lshrrev_b32 v18, 2, v{V_T}
    v_and_b32 v19, 3, v{V_T}
    v_lshlrev_b32 v19, 3, v19
    s_lshl_b32 s46, s3, 5
    v_add_u32 v19, s46, v19
    v_lshl_add_u32 v20, v{V_G}, 2, v18
    v_lshrrev_b32 v21, 1, v{V_G}
    v_lshlrev_b32 v21, 4, v21
    v_and_b32 v22, 1, v{V_G}
    v_lshl_add_u32 v21, v22, 2, v21
    v_add_u32 v21, v21, v18
    v_lshl_add_u32 v20, v20, 7, v19
    v_lshl_add_u32 v21, v21, 7, v19
    v_lshlrev_b32 v23, 3, v{V_T}""")
    for i in range(4): a(f"v_mov_b32 v{24+i}, 0x3f803f80")
    for r in range(30, 44): a(f"s_mov_b32 s{r+16+4}, s{r}") if False else None
    a("s_cmp_lg_u32 s3, 0")
    a("s_cbranch_scc1 LPN_done")
    a("v_mov_b32 v7, 0")
    a("s_mov_b32 s46, 0")
    a.label("LPN_loop")
    a("buffer_load_dword v6, v7, s[80:83], 0 offen sc1")
    a("s_add_u32 s46, s46, 1")
    a("s_waitcnt vmcnt(0)")
    a(f"v_readfirstlane_b32 s{S_NONCE}, v6")
    a(f"s_cmp_gt_u32 s46, {POLL_LIMIT}")
    a("s_cbranch_scc1 LPN_done")
    a(f"s_cmp_eq_u32 s{S_NONCE}, 0")
    a("s_cbranch_scc1 LPN_loop")
    a.label("LPN_done")
    def job_std(P, lds, base_reg_sel, lbl):
        for mode in (0, 1):
            if mode == 1:
                a.label(f"{lbl}_pi2")
            br = 20 if mode == 0 else 21
            for s_ in range(4):
                a(f"ds_read_b64_tr_b16 {vr(32+4*s_,2)}, v{br} offset:{lds + 4096*s_}")
                a(f"ds_read_b64_tr_b16 {vr(34+4*s_,2)}, v{br} offset:{lds + 4096*s_ + (2048 if mode == 0 else 1024)}")
            a(f"s_mov_b32 s46, s{P+2}")
            for s_ in range(4):
                a(f"s_waitcnt lgkmcnt({2*(3-s_)})")
                a(f"buffer_store_dwordx4 {vr(32+4*s_)}, v{V_L16}, s[8:11], s46 offen sc1")
                if mode == 0:
                    c = "v[28:31]" if s_ else "0"
                    a(f"v_mfma_f32_16x16x32_bf16 v[28:31], v[24:27], {vr(32+4*s_)}, {c}")
                a(f"s_add_u32 s46, s46, s{P+3}")
            if mode == 0:
                a("s_nop 7")
                build_csfrag(a, 28, 48, 50, None)
                a("s_mov_b64 exec, 0xffff")
                a(f"buffer_store_dwordx2 v[48:49], v23, s[8:11], s{P+5} offen sc1")
                a("s_mov_b64 exec, -1")
            a(f"s_branch {lbl}_end")
            if base_reg_sel == "pi1only": break
    vm.wait(a, "ja")
    a("s_barrier")
    a("s_cmp_eq_u32 s34, 1")
    a("s_cbranch_scc1 LJA_pi2")
    a("s_cmp_eq_u32 s34, 2")
    a("s_cbranch_scc1 LJA_dn")
    job_std(30, 0, "both", "LJA")
    a.label("LJA_dn")
    for p in range(3):
        a(f"ds_read_b64_tr_b16 {vr(32+4*p,2)}, v20 offset:{2048*(2*p)}")
        a(f"ds_read_b64_tr_b16 {vr(34+4*p,2)}, v20 offset:{2048*(2*p+1)}")
    a(f"ds_read_b64_tr_b16 {vr(44,2)}, v20 offset:{2048*6}")
    a("""s_lshl_b32 s46, s3, 10
    s_add_u32 s46, s46, s32
    s_lshr_b32 s47, s3, 1
    s_lshl_b32 s47, s47, 10
    s_and_b32 s48, s3, 1
    s_lshl_b32 s48, s48, 3
    s_add_u32 s47, s47, s48
    s_add_u32 s47, s47, s32
    s_add_u32 s47, s47, 12288
    s_waitcnt lgkmcnt(0)""")
    for p in range(3):
        a(f"buffer_store_dwordx4 {vr(32+4*p)}, v{V_L16}, s[8:11], s46 offen sc1")
        a("s_add_u32 s46, s46, 4096")
    a(f"buffer_store_dwordx2 {vr(44,2)}, v{V_L16}, s[8:11], s47 offen sc1")
    a.label("LJA_end")
    out_addrs(XIN, STA, 0)
    store_x_and_stats()
    a("s_waitcnt vmcnt(0)")
    vm.reset()
    a("s_barrier")
    a("s_mov_b32 s48, s40")
    a("s_mov_b32 s49, s41")
    flag_store(f"s_lshl_b32 s40, s35, 8\ns_lshl_b32 s41, s36, 2\ns_add_u32 s40, s40, s41\ns_add_u32 s40, s40, {hex(FLG + 4*4096)}")
    flag_store(f"s_lshl_b32 s40, s2, 2\ns_add_u32 s40, s40, {hex(FW1)}")
    a("s_mov_b32 s40, s48")
    a("s_mov_b32 s41, s49")
    a("s_cmp_ge_u32 s2, 224")
    a("s_cbranch_scc1 LJB_end")
    job_std(38, 16384, "pi1only", "LJB")
    a.label("LJB_end")
    a("s_waitcnt vmcnt(0)")
    a("s_barrier")
    flag_store(f"s_lshl_b32 s40, s2, 2\ns_add_u32 s40, s40, {hex(FW2)}")
    stamp("P done")
    poll_wide(FW1, 24, 16)
    a("s_barrier")
    qkv_w_dma()

    a.label("LM_layer")
    cs_load(6, CSQKV, S_QCB, QCF)
    poll(4, S_QRB, 16, prev_layer=True)
    vm.reset()
    stamp("qkv polled")
    a(f"s_lshl_b32 s30, s{S_QRB}, 2")
    a("s_add_u32 s30, s30, s3")
    a("s_lshl_b32 s33, s30, 15")
    a(f"s_add_u32 s33, s33, {hex(XIN)}")
    a(f"s_add_u32 s33, s33, s{S_LOFF}")
    def xload(s, tag="x"):
        a(f"buffer_load_dwordx4 {ar(8*s)}, v{V_L16}, s[8:11], s33 offen offset:{2048*(s%2)} sc1")
        a(f"buffer_load_dwordx4 {ar(8*s+4)}, v{V_L16}, s[8:11], s33 offen offset:{2048*(s%2)+1024} sc1")
        if s % 2 == 1: a("s_add_u32 s33, s33, 4096")
        vm.add(f"{tag}{s}", 2)
    def stats_load(base, dst):
        a("s_lshl_b32 s31, s30, 11")
        a(f"s_add_u32 s31, s31, {hex(base)}")
        a(f"s_add_u32 s31, s31, s{S_LOFF}")
        for tt in range(2):
            a(f"buffer_load_dwordx2 {vr(dst+4*tt,2)}, v{V_ST}, s[8:11], s31 offen offset:{1024*tt} sc1")
            a(f"buffer_load_dwordx2 {vr(dst+4*tt+2,2)}, v{V_ST}, s[8:11], s31 offen offset:{1024*tt+128} sc1")
        vm.add("st", 4)
    PX = 8
    for s in range(2): xload(s)
    QST = 132
    stats_load(STA, QST)
    for s in range(2, PX): xload(s)
    def acc(tile, tt): return 16 + (tile*2+tt)*4
    def wf(s, i): return 64 + ((s&1)*6 + i)*4
    NM, RS, NF, RSR = 140, 142, 144, 148
    vm.wait(a, "x0")
    a("s_barrier")
    stamp("qkv start")
    for i in range(6): lds_rd(wf(0,i), i*1024)
    for s in range(16):
        vm.wait(a, f"x{s}")
        for i in range(6):
            if s < 15:
                lds_rd(wf(s+1,i), (s+1)*6144 + i*1024)
                a("s_waitcnt lgkmcnt(6)")
            else:
                a(f"s_waitcnt lgkmcnt({5-i})")
            for tt in range(2):
                c = vr(acc(i,tt)) if s else "0"
                if i < 4: a(f"v_mfma_f32_16x16x32_bf16 {vr(acc(i,tt))}, {vr(wf(s,i))}, {ar(8*s+4*tt)}, {c}")
                else: a(f"v_mfma_f32_16x16x32_bf16 {vr(acc(i,tt))}, {ar(8*s+4*tt)}, {vr(wf(s,i))}, {c}")
            if i == 2 and s + PX < 16: xload(s + PX)
        if s == 3:
            stats_finish(a, [QST, QST+4], [156,157,158,159], [NM, NM+1], [RS, RS+1])
            for tt in range(2): build_nmfrag(a, NM+tt, NF+2*tt, 156, V_MASK)
            a("s_lshl_b32 s34, s3, 8")
            a(f"s_add_u32 s34, s34, {SCR}")
            a(f"v_lshl_add_u32 v156, v{V_T}, 2, s34")
            a(f"v_lshl_add_u32 v157, v{V_G}, 4, s34")
            a(f"ds_write_b32 v156, v{RS}")
            a(f"ds_write_b32 v156, v{RS+1} offset:64")
            a("s_waitcnt lgkmcnt(0)")
            a(f"ds_read_b128 {vr(RSR)}, v157")
            a(f"ds_read_b128 {vr(RSR+4)}, v157 offset:64")
            a("s_waitcnt lgkmcnt(0)")
        if s == 8:
            a(f"""v_lshrrev_b32 v160, 1, v{V_G}
            v_lshlrev_b32 v160, 9, v160
            v_and_b32 v163, 1, v{V_G}
            v_lshl_add_u32 v161, v163, 8, v160
            v_lshl_add_u32 v161, v{V_T}, 4, v161
            v_lshrrev_b32 v162, 2, v{V_T}
            v_lshlrev_b32 v162, 3, v162
            v_lshl_add_u32 v162, v163, 2, v162
            v_and_b32 v163, 3, v{V_T}
            v_add_u32 v162, v162, v163
            v_lshl_add_u32 v162, v162, 4, v160""")
            a(f"v_mul_f32 v{NM}, {f32hex(0.25*LOG2E)}, v{RS}")
            a(f"v_mul_f32 v{NM+1}, {f32hex(0.25*LOG2E)}, v{RS+1}")
            a(f"s_lshl_b32 s31, s{S_QCB}, 7")
            a("s_add_u32 s31, s31, s30")
            a("s_lshl_b32 s31, s31, 10")
            a(f"s_add_u32 s31, s31, s{S_LOFF}")
    order = (2, 3, 4, 5, 0, 1)
    for i in order:
        for tt in range(2):
            if i < 4: a(f"v_mfma_f32_16x16x16_bf16 {vr(acc(i,tt))}, {vr(QCF+2*i,2)}, {vr(NF+2*tt,2)}, {vr(acc(i,tt))}")
            else: a(f"v_mfma_f32_16x16x16_bf16 {vr(acc(i,tt))}, {vr(NF+2*tt,2)}, {vr(QCF+2*i,2)}, {vr(acc(i,tt))}")
    stamp("qkv mfma done")
    for k, tile in enumerate(order):
        which, hh = tile >> 1, tile & 1
        base = [QF, KF, VF][which] + hh*65536
        a(f"s_add_u32 s32, s31, {hex(base)}")
        if k >= 4: a("s_nop 3")
        for tt in range(2):
            b = acc(tile, tt)
            for r in range(4):
                sc = (NM+tt) if which == 0 else (RS+tt) if which == 1 else (RSR+4*tt+r)
                a(f"v_mul_f32 v{b+r}, v{sc}, v{b+r}")
        d = 64 + tile*4
        for tt in range(2):
            b = acc(tile, tt)
            a(f"v_cvt_pk_bf16_f32 v{d+2*tt}, v{b}, v{b+1}")
            a(f"v_cvt_pk_bf16_f32 v{d+2*tt+1}, v{b+2}, v{b+3}")
        if which < 2:
            a("s_nop 1")
            a(f"v_permlane16_swap_b32 v{d}, v{d+2}")
            a(f"v_permlane16_swap_b32 v{d+1}, v{d+3}")
            a(f"buffer_store_dwordx4 {vr(d)}, v{161+which}, s[8:11], s32 offen sc1")
            vm.add("o", 1)
        else:
            a(f"buffer_store_dwordx4 {vr(d)}, v{V_L16}, s[8:11], s32 offen sc1")
            vm.add("o", 1)
    signal("o", 0, S_QCB, S_QRB)
    stamp("qkv signaled")

    S = lambda u: 72 + 16*(u & 3)
    C = lambda u: 136 + 16*(u & 1)
    O = lambda u: 168 + 16*(u & 1)
    Q = lambda u: 16 + 4*(u & 1)
    KFR = lambda t: 24 + 4*(t & 3)
    V0 = lambda t: 40 + 8*(t & 3)
    V1 = lambda t: 44 + 8*(t & 3)
    IDX, KA, VA0, VA1 = 200, 201, 202, 203
    VB = 65536; VST = 1056
    a(f"""v_and_b32 v24, 31, v{V_LANE}
    v_lshrrev_b32 v25, 1, v24
    s_lshl_b32 s30, s3, 4
    v_add_u32 v25, s30, v25
    v_mul_u32_u24 v25, {VST}, v25
    v_and_b32 v28, 1, v{V_LANE}
    v_lshl_add_u32 v25, v28, 4, v25
    v_add_u32 v25, {VB+1024}, v25
    v_mul_u32_u24 v28, 0x3f80, v28
    v_lshl_or_b32 v28, v28, 16, v28
    v_mov_b32 v29, v28
    v_mov_b32 v30, v28
    v_mov_b32 v31, v28
    ds_write_b128 v25, v[28:31]""")
    a(f"""v_lshrrev_b32 v32, 5, v{V_LANE}
    v_lshlrev_b32 v33, 8, v32
    v_lshl_add_u32 v33, v24, 4, v33
    v_add_u32 v33, {VB}, v33
    v_and_b32 v34, 27, v24
    v_cmp_eq_u32 vcc, 16, v34
    v_mov_b32 v34, {VB+1024}
    v_mov_b32 v35, {VB+1040}
    v_cndmask_b32 v34, v34, v35, vcc
    v_cmp_gt_u32 vcc, 16, v24
    v_subrev_u32 v35, 0x200, v34
    s_nop 0
    v_cndmask_b32 v204, v34, v33, vcc
    v_cndmask_b32 v205, v35, v33, vcc
    v_mov_b32 v{IDX}, 0xdddddddd
    s_lshr_b32 s35, s{S_HEAD}, 1""")
    for i in range(16):
        a(f"v_mov_b32 v{O(0)+i}, 0")
        a(f"v_mov_b32 v{O(1)+i}, 0")
        a(f"v_mov_b32 v{S(3)+i}, 0")
    a(f"""s_lshl_b32 s30, s{S_HEAD}, 16
    s_add_u32 s30, s30, s{S_LOFF}
    s_lshl_b32 s31, s{S_QB}, 3
    s_lshl_b32 s32, s3, 1
    s_add_u32 s31, s31, s32
    s_lshl_b32 s31, s31, 10
    s_add_u32 s31, s31, s30""")
    a(f"s_add_u32 s31, s31, {hex(QF)}")
    a("s_lshl_b32 s32, s3, 10")
    a(f"s_mul_i32 s33, s3, {VST}")
    a(f"s_add_u32 s33, s33, {VB}")
    a("s_add_u32 s36, s30, s32")
    a(f"s_add_u32 s37, s36, {hex(VF)}")
    a(f"s_add_u32 s36, s36, {hex(KF)}")
    a(f"""s_lshl_b32 s56, s{S_PCB}, 4
    s_lshl_b32 s57, s3, 2
    s_add_u32 s56, s56, s57
    s_lshl_b32 s56, s56, 12""")
    a(f"s_add_u32 s56, s56, {hex(WOP)}")
    a(f"s_mul_i32 s54, s{S_PCB}, 56")
    a("s_mul_i32 s55, s3, 14")
    a("s_add_u32 s54, s54, s55")
    a("s_lshl_b32 s54, s54, 12")
    a(f"s_add_u32 s54, s54, {hex(WDP)}")
    a(f"s_mul_i32 s50, s{S_GCB}, {224*1024}")
    a(f"s_add_u32 s50, s50, {hex(WGUP)}")
    a("s_lshl_b32 s51, s3, 13")
    a("s_add_u32 s50, s50, s51")
    a(f"s_cmp_lg_u32 s{S_LAYER}, 0")
    a("s_cbranch_scc1 LA_wok")
    poll_wide(FW1, 64, 72)
    poll_wide(FW2, 64, 72)
    a("s_barrier")
    a.label("LA_wok")
    for k in range(16):
        s_, ct = divmod(k, 4)
        a(f"buffer_load_dwordx4 {ar(16*s_+4*ct)}, v{V_L16}, s[8:11], s56 offen offset:{1024*ct} sc1")
        if ct == 3: a("s_add_u32 s56, s56, 4096")
    vm.add("wo", 16)
    poll(0, 35, 16)
    stamp("attn polled")
    def kv_round(r):
        a("s_mov_b32 m0, s32")
        a("s_add_u32 s32, s32, 4096")
        a(f"buffer_load_dwordx4 v{V_L16}, s[8:11], s36 offen sc1 lds")
        a("s_mov_b32 m0, s33")
        a(f"s_add_u32 s33, s33, {4*VST}")
        a(f"buffer_load_dwordx4 v{V_L16}, s[8:11], s37 offen sc1 lds")
        a("s_add_u32 s36, s36, 4096")
        a("s_add_u32 s37, s37, 4096")
        vm.add(f"kv{r}", 2)
    a(f"buffer_load_dwordx4 {vr(Q(0))}, v{V_L16}, s[8:11], s31 offen sc1")
    a(f"buffer_load_dwordx4 {vr(Q(1))}, v{V_L16}, s[8:11], s31 offen offset:1024 sc1")
    vm.add("q", 2)
    for r in range(3): kv_round(r)
    CH = 32768; NSLOT = 5
    SLOT = [65536, 98304, 131072, 0, 32768]
    def gu_dma(c):
        sl = SLOT[c % NSLOT]
        a(f"s_add_u32 s52, s51, {sl}")
        a("s_mov_b32 m0, s52")
        a("s_add_u32 s53, s50, 4096")
        for i in range(4): a(f"buffer_load_dwordx4 v{V_L16}, s[8:11], s50 offen offset:{1024*i} sc1 lds")
        a(f"s_add_u32 s52, s51, {sl+4096}")
        a("s_mov_b32 m0, s52")
        a(f"s_add_u32 s50, s50, {CH}")
        for i in range(4): a(f"buffer_load_dwordx4 v{V_L16}, s[8:11], s53 offen offset:{1024*i} sc1 lds")
        vm.add(f"gw{c}", 8)
    def WDR(k):
        if k < 32: return ('a', 128 + 4*k)
        if k < 40: return ('v', 212 + 4*(k-32))
        return ('v', 128 + 4*(k-40))
    def wd_load(k):
        a(f"buffer_load_dwordx4 {R(WDR(k))}, v{V_L16}, s[8:11], s54 offen offset:{1024*(k%4)} sc1")
        if k % 4 == 3: a("s_add_u32 s54, s54, 4096")
        vm.add("wd", 1)
    a("s_mov_b32 s39, 0")
    vm.wait(a, "kv0")
    a("s_waitcnt lgkmcnt(0)")
    a("s_barrier")
    stamp("attn data")
    a(f"ds_read_b128 {vr(KFR(0))}, v{V_L16}")
    a("s_waitcnt lgkmcnt(0)")
    for q in range(2):
        a(f"v_mfma_f32_32x32x16_bf16 {vr(S(q),16)}, {vr(KFR(0))}, {vr(Q(q))}, 0")
    a("s_nop 12")
    for q in range(2):
        m = 206 + q
        if q: a("s_nop 3")
        a(f"v_max3_f32 v{m}, v{S(q)}, v{S(q)+1}, v{S(q)+2}")
        for i in range(3, 15, 2):
            a(f"v_max3_f32 v{m}, v{m}, v{S(q)+i}, v{S(q)+i+1}")
        a(f"v_max_f32 v{m}, v{m}, v{S(q)+15}")
    a.label("LA_restart")
    a("""v_mov_b32 v208, v206
    v_mov_b32 v209, v207
    s_nop 1
    v_permlane32_swap_b32 v206, v208
    v_permlane32_swap_b32 v207, v209
    s_nop 1
    v_max_f32 v206, v206, v208
    v_max_f32 v207, v207, v209""")
    a(f"v_mov_b32 v{KA}, v{V_L16}")
    a(f"v_mov_b32 v{VA0}, v204")
    a(f"v_mov_b32 v{VA1}, v205")
    for t in range(2):
        a(f"ds_read_b128 {vr(KFR(t))}, v{KA} offset:{1024*t}")
    a(f"ds_read_b128 {vr(V0(0))}, v{VA0}")
    a(f"ds_read_b128 {vr(V1(0))}, v{VA1} offset:512")
    a(f"ds_read_b128 {vr(V1(3))}, v{VA1} offset:512")
    for i in range(16): a(f"v_sub_f32 v{C(0)+i}, 0, v206")
    a("s_waitcnt lgkmcnt(0)")
    a("s_nop 0")
    a(f"v_mfma_f32_32x32x16_bf16 {vr(S(0),16)}, {vr(KFR(0))}, {vr(Q(0))}, {vr(C(0),16)}")
    for i in range(16): a(f"v_sub_f32 v{C(1)+i}, 0, v207")
    a("s_nop 1")
    a(f"v_mfma_f32_32x32x16_bf16 {vr(S(1),16)}, {vr(KFR(0))}, {vr(Q(1))}, {vr(C(1),16)}")
    def attn_body(mode):
        for u in range(16):
            t = u >> 1
            def ex(lo, hi):
                for i in range(lo, hi): a(f"v_exp_f32 v{S(u)+i}, v{S(u)+i}")
            ex(0, 4)
            a(f"v_smfmac_f32_32x32x32_bf16 {vr(O(u-1),16)}, {vr(V1((u-1)>>1))}, {vr(S(u-1)+8,8)}, v{IDX}")
            if u % 2 == 0:
                if mode == 1 and u == 2:
                    vm.wait(a, "kv2")
                    a("s_barrier")
                a("s_waitcnt lgkmcnt(0)")
                a(f"ds_read_b128 {vr(KFR(t+2))}, v{KA} offset:{1024*(t+2)}")
                a(f"ds_read_b128 {vr(V0(t+1))}, v{VA0} offset:{VST*(t+1)}")
                a(f"ds_read_b128 {vr(V1(t+1))}, v{VA1} offset:{VST*(t+1)+512}")
            ex(4, 10)
            a(f"v_mfma_f32_32x32x16_bf16 {vr(S(u+2),16)}, {vr(KFR((u+2)>>1))}, {vr(Q(u))}, {vr(C(u),16)}")
            if mode == 1 and u < 13: kv_round(3 + u)
            ex(10, 14)
            a(f"v_smfmac_f32_32x32x32_bf16 {vr(O(u),16)}, {vr(V0(t))}, {vr(S(u),8)}, v{IDX}")
            ex(14, 16)
        a(f"v_add_u32 v{KA}, 0x2000, v{KA}")
        a(f"v_add_u32 v{VA0}, {8*VST}, v{VA0}")
        a(f"v_add_u32 v{VA1}, {8*VST}, v{VA1}")
    a("s_mov_b32 s38, 8")
    a("s_cmp_lg_u32 s39, 0")
    a("s_cbranch_scc1 LA_loop")
    attn_body(1)
    vm.wait(a, "kv15")
    a("s_barrier")
    a("s_mov_b32 s38, 7")
    a.label("LA_loop")
    attn_body(0)
    a("s_sub_u32 s38, s38, 1")
    a("s_cmp_lg_u32 s38, 0")
    a("s_cbranch_scc1 LA_loop")
    a(f"v_smfmac_f32_32x32x32_bf16 {vr(O(1),16)}, {vr(V1(3))}, {vr(S(3)+8,8)}, v{IDX}")
    a(f"""v_and_b32 v24, 31, v{V_LANE}
    v_lshrrev_b32 v25, 4, v24
    v_lshlrev_b32 v25, 10, v25
    v_lshrrev_b32 v26, 5, v{V_LANE}
    v_lshl_add_u32 v25, v26, 8, v25
    v_lshl_add_u32 v25, v{V_T}, 4, v25
    s_lshl_b32 s30, s{S_QB}, 2
    s_add_u32 s30, s30, s3
    s_lshl_b32 s30, s30, 4
    s_lshr_b32 s31, s{S_HEAD}, 1
    s_add_u32 s30, s30, s31
    s_lshl_b32 s30, s30, 12
    s_and_b32 s31, s{S_HEAD}, 1
    s_lshl_b32 s31, s31, 9
    s_add_u32 s30, s30, s31
    s_add_u32 s30, s30, s{S_LOFF}""")
    a(f"s_add_u32 s30, s30, {hex(OF)}")
    a("s_waitcnt lgkmcnt(0)")
    stamp("attn loop done")
    a("s_cmp_lg_u32 s39, 0")
    a("s_cbranch_scc1 LA_fin")
    a("v_mov_b32 v208, 0x4e800000")
    a(f"v_max_f32 v209, v{O(0)+8}, v{O(1)+8}")
    a(f"v_add_f32 v210, v{O(0)+8}, v{O(1)+8}")
    a("v_cmp_nlt_f32 vcc, v209, v208")
    a("v_cmp_u_f32 s[40:41], v210, v210")
    a("s_nop 3")
    a("s_or_b64 vcc, vcc, s[40:41]")
    a("s_cbranch_vccz LA_fin")
    a("s_mov_b32 s39, 1")
    a("v_mov_b32 v206, 0xff800000")
    a("v_mov_b32 v207, 0xff800000")
    a(f"v_mov_b32 v{KA}, v{V_L16}")
    a("s_mov_b32 s38, 64")
    a.label("LA_maxloop")
    a(f"ds_read_b128 {vr(KFR(0))}, v{KA}")
    a("s_waitcnt lgkmcnt(0)")
    for q in range(2):
        a(f"v_mfma_f32_32x32x16_bf16 {vr(S(q),16)}, {vr(KFR(0))}, {vr(Q(q))}, 0")
    a("s_nop 15")
    a("s_nop 3")
    for q in range(2):
        for i in range(0, 16, 2):
            a(f"v_max3_f32 v{206+q}, v{206+q}, v{S(q)+i}, v{S(q)+i+1}")
    a(f"v_add_u32 v{KA}, 0x400, v{KA}")
    a("s_sub_u32 s38, s38, 1")
    a("s_cmp_lg_u32 s38, 0")
    a("s_cbranch_scc1 LA_maxloop")
    for i in range(16):
        a(f"v_mov_b32 v{O(0)+i}, 0")
        a(f"v_mov_b32 v{O(1)+i}, 0")
        a(f"v_mov_b32 v{S(3)+i}, 0")
    a("s_branch LA_restart")
    a.label("LA_fin")
    a(f"v_rcp_f32 v206, v{O(0)+8}")
    a(f"v_rcp_f32 v207, v{O(1)+8}")
    a("s_nop 0")
    for q in range(2):
        for i in range(8): a(f"v_mul_f32 v{O(q)+i}, v{206+q}, v{O(q)+i}")
        for i in range(4): a(f"v_cvt_pk_bf16_f32 v{28+4*q+i}, v{O(q)+2*i}, v{O(q)+2*i+1}")
        a(f"buffer_store_dwordx4 {vr(28+4*q)}, v25, s[8:11], s30 offen offset:{2048*q} sc1")
    vm.add("o", 2)
    signal("o", 1, S_QB, S_HEAD)
    stamp("attn signaled")

    for c in (0, 1, 2): gu_dma(c)
    def pacc(ct, i, base): return base + (i*4 + ct)*4
    a(f"""s_lshr_b32 s35, s{S_PRB}, 2
    s_lshl_b32 s30, s{S_PRB}, 4
    s_lshl_b32 s31, s3, 2
    s_add_u32 s30, s30, s31
    s_lshl_b32 s30, s30, 12
    s_add_u32 s30, s30, s{S_LOFF}""")
    a(f"s_add_u32 s30, s30, {hex(OF)}")
    poll(1, 35, 32)
    stamp("wo polled")
    for s in range(4):
        for i in range(4):
            a(f"buffer_load_dwordx4 {vr(16+16*s+4*i)}, v{VO[i]}, s[8:11], s30 offen sc1")
        a("s_add_u32 s30, s30, 4096")
        vm.add(f"of{s}", 4)
    def red_setup(red):
        for i in range(1, 4):
            a(f"s_xor_b32 s34, s3, {i}")
            a("s_mul_i32 s34, s34, 12288")
            a(f"s_add_u32 s34, s34, {red + (i-1)*4096}")
            a(f"v_add_u32 v{207+i}, s34, v{V_L16}")
        a("s_mul_i32 s34, s3, 12288")
        a(f"s_add_u32 s34, s34, {red}")
        a(f"v_add_u32 v211, s34, v{V_L16}")
    red_setup(RED_WO)
    for s in range(4):
        vm.wait(a, f"of{s}")
        for i in (1, 2, 3, 0):
            for ct in range(4):
                c = vr(pacc(ct,i,80)) if s else "0"
                a(f"v_mfma_f32_16x16x32_bf16 {vr(pacc(ct,i,80))}, {ar(16*s+4*ct)}, {vr(16+16*s+4*i)}, {c}")
    def reduce_and_residual(accbase, rdbase, scale_reg):
        for i in range(1, 4):
            if i == 3: a("s_nop 3")
            for ct in range(4):
                a(f"ds_write_b128 v{207+i}, {vr(pacc(ct,i,accbase))} offset:{ct*1024}")
        X = rdbase + 48
        for i in range(8):
            a(f"v_lshlrev_b32 v{X+2*i}, 16, v{RES+i}")
            a(f"v_and_b32 v{X+2*i+1}, 0xffff0000, v{RES+i}")
        a("s_waitcnt lgkmcnt(0)")
        a("s_barrier")
        for j in range(3):
            for ct in range(4):
                a(f"ds_read_b128 {vr(rdbase + (j*4+ct)*4)}, v211 offset:{j*4096 + ct*1024}")
        A0 = accbase
        a("s_waitcnt lgkmcnt(8)")
        for i in range(16): a(f"v_add_f32 v{A0+i}, v{A0+i}, v{rdbase+i}")
        a("s_waitcnt lgkmcnt(0)")
        for i in range(16): a(f"v_add_f32 v{rdbase+16+i}, v{rdbase+16+i}, v{rdbase+32+i}")
        for i in range(16): a(f"v_add_f32 v{A0+i}, v{A0+i}, v{rdbase+16+i}")
        for i in range(16):
            if scale_reg is not None: a(f"v_fma_f32 v{A0+i}, v{A0+i}, v{scale_reg}, v{X+i}")
            else: a(f"v_add_f32 v{A0+i}, v{A0+i}, v{X+i}")
            if i % 2 == 1: a(f"v_cvt_pk_bf16_f32 v{RES+i//2}, v{A0+i-1}, v{A0+i}")
    out_addrs(X1F, STB, 0)
    stamp("wo mfma done")
    reduce_and_residual(80, 144, None)
    store_x_and_stats()
    signal("o", 2, 35, 36)
    stamp("wo signaled")

    gu_dma(3); gu_dma(4)
    GCF = 160
    cs_load(14, CSGU, S_GCB, GCF)
    a(f"s_lshl_b32 s30, s{S_GRB}, 2")
    a("s_add_u32 s30, s30, s3")
    a("s_lshl_b32 s33, s30, 15")
    a(f"s_add_u32 s33, s33, {hex(X1F)}")
    a(f"s_add_u32 s33, s33, s{S_LOFF}")
    a(f"""s_lshr_b32 s34, s30, 1
    s_lshl_b32 s34, s34, 4
    s_add_u32 s34, s34, s{S_GCB}
    s_mul_i32 s34, s34, 14
    s_and_b32 s35, s30, 1
    s_add_u32 s36, s34, s35
    s_add_u32 s35, s36, s35
    s_lshl_b32 s35, s35, 10
    s_lshl_b32 s36, s36, 10
    s_add_u32 s35, s35, s{S_LOFF}
    s_add_u32 s36, s36, s{S_LOFF}""")
    a(f"s_add_u32 s35, s35, {hex(HF)}")
    a(f"s_add_u32 s36, s36, {hex(HF + 12288)}")
    vm.wait(a, "cs")
    poll(2, S_GRB, 16)
    stamp("gu polled")
    GST = 188
    for s in range(2): xload(s)
    stats_load(STB, GST)
    for s in range(2, PX): xload(s)
    NM, RS, NF = 196, 198, 200
    RING = 8; AHEAD = 6
    def gwf(n): return 128 + (n % RING)*4
    def rd(n): lds_rd(gwf(n), SLOT[(n // 32) % NSLOT] + (n % 32)*1024)
    TOT = 224
    def nmap(n):
        if n < 128: return divmod(n, 8)
        s_, t6 = divmod(n - 128, 6)
        return s_, 8 + t6
    def epi_pair(i, tt):
        G, U = acc(2*i, tt), acc(2*i+1, tt)
        L = [f"v_max_f32 v{G+r}, 0, v{G+r}" for r in range(4)] + [f"v_mul_f32 v{G+r}, v{G+r}, v{U+r}" for r in range(4)]
        if i < 6: d = U if i % 2 == 0 else acc(2*(i-1)+1, tt) + 2
        else: d = acc(13, 0) + 2*tt if tt == 0 else None
        if i == 6:
            d = 204 + 2*tt
        L += [f"v_cvt_pk_bf16_f32 v{d}, v{G}, v{G+1}", f"v_cvt_pk_bf16_f32 v{d+1}, v{G+2}, v{G+3}"]
        if i < 6 and i % 2 == 1:
            L.append(("ST", f"buffer_store_dwordx4 {vr(d-2)}, v{V_L16}, s[8:11], s35 offen offset:{1024*tt} sc1"))
            if tt == 1: L.append("s_add_u32 s35, s35, 4096")
        if i == 6 and tt == 1:
            L.append(("ST", f"buffer_store_dwordx4 v[204:207], v{V_L16}, s[8:11], s36 offen sc1"))
        return L
    def emit(x):
        if isinstance(x, tuple): a(x[1]); vm.add("o", 1)
        else: a(x)
    epiA = []
    for i in range(4):
        for tt in range(2): epiA += epi_pair(i, tt)
    stamp("gu start")
    for n in range(AHEAD): rd(n)
    wdk = 0
    for n in range(TOT):
        s, i = nmap(n)
        if n < 128 and i == 0: vm.wait(a, f"x{s}")
        m = n + AHEAD
        if m < TOT:
            if m % 32 == 0:
                c = m // 32
                if c in (2, 3):
                    a("s_barrier"); gu_dma(c+3)
                if c in (5, 6):
                    vm.wait(a, f"gw{c}"); a("s_barrier")
            rd(m)
            a(f"s_waitcnt lgkmcnt({AHEAD})")
        else:
            a(f"s_waitcnt lgkmcnt({TOT-1-n})")
        for tt in range(2):
            c = vr(acc(i,tt)) if s else "0"
            a(f"v_mfma_f32_16x16x32_bf16 {vr(acc(i,tt))}, {vr(gwf(n))}, {ar(8*s+4*tt)}, {c}")
        if n < 128 and i == 3 and s + PX < 16: xload(s + PX)
        if n == 40:
            stats_finish(a, [GST, GST+4], [204,205,206,207], [NM, NM+1], [RS, RS+1])
            for tt in range(2): build_nmfrag(a, NM+tt, NF+2*tt, 204, V_MASK)
        if n == 127:
            for i2 in range(8):
                for tt in range(2):
                    a(f"v_mfma_f32_16x16x16_bf16 {vr(acc(i2,tt))}, {vr(GCF+2*i2,2)}, {vr(NF+2*tt,2)}, {vr(acc(i2,tt))}")
        if n >= 132:
            for _ in range(2):
                if epiA: emit(epiA.pop(0))
        if n >= 100 and n % 3 == 0 and wdk < 40:
            wd_load(wdk); wdk += 1
    assert not epiA and wdk == 40, (len(epiA), wdk)
    for i in range(8, 14):
        for tt in range(2):
            a(f"v_mfma_f32_16x16x16_bf16 {vr(acc(i,tt))}, {vr(GCF+2*i,2)}, {vr(NF+2*tt,2)}, {vr(acc(i,tt))}")
    stamp("gu mfma done")
    for i in range(4, 7):
        for tt in range(2):
            for x in epi_pair(i, tt): emit(x)
    signal("o", 3, S_GRB, S_GCB)
    stamp("gu signaled")

    for k in range(40, 56): wd_load(k)
    a(f"""s_lshr_b32 s35, s{S_PRB}, 1
    s_lshl_b32 s49, s{S_PRB}, 2
    s_add_u32 s49, s49, s3
    s_lshl_b32 s49, s49, 10
    s_add_u32 s49, s49, s{S_LOFF}""")
    a(f"s_add_u32 s49, s49, {hex(STB)}")
    a(f"""s_mul_i32 s48, s{S_PRB}, 56
    s_mul_i32 s34, s3, 14
    s_add_u32 s48, s48, s34
    s_lshl_b32 s48, s48, 12
    s_add_u32 s48, s48, s{S_LOFF}""")
    a(f"s_add_u32 s48, s48, {hex(HF)}")
    red_setup(RED_DN)
    VH = [200, 201, 202, 203]
    for i in range(4):
        a(f"s_xor_b32 s34, s3, {i}")
        a("s_lshr_b32 s37, s34, 1")
        a("s_lshl_b32 s37, s37, 10")
        a("s_and_b32 s34, s34, 1")
        a("s_lshl_b32 s34, s34, 3")
        a("s_add_u32 s34, s34, s37")
        a(f"v_add_u32 v{VH[i]}, s34, v{V_L16}")
    poll(3, 35, 16)
    stamp("down polled")
    HD = 8
    def hload(s):
        half = (s % 4 == 3)
        for i in range(4):
            if half: a(f"buffer_load_dwordx2 {ar(16*(s%HD)+4*i,2)}, v{VH[i]}, s[8:11], s48 offen sc1")
            else: a(f"buffer_load_dwordx4 {ar(16*(s%HD)+4*i)}, v{VO[i]}, s[8:11], s48 offen sc1")
        a(f"s_add_u32 s48, s48, {2048 if half else 4096}")
        vm.add(f"h{s}", 4)
    HP = 6
    hload(0)
    a(f"buffer_load_dwordx2 v[192:193], v{V_ST}, s[8:11], s49 offen sc1")
    a(f"buffer_load_dwordx2 v[194:195], v{V_ST}, s[8:11], s49 offen offset:128 sc1")
    vm.add("st", 2)
    for s in range(1, HP): hload(s)
    for s in range(16):
        vm.wait(a, f"h{s}")
        cbl, p = divmod(s, 4)
        for i in (1, 2, 3, 0):
            for ct in range(4):
                c = vr(pacc(ct,i,16)) if s else "0"
                if p < 3:
                    a(f"v_mfma_f32_16x16x32_bf16 {vr(pacc(ct,i,16))}, {R(WDR(cbl*14+p*4+ct))}, {ar(16*(s%HD)+4*i)}, {c}")
                else:
                    w_ = WDR(cbl*14 + 12 + (ct >> 1))
                    a(f"v_mfma_f32_16x16x16_bf16 {vr(pacc(ct,i,16))}, {R((w_[0], w_[1]+2*(ct&1)),2)}, {ar(16*(s%HD)+4*i,2)}, {c}")
            if i == 1 and s + HP < 16: hload(s + HP)
        if s == 2:
            stats_finish(a, [192], [196, 197], [198], [199])
            a("v_mul_f32 v199, v199, v199")
            out_addrs(XIN, STA, LSTRIDE)
    stamp("down mfma done")
    reduce_and_residual(16, 80, 199)
    a(f"s_cmp_lg_u32 s{S_LAYER}, 0")
    a("s_cbranch_scc1 LM_final")
    store_x_and_stats()
    signal("o", 4, 35, 36)
    stamp("down signaled")
    qkv_w_dma()
    a(f"s_mov_b32 s{S_LAYER}, 1")
    a(f"s_mov_b32 s{S_LOFF}, {hex(LSTRIDE)}")
    a(f"s_mov_b32 s{S_FLG}, {hex(FLG + 10*4096)}")
    a("s_branch LM_layer")
    a.label("LM_final")
    a(f"""v_lshlrev_b32 v6, 10, v{V_T}
    v_lshl_add_u32 v6, v{V_G}, 3, v6
    s_lshl_b32 s30, s{S_PRB}, 2
    s_add_u32 s30, s30, s3
    s_lshl_b32 s30, s30, 14
    s_lshl_b32 s31, s{S_PCB}, 7
    s_add_u32 s30, s30, s31""")
    for ct in range(4):
        a(f"buffer_store_dwordx2 {vr(RES+2*ct,2)}, v6, s[12:15], s30 offen offset:{32*ct}")
    if STAMP:
        a("s_waitcnt vmcnt(0)")
        stamp("end")
        a("s_memrealtime s[98:99]")
        a("s_waitcnt lgkmcnt(0)")
        a("v_writelane_b32 v246, s96, 62")
        a("v_writelane_b32 v246, s98, 63")
        a("s_lshl_b32 s30, s2, 2")
        a("s_add_u32 s30, s30, s3")
        a("s_lshl_b32 s30, s30, 9")
        a(f"s_add_u32 s30, s30, {hex(DBGR)}")
        a(f"buffer_store_dword v246, v{V_L4}, s[8:11], s30 offen")
        a(f"buffer_store_dword v247, v{V_L4}, s[8:11], s30 offen offset:256")
    a.label("LM_end")
    a("s_endpgm")
    return kernel_desc(name, 512, 256)

def main(out_path):
    a = Asm()
    hdr = open("cdna_kernels/" + NAME + ".s.ref").read().split("; Override launch")[0]
    out = hdr
    if os.environ.get("LIST"):
        out += f"; @launch kernel={NAME}_kernel grid=(256,1,1) block=(256,1,1) lds=163840\n"
    else:
        out += "; @launch grid=(256,1,1) block=(256,1,1) lds=163840\n"
    out += '.amdgcn_target "amdgcn-amd-amdhsa--gfx950"\n.text\n'
    descs = [gen_main(a)]
    out += a.text()
    out += '.section .rodata,"a"\n' + "".join(descs)
    open(out_path, "w").write(out)
    if STAMP: open(out_path + ".stamps", "w").write("\n".join(STAMP_NAMES))

if __name__ == "__main__":
    main(sys.argv[1] if len(sys.argv) > 1 else "cdna_kernels/" + NAME + ".s")
```

```python
import sys, os, struct

NAME = "interleave_layers__softmax_full_mha__glu_gated_reglu__prompt"
MB = 1 << 20
WQKVP = 0 * MB
WOP   = 2 * MB
WGUP  = 3 * MB
WDP   = 7 * MB
CSQKV = 9 * MB
CSGU  = 9 * MB + 0x10000
FLG   = 9 * MB + 0x30000
DBGR  = 9 * MB + 0x40000
ACT0  = 10 * MB
LSTRIDE = 20 * MB
XIN, QF, KF, VF, OF, X1F, HF = [ACT0 + i*MB for i in (0, 2, 4, 6, 8, 10, 12)]
STA = ACT0 + 19*MB + 0x80000
STB = ACT0 + 19*MB + 0xC0000
WS_SIZE = ACT0 + 2*LSTRIDE + 4*MB
LOG2E = 1.4426950408889634
STAMP = int(os.environ.get("STAMP", "0"))
POLL_LIMIT = 100000

def f32hex(x): return "0x%08x" % struct.unpack("<I", struct.pack("<f", x))[0]

class Asm:
    def __init__(self): self.lines = []
    def __call__(self, s):
        for l in s.split("\n"):
            l = l.strip()
            if l: self.lines.append("    " + l)
    def label(self, l): self.lines.append(l + ":")
    def raw(self, s): self.lines.append(s)
    def text(self): return "\n".join(self.lines) + "\n"

class VM:
    def __init__(self): self.seq = []
    def add(self, tag, n=1): self.seq += [tag]*n
    def wait(self, a, tag):
        idxs = [i for i, t in enumerate(self.seq) if t == tag]
        if not idxs: return
        idx = idxs[-1]
        n = len(self.seq) - 1 - idx
        a(f"s_waitcnt vmcnt({min(n, 63)})")
        self.seq = self.seq[idx+1:]
    def reset(self): self.seq = []

def vr(b, n=4): return f"v[{b}:{b+n-1}]"
def ar(b, n=4): return f"a[{b}:{b+n-1}]"
def R(x, n=4):
    return f"{x[0]}[{x[1]}:{x[1]+n-1}]"

def kernel_begin(a, name):
    a.raw(f".globl {name}"); a.raw(".p2align 8"); a.raw(f".type {name},@function"); a.label(name)

def kernel_desc(name, nvgpr, accum, nsgpr=100):
    return f""".p2align 6
.amdhsa_kernel {name}
  .amdhsa_next_free_vgpr {nvgpr}
  .amdhsa_next_free_sgpr {nsgpr}
  .amdhsa_accum_offset {accum}
  .amdhsa_group_segment_fixed_size 0
  .amdhsa_kernarg_size 80
  .amdhsa_user_sgpr_count 2
  .amdhsa_user_sgpr_kernarg_segment_ptr 1
  .amdhsa_system_sgpr_workgroup_id_x 1
.end_amdhsa_kernel
"""

def make_srd(a, d, src, size):
    a(f"s_mov_b32 s{d}, s{src}"); a(f"s_mov_b32 s{d+1}, s{src+1}")
    a(f"s_mov_b32 s{d+2}, {hex(size)}"); a(f"s_mov_b32 s{d+3}, 0x00020000")

def reduce_g_multi(a, xs, ts):
    for x, t in zip(xs, ts): a(f"v_mov_b32 v{t}, v{x}")
    a("s_nop 1")
    for x, t in zip(xs, ts): a(f"v_permlane32_swap_b32 v{x}, v{t}")
    a("s_nop 1")
    for x, t in zip(xs, ts): a(f"v_add_f32 v{x}, v{x}, v{t}")
    for x, t in zip(xs, ts): a(f"v_mov_b32 v{t}, v{x}")
    a("s_nop 1")
    for x, t in zip(xs, ts): a(f"v_permlane16_swap_b32 v{x}, v{t}")
    a("s_nop 1")
    for x, t in zip(xs, ts): a(f"v_add_f32 v{x}, v{x}, v{t}")

def stats_finish(a, ps, tmps, outs_nm, outs_rs):
    for p in ps:
        a(f"v_add_f32 v{p}, v{p}, v{p+2}")
        a(f"v_add_f32 v{p+1}, v{p+1}, v{p+3}")
    xs = []
    for p in ps: xs += [p, p+1]
    reduce_g_multi(a, xs, tmps[:len(xs)])
    for p, nm, rs in zip(ps, outs_nm, outs_rs):
        a(f"v_mul_f32 v{nm}, {f32hex(-1.0/512)}, v{p}")
        a(f"v_mul_f32 v{p+2}, v{nm}, v{nm}")
        a(f"v_mov_b32 v{p+3}, {f32hex(1.0/512)}")
        a(f"v_fma_f32 v{p+2}, v{p+1}, v{p+3}, -v{p+2}")
        a(f"v_max_f32 v{p+2}, 0, v{p+2}")
        a(f"v_add_f32 v{p+2}, {f32hex(1e-5)}, v{p+2}")
        a(f"v_rsq_f32 v{rs}, v{p+2}")
    a("s_nop 0")

def build_csfrag(a, src, dst, tmp, mask):
    a(f"v_and_b32 v{tmp}, 0xffff0000, v{src}")
    a(f"v_sub_f32 v{src}, v{src}, v{tmp}")
    a(f"v_lshrrev_b32 v{dst}, 16, v{tmp}")
    a(f"v_or_b32 v{dst}, v{dst}, v{tmp}")
    a(f"v_cvt_pk_bf16_f32 v{dst+1}, v{src}, 0")

def build_nmfrag(a, nm, dst, tmp, mask):
    a(f"v_and_b32 v{tmp}, 0xffff0000, v{nm}")
    a(f"v_sub_f32 v{tmp+1}, v{nm}, v{tmp}")
    a(f"v_lshrrev_b32 v{dst+1}, 16, v{tmp}")
    a(f"v_cvt_pk_bf16_f32 v{dst}, v{tmp}, v{tmp+1}")

PREP_NWG = 608
def gen_prep(a):
    name = "prep_kernel"
    kernel_begin(a, name)
    a(f"s_cmp_ge_u32 s2, {PREP_NWG}")
    a("s_cbranch_scc1 LP_end")
    a("s_load_dwordx2 s[4:5], s[0:1], 72")
    a("s_load_dwordx4 s[68:71], s[0:1], 0")
    a("s_load_dwordx2 s[72:73], s[0:1], 16")
    a("s_load_dwordx4 s[76:79], s[0:1], 32")
    a("s_load_dwordx2 s[74:75], s[0:1], 48")
    a("""v_lshrrev_b32 v1, 6, v0
    v_and_b32 v2, 63, v0
    v_readfirstlane_b32 s3, v1
    v_and_b32 v3, 15, v2
    v_lshrrev_b32 v4, 4, v2
    v_lshlrev_b32 v10, 4, v2
    s_waitcnt lgkmcnt(0)""")
    make_srd(a, 8, 4, WS_SIZE)
    P = 30; SR = 12
    a("""s_cmp_ge_u32 s2, 480
    s_cbranch_scc1 LP_d
    s_cmp_ge_u32 s2, 256
    s_cbranch_scc1 LP_g
    s_cmp_ge_u32 s2, 224
    s_cbranch_scc1 LP_o
    s_cmp_ge_u32 s2, 96
    s_cbranch_scc1 LP_x""")
    make_srd(a, SR, 70, 512*1536*2)
    a(f"""s_lshr_b32 s46, s2, 2
    s_and_b32 s47, s2, 3
    s_mov_b32 s{P}, 3072
    s_mul_i32 s{P+1}, s47, {128*3072}
    s_lshl_b32 s48, s46, 7
    s_add_u32 s{P+1}, s{P+1}, s48
    s_lshl_b32 s48, s46, 2
    s_add_u32 s48, s48, s3
    s_lshr_b32 s49, s48, 5
    s_and_b32 s50, s48, 31
    s_lshr_b32 s51, s50, 1
    s_and_b32 s50, s50, 1
    s_lshl_b32 s49, s49, 1
    s_add_u32 s49, s49, s50
    s_lshl_b32 s{P+2}, s51, 4
    s_lshl_b32 s50, s47, 2
    s_add_u32 s{P+2}, s{P+2}, s50
    s_mul_i32 s{P+2}, s{P+2}, 6
    s_add_u32 s{P+2}, s{P+2}, s49
    s_lshl_b32 s{P+2}, s{P+2}, 10
    s_add_u32 s{P+2}, s{P+2}, {hex(WQKVP)}
    s_mov_b32 s{P+3}, 6144
    s_mov_b32 s{P+4}, 0
    s_mul_i32 s{P+5}, s51, 6
    s_add_u32 s{P+5}, s{P+5}, s49
    s_lshl_b32 s{P+5}, s{P+5}, 9
    s_lshl_b32 s50, s47, 7
    s_add_u32 s{P+5}, s{P+5}, s50
    s_add_u32 s{P+5}, s{P+5}, {hex(CSQKV)}
    s_branch LP_w""")
    a.label("LP_o")
    make_srd(a, SR, 72, 512*512*2)
    a(f"""s_sub_u32 s46, s2, 224
    s_and_b32 s47, s46, 3
    s_lshr_b32 s46, s46, 2
    s_mov_b32 s{P}, 1024
    s_lshl_b32 s{P+1}, s47, 17
    s_lshl_b32 s48, s46, 7
    s_add_u32 s{P+1}, s{P+1}, s48
    s_lshl_b32 s{P+2}, s46, 4
    s_lshl_b32 s50, s47, 2
    s_add_u32 s{P+2}, s{P+2}, s50
    s_lshl_b32 s{P+2}, s{P+2}, 2
    s_add_u32 s{P+2}, s{P+2}, s3
    s_lshl_b32 s{P+2}, s{P+2}, 10
    s_add_u32 s{P+2}, s{P+2}, {hex(WOP)}
    s_mov_b32 s{P+3}, 4096
    s_mov_b32 s{P+4}, 1
    s_mov_b32 s{P+5}, 0
    s_branch LP_w""")
    a.label("LP_d")
    make_srd(a, SR, 74, 1792*512*2)
    a(f"""s_sub_u32 s46, s2, 480
    s_and_b32 s47, s46, 7
    s_lshr_b32 s46, s46, 3
    s_mov_b32 s{P}, 1024
    s_mul_i32 s{P+1}, s46, {112*1024}
    s_lshl_b32 s48, s47, 7
    s_add_u32 s{P+1}, s{P+1}, s48
    s_lshl_b32 s{P+2}, s47, 4
    s_add_u32 s{P+2}, s{P+2}, s46
    s_mul_i32 s{P+2}, s{P+2}, {14*1024}
    s_add_u32 s{P+2}, s{P+2}, {hex(WDP)}
    s_mov_b32 s{P+3}, 4096
    s_mov_b32 s{P+4}, 2
    s_mov_b32 s{P+5}, 0
    s_branch LP_w""")
    a.label("LP_g")
    make_srd(a, SR, 76, 512*1792*2)
    a("""s_sub_u32 s46, s2, 256
    s_mov_b32 s52, 0
    s_cmp_lt_u32 s46, 112
    s_cbranch_scc1 LP_g2
    s_sub_u32 s46, s46, 112
    s_mov_b32 s52, 1""")
    a(f"s_mov_b32 s{SR}, s78")
    a(f"s_mov_b32 s{SR+1}, s79")
    a.label("LP_g2")
    a(f"""s_and_b32 s47, s46, 3
    s_lshr_b32 s46, s46, 2
    s_mov_b32 s{P}, 3584
    s_mul_i32 s{P+1}, s47, {128*3584}
    s_lshl_b32 s48, s46, 7
    s_add_u32 s{P+1}, s{P+1}, s48
    s_lshl_b32 s48, s46, 2
    s_add_u32 s48, s48, s3
    s_mul_i32 s51, s48, 147
    s_lshr_b32 s51, s51, 10
    s_mul_i32 s49, s51, 7
    s_sub_u32 s49, s48, s49
    s_lshl_b32 s49, s49, 1
    s_add_u32 s49, s49, s52
    s_mul_i32 s{P+2}, s51, 224
    s_add_u32 s{P+2}, s{P+2}, s49
    s_mov_b32 s{P+3}, 8192
    s_cmp_lt_u32 s49, 8
    s_cbranch_scc1 LP_g3
    s_add_u32 s{P+2}, s{P+2}, 120
    s_mov_b32 s{P+3}, 6144""")
    a.label("LP_g3")
    a(f"""s_lshl_b32 s{P+2}, s{P+2}, 10
    s_lshl_b32 s50, s{P+3}, 2
    s_mul_i32 s50, s50, s47
    s_add_u32 s{P+2}, s{P+2}, s50
    s_add_u32 s{P+2}, s{P+2}, {hex(WGUP)}
    s_mov_b32 s{P+4}, 0
    s_mul_i32 s{P+5}, s51, 14
    s_add_u32 s{P+5}, s{P+5}, s49
    s_lshl_b32 s{P+5}, s{P+5}, 9
    s_lshl_b32 s50, s47, 7
    s_add_u32 s{P+5}, s{P+5}, s50
    s_add_u32 s{P+5}, s{P+5}, {hex(CSGU)}""")
    a.label("LP_w")
    a(f"""v_lshrrev_b32 v17, 3, v2
    v_mul_lo_u32 v17, v17, s{P}
    v_and_b32 v18, 7, v2
    v_lshl_add_u32 v17, v18, 4, v17
    s_lshl_b32 s46, s{P}, 3
    s_lshl_b32 s47, s3, 2
    s_mul_i32 s47, s47, s46
    s_add_u32 s47, s47, s{P+1}
    s_lshl_b32 s48, s3, 12""")
    for i in range(4):
        a("s_mov_b32 m0, s48")
        a("s_add_u32 s48, s48, 1024")
        a(f"buffer_load_dwordx4 v17, s[{SR}:{SR+3}], s47 offen lds")
        a("s_add_u32 s47, s47, s46")
    a("""v_lshrrev_b32 v18, 2, v3
    v_and_b32 v19, 3, v3
    v_lshlrev_b32 v19, 3, v19
    s_lshl_b32 s46, s3, 5
    v_add_u32 v19, s46, v19
    v_lshl_add_u32 v20, v4, 2, v18
    v_lshrrev_b32 v21, 1, v4
    v_lshlrev_b32 v21, 4, v21
    v_and_b32 v22, 1, v4
    v_lshl_add_u32 v21, v22, 2, v21
    v_add_u32 v21, v21, v18
    v_lshl_add_u32 v20, v20, 7, v19
    v_lshl_add_u32 v21, v21, 7, v19
    v_lshlrev_b32 v23, 3, v3""")
    for i in range(4): a(f"v_mov_b32 v{24+i}, 0x3f803f80")
    a("""s_waitcnt vmcnt(0)
    s_barrier
    s_cmp_eq_u32 s34, 1
    s_cbranch_scc1 LP_pi2
    s_cmp_eq_u32 s34, 2
    s_cbranch_scc1 LP_dn""")
    for mode in (0, 1):
        if mode == 1: a.label("LP_pi2")
        br = 20 if mode == 0 else 21
        for s_ in range(4):
            a(f"ds_read_b64_tr_b16 {vr(32+4*s_,2)}, v{br} offset:{4096*s_}")
            a(f"ds_read_b64_tr_b16 {vr(34+4*s_,2)}, v{br} offset:{4096*s_ + (2048 if mode == 0 else 1024)}")
        a(f"s_mov_b32 s46, s{P+2}")
        for s_ in range(4):
            a(f"s_waitcnt lgkmcnt({2*(3-s_)})")
            a(f"buffer_store_dwordx4 {vr(32+4*s_)}, v10, s[8:11], s46 offen")
            if mode == 0:
                c = "v[28:31]" if s_ else "0"
                a(f"v_mfma_f32_16x16x32_bf16 v[28:31], v[24:27], {vr(32+4*s_)}, {c}")
            a(f"s_add_u32 s46, s46, s{P+3}")
        if mode == 0:
            a("s_nop 7")
            build_csfrag(a, 28, 48, 50, None)
            a("s_mov_b64 exec, 0xffff")
            a(f"buffer_store_dwordx2 v[48:49], v23, s[8:11], s{P+5} offen")
        a("s_branch LP_end")
    a.label("LP_dn")
    for p in range(3):
        a(f"ds_read_b64_tr_b16 {vr(32+4*p,2)}, v20 offset:{2048*(2*p)}")
        a(f"ds_read_b64_tr_b16 {vr(34+4*p,2)}, v20 offset:{2048*(2*p+1)}")
    a(f"ds_read_b64_tr_b16 {vr(44,2)}, v20 offset:{2048*6}")
    a("""s_lshl_b32 s46, s3, 10
    s_add_u32 s46, s46, s32
    s_lshr_b32 s47, s3, 1
    s_lshl_b32 s47, s47, 10
    s_and_b32 s48, s3, 1
    s_lshl_b32 s48, s48, 3
    s_add_u32 s47, s47, s48
    s_add_u32 s47, s47, s32
    s_add_u32 s47, s47, 12288
    s_waitcnt lgkmcnt(0)""")
    for p in range(3):
        a(f"buffer_store_dwordx4 {vr(32+4*p)}, v10, s[8:11], s46 offen")
        a("s_add_u32 s46, s46, 4096")
    a(f"buffer_store_dwordx2 {vr(44,2)}, v10, s[8:11], s47 offen")
    a("s_branch LP_end")
    a.label("LP_x")
    make_srd(a, 12, 68, 2048*512*2)
    a("""s_sub_u32 s23, s2, 96
    s_lshl_b32 s24, s23, 14
    s_lshl_b32 s25, s3, 8
    s_add_u32 s24, s24, s25
    v_lshlrev_b32 v5, 10, v3
    v_lshl_add_u32 v5, v4, 3, v5""")
    for s in range(4):
        a(f"buffer_load_dwordx2 {vr(32+4*s,2)}, v5, s[12:15], s24 offen offset:{64*s}")
        a(f"buffer_load_dwordx2 {vr(34+4*s,2)}, v5, s[12:15], s24 offen offset:{64*s+32}")
    a("""s_lshr_b32 s26, s23, 1
    s_lshl_b32 s26, s26, 4
    s_lshl_b32 s27, s3, 2
    s_add_u32 s26, s26, s27
    s_lshl_b32 s26, s26, 1
    s_and_b32 s27, s23, 1
    s_add_u32 s26, s26, s27
    s_lshl_b32 s26, s26, 10""")
    a(f"s_add_u32 s26, s26, {hex(XIN)}")
    a("s_add_u32 s27, s26, 4096")
    a("v_mov_b32 v12, 0x3f803f80")
    for i in range(4): a(f"v_mov_b32 v{16+i}, 0")
    a("s_cmp_ge_u32 s23, 10")
    a("s_cbranch_scc1 LP_nz")
    a("s_lshl_b32 s28, s23, 2")
    a("s_add_u32 s28, s28, s3")
    a("s_lshl_b32 s28, s28, 10")
    a(f"s_add_u32 s28, s28, {hex(FLG)}")
    a("buffer_store_dwordx4 v[16:19], v10, s[8:11], s28 offen")
    a.label("LP_nz")
    a("s_waitcnt vmcnt(0)")
    a(f"buffer_store_dwordx4 {vr(32)}, v10, s[8:11], s26 offen")
    a(f"buffer_store_dwordx4 {vr(36)}, v10, s[8:11], s26 offen offset:2048")
    a(f"buffer_store_dwordx4 {vr(40)}, v10, s[8:11], s27 offen")
    a(f"buffer_store_dwordx4 {vr(44)}, v10, s[8:11], s27 offen offset:2048")
    for blk in range(2):
        for i in range(8):
            r = 32 + 8*blk + i
            a(f"v_dot2_f32_bf16 v{16+2*blk}, v{r}, v12, v{16+2*blk}")
            a(f"v_dot2_f32_bf16 v{17+2*blk}, v{r}, v{r}, v{17+2*blk}")
    a("s_nop 3")
    reduce_g_multi(a, [16,17,18,19], [20,21,22,23])
    a("""s_lshl_b32 s26, s23, 10
    s_lshl_b32 s27, s3, 8
    s_add_u32 s26, s26, s27""")
    a(f"s_add_u32 s26, s26, {hex(STA)}")
    a("""v_lshlrev_b32 v11, 3, v3
    v_cmp_eq_u32 vcc, 0, v4
    s_and_saveexec_b64 s[30:31], vcc
    buffer_store_dwordx2 v[16:17], v11, s[8:11], s26 offen
    buffer_store_dwordx2 v[18:19], v11, s[8:11], s26 offen offset:128""")
    a.label("LP_end")
    a("s_endpgm")
    return kernel_desc(name, 56, 56, 80)

S_QRB, S_QCB, S_HEAD, S_QB, S_PRB, S_PCB, S_GRB, S_GCB = 16, 17, 18, 19, 20, 21, 22, 23
S_LOFF, S_LAYER, S_FLG = 24, 25, 26
RES = 248
V_L16, V_LANE, V_T, V_G, V_L4 = 1, 2, 3, 4, 5
RED = 98304
nstamp = [0]
STAMP_NAMES = []

def gen_main(a):
    name = "main_kernel"
    vm = VM()
    uid = [0]
    V_MASK = 9
    VO = [10, 11, 12, 13]
    V_ST = 8
    V_B1, V_B2 = 14, 15
    SCR = 162816
    RED_WO, RED_DN = 0, 98304
    def stamp(label):
        if STAMP:
            i = nstamp[0]; nstamp[0] += 1; STAMP_NAMES.append(label)
            a("s_memtime s[60:61]")
            a("s_waitcnt lgkmcnt(0)")
            a("s_cmp_eq_u32 s25, 0")
            a(f"s_cbranch_scc0 LS_{i}")
            a(f"v_writelane_b32 v246, s60, {i}")
            a.label(f"LS_{i}")
            a(f"v_writelane_b32 v247, s60, {i}")
    def signal(tag, phase, grp_sgpr, member_sgpr):
        u = uid[0]; uid[0] += 1
        a(f"s_lshl_b32 s40, s{grp_sgpr}, 8")
        a(f"s_lshl_b32 s41, s{member_sgpr}, 2")
        a("s_add_u32 s40, s40, s41")
        a(f"s_add_u32 s40, s40, s{S_FLG}")
        a(f"s_add_u32 s40, s40, {phase*4096}")
        a("v_mov_b32 v6, 1")
        a("v_mov_b32 v7, 0")
        vm.wait(a, tag)
        a("s_barrier")
        a("s_cmp_lg_u32 s3, 0")
        a(f"s_cbranch_scc1 LSG_{u}")
        a("s_mov_b64 exec, 1")
        a("buffer_store_dword v6, v7, s[8:11], s40 offen sc1")
        a("s_mov_b64 exec, -1")
        a.label(f"LSG_{u}")
    def poll(phase, grp_sgpr, n, prev_layer=False):
        u = uid[0]; uid[0] += 1
        a("s_cmp_lg_u32 s3, 0")
        a(f"s_cbranch_scc1 LPO_{u}")
        a(f"s_lshl_b32 s40, s{grp_sgpr}, 8")
        a(f"s_add_u32 s40, s40, s{S_FLG}")
        off = phase*4096 - (5*4096 if prev_layer else 0)
        if off >= 0: a(f"s_add_u32 s40, s40, {off}")
        else: a(f"s_sub_u32 s40, s40, {-off}")
        a(f"s_mov_b32 s42, {hex((1 << n) - 1)}")
        a("s_mov_b32 s43, 0")
        a("s_mov_b64 exec, s[42:43]")
        a("s_mov_b32 s41, 0")
        a.label(f"LPL_{u}")
        a(f"buffer_load_dword v6, v{V_L4}, s[8:11], s40 offen sc1")
        a("s_add_u32 s41, s41, 1")
        a("s_waitcnt vmcnt(0)")
        a("v_cmp_ne_u32 vcc, 1, v6")
        a(f"s_cmp_gt_u32 s41, {POLL_LIMIT}")
        a(f"s_cbranch_scc1 LPX_{u}")
        a("s_nop 2")
        a(f"s_cbranch_vccnz LPL_{u}")
        a.label(f"LPX_{u}")
        a("s_mov_b64 exec, -1")
        a.label(f"LPO_{u}")
        a("s_barrier")
    def lds_rd(dst, addr):
        base = [V_L16, V_B1, V_B2][addr >> 16]
        a(f"ds_read_b128 {vr(dst)}, v{base} offset:{addr & 0xffff}")

    kernel_begin(a, name)
    a("s_cmp_ge_u32 s2, 256")
    a("s_cbranch_scc1 LM_end")
    a("s_load_dwordx2 s[4:5], s[0:1], 72")
    a("s_load_dwordx2 s[6:7], s[0:1], 56")
    a(f"""v_lshrrev_b32 v1, 6, v0
    v_and_b32 v{V_LANE}, 63, v0
    v_readfirstlane_b32 s3, v1
    v_and_b32 v{V_T}, 15, v{V_LANE}
    v_lshrrev_b32 v{V_G}, 4, v{V_LANE}
    v_lshlrev_b32 v{V_L16}, 4, v{V_LANE}
    v_lshlrev_b32 v{V_L4}, 2, v{V_LANE}
    v_cmp_gt_u32 vcc, 16, v{V_LANE}
    v_add_u32 v{V_B1}, 0x10000, v{V_L16}
    v_add_u32 v{V_B2}, 0x20000, v{V_L16}
    v_cndmask_b32 v{V_MASK}, 0, -1, vcc
    s_and_b32 s30, s2, 7
    s_lshr_b32 s31, s2, 3
    s_and_b32 s32, s31, 3
    s_lshr_b32 s33, s31, 2
    s_lshr_b32 s{S_QRB}, s30, 1
    s_lshl_b32 s{S_QRB}, s{S_QRB}, 2
    s_add_u32 s{S_QRB}, s{S_QRB}, s32
    s_and_b32 s{S_QCB}, s30, 1
    s_lshl_b32 s{S_QCB}, s{S_QCB}, 3
    s_add_u32 s{S_QCB}, s{S_QCB}, s33
    s_lshl_b32 s{S_HEAD}, s30, 2
    s_add_u32 s{S_HEAD}, s{S_HEAD}, s32
    s_mov_b32 s{S_QB}, s33
    s_mov_b32 s{S_PRB}, s{S_HEAD}
    s_mov_b32 s{S_PCB}, s33
    s_lshr_b32 s{S_GRB}, s30, 2
    s_lshl_b32 s{S_GRB}, s{S_GRB}, 3
    s_and_b32 s34, s31, 7
    s_add_u32 s{S_GRB}, s{S_GRB}, s34
    s_and_b32 s{S_GCB}, s30, 3
    s_lshl_b32 s{S_GCB}, s{S_GCB}, 2
    s_lshr_b32 s34, s31, 3
    s_add_u32 s{S_GCB}, s{S_GCB}, s34
    s_mov_b32 s{S_LOFF}, 0
    s_mov_b32 s{S_LAYER}, 0
    s_mov_b32 s{S_FLG}, {hex(FLG)}""")
    for i in range(4):
        a(f"s_xor_b32 s34, s3, {i}")
        a("s_lshl_b32 s34, s34, 10")
        a(f"v_add_u32 v{VO[i]}, s34, v{V_L16}")
    a(f"v_lshlrev_b32 v{V_ST}, 8, v{V_G}")
    a(f"v_lshl_add_u32 v{V_ST}, v{V_T}, 3, v{V_ST}")
    if STAMP:
        a("v_mov_b32 v246, 0"); a("v_mov_b32 v247, 0")
        a("s_memrealtime s[62:63]")
    a("s_waitcnt lgkmcnt(0)")
    make_srd(a, 8, 4, WS_SIZE)
    make_srd(a, 12, 6, 2048*512*2)
    stamp("start")

    def qkv_w_dma():
        a(f"s_mul_i32 s30, s{S_QCB}, {96*1024}")
        a(f"s_add_u32 s30, s30, {hex(WQKVP)}")
        a("s_mul_i32 s31, s3, 3072")
        a("s_add_u32 s30, s30, s31")
        for c in range(8):
            a("s_mov_b32 m0, s31")
            a("s_add_u32 s31, s31, 12288")
            for i in range(3):
                a(f"buffer_load_dwordx4 v{V_L16}, s[8:11], s30 offen offset:{1024*i} lds")
            a("s_add_u32 s30, s30, 12288")
        vm.add("qw", 24)
    def xtile_addr(dst, base):
        a(f"s_lshl_b32 s{dst}, s{S_PRB}, 2")
        a(f"s_add_u32 s{dst}, s{dst}, s3")
        a(f"s_and_b32 s45, s{dst}, 1")
        a(f"s_lshr_b32 s{dst}, s{dst}, 1")
        a(f"s_lshl_b32 s{dst}, s{dst}, 4")
        a(f"s_lshl_b32 s46, s{S_PCB}, 1")
        a(f"s_add_u32 s{dst}, s{dst}, s46")
        a(f"s_lshl_b32 s{dst}, s{dst}, 1")
        a(f"s_add_u32 s{dst}, s{dst}, s45")
        a(f"s_lshl_b32 s{dst}, s{dst}, 10")
        a(f"s_add_u32 s{dst}, s{dst}, {hex(base)}")
        a(f"s_add_u32 s{dst}, s{dst}, s{S_LOFF}")
    def cs_load(ntile, csbase, cbreg, dst):
        a(f"v_lshlrev_b32 v7, 3, v{V_LANE}")
        a(f"s_mul_i32 s32, s{cbreg}, {ntile*512}")
        a(f"s_add_u32 s32, s32, {hex(csbase)}")
        for i in range(ntile):
            if i == 8: a("s_add_u32 s32, s32, 4096")
            a(f"buffer_load_dwordx2 {vr(dst+2*i,2)}, v7, s[8:11], s32 offen offset:{512*(i%8)}")
        vm.add("cs", ntile)
    QCS, QCF = 124, 112
    cs_load(6, CSQKV, S_QCB, QCF)
    qkv_w_dma()
    xtile_addr(44, XIN)
    a(f"buffer_load_dwordx4 {vr(RES)}, v{V_L16}, s[8:11], s44 offen")
    a(f"buffer_load_dwordx4 {vr(RES+4)}, v{V_L16}, s[8:11], s44 offen offset:2048")
    a("s_branch LM_q0")

    a.label("LM_layer")
    cs_load(6, CSQKV, S_QCB, QCF)
    poll(4, S_QRB, 16, prev_layer=True)
    a.label("LM_q0")
    vm.reset()
    stamp("qkv polled")
    a(f"s_lshl_b32 s30, s{S_QRB}, 2")
    a("s_add_u32 s30, s30, s3")
    a("s_lshl_b32 s33, s30, 15")
    a(f"s_add_u32 s33, s33, {hex(XIN)}")
    a(f"s_add_u32 s33, s33, s{S_LOFF}")
    def xload(s, tag="x"):
        a(f"buffer_load_dwordx4 {ar(8*s)}, v{V_L16}, s[8:11], s33 offen offset:{2048*(s%2)} sc1")
        a(f"buffer_load_dwordx4 {ar(8*s+4)}, v{V_L16}, s[8:11], s33 offen offset:{2048*(s%2)+1024} sc1")
        if s % 2 == 1: a("s_add_u32 s33, s33, 4096")
        vm.add(f"{tag}{s}", 2)
    def stats_load(base, dst):
        a("s_lshl_b32 s31, s30, 11")
        a(f"s_add_u32 s31, s31, {hex(base)}")
        a(f"s_add_u32 s31, s31, s{S_LOFF}")
        for tt in range(2):
            a(f"buffer_load_dwordx2 {vr(dst+4*tt,2)}, v{V_ST}, s[8:11], s31 offen offset:{1024*tt} sc1")
            a(f"buffer_load_dwordx2 {vr(dst+4*tt+2,2)}, v{V_ST}, s[8:11], s31 offen offset:{1024*tt+128} sc1")
        vm.add("st", 4)
    PX = 8
    for s in range(2): xload(s)
    QST = 132
    stats_load(STA, QST)
    for s in range(2, PX): xload(s)
    def acc(tile, tt): return 16 + (tile*2+tt)*4
    def wf(s, i): return 64 + ((s&1)*6 + i)*4
    NM, RS, NF, RSR = 140, 142, 144, 148
    vm.wait(a, "x0")
    a("s_barrier")
    stamp("qkv start")
    for i in range(6): lds_rd(wf(0,i), i*1024)
    for s in range(16):
        vm.wait(a, f"x{s}")
        for i in range(6):
            if s < 15:
                lds_rd(wf(s+1,i), (s+1)*6144 + i*1024)
                a("s_waitcnt lgkmcnt(6)")
            else:
                a(f"s_waitcnt lgkmcnt({5-i})")
            for tt in range(2):
                c = vr(acc(i,tt)) if s else "0"
                if i < 4: a(f"v_mfma_f32_16x16x32_bf16 {vr(acc(i,tt))}, {vr(wf(s,i))}, {ar(8*s+4*tt)}, {c}")
                else: a(f"v_mfma_f32_16x16x32_bf16 {vr(acc(i,tt))}, {ar(8*s+4*tt)}, {vr(wf(s,i))}, {c}")
            if i == 2 and s + PX < 16: xload(s + PX)
        if s == 3:
            stats_finish(a, [QST, QST+4], [156,157,158,159], [NM, NM+1], [RS, RS+1])
            for tt in range(2): build_nmfrag(a, NM+tt, NF+2*tt, 156, V_MASK)
            a("s_lshl_b32 s34, s3, 8")
            a(f"s_add_u32 s34, s34, {SCR}")
            a(f"v_lshl_add_u32 v156, v{V_T}, 2, s34")
            a(f"v_lshl_add_u32 v157, v{V_G}, 4, s34")
            a(f"ds_write_b32 v156, v{RS}")
            a(f"ds_write_b32 v156, v{RS+1} offset:64")
            a("s_waitcnt lgkmcnt(0)")
            a(f"ds_read_b128 {vr(RSR)}, v157")
            a(f"ds_read_b128 {vr(RSR+4)}, v157 offset:64")
            a("s_waitcnt lgkmcnt(0)")
        if s == 8:
            a(f"""v_lshrrev_b32 v160, 1, v{V_G}
            v_lshlrev_b32 v160, 9, v160
            v_and_b32 v163, 1, v{V_G}
            v_lshl_add_u32 v161, v163, 8, v160
            v_lshl_add_u32 v161, v{V_T}, 4, v161
            v_lshrrev_b32 v162, 2, v{V_T}
            v_lshlrev_b32 v162, 3, v162
            v_lshl_add_u32 v162, v163, 2, v162
            v_and_b32 v163, 3, v{V_T}
            v_add_u32 v162, v162, v163
            v_lshl_add_u32 v162, v162, 4, v160""")
            a(f"v_mul_f32 v{NM}, {f32hex(0.25*LOG2E)}, v{RS}")
            a(f"v_mul_f32 v{NM+1}, {f32hex(0.25*LOG2E)}, v{RS+1}")
            a(f"s_lshl_b32 s31, s{S_QCB}, 7")
            a("s_add_u32 s31, s31, s30")
            a("s_lshl_b32 s31, s31, 10")
            a(f"s_add_u32 s31, s31, s{S_LOFF}")
    order = (2, 3, 4, 5, 0, 1)
    for i in order:
        for tt in range(2):
            if i < 4: a(f"v_mfma_f32_16x16x16_bf16 {vr(acc(i,tt))}, {vr(QCF+2*i,2)}, {vr(NF+2*tt,2)}, {vr(acc(i,tt))}")
            else: a(f"v_mfma_f32_16x16x16_bf16 {vr(acc(i,tt))}, {vr(NF+2*tt,2)}, {vr(QCF+2*i,2)}, {vr(acc(i,tt))}")
    stamp("qkv mfma done")
    for k, tile in enumerate(order):
        which, hh = tile >> 1, tile & 1
        base = [QF, KF, VF][which] + hh*65536
        a(f"s_add_u32 s32, s31, {hex(base)}")
        if k >= 4: a("s_nop 3")
        for tt in range(2):
            b = acc(tile, tt)
            for r in range(4):
                sc = (NM+tt) if which == 0 else (RS+tt) if which == 1 else (RSR+4*tt+r)
                a(f"v_mul_f32 v{b+r}, v{sc}, v{b+r}")
        d = 64 + tile*4
        for tt in range(2):
            b = acc(tile, tt)
            a(f"v_cvt_pk_bf16_f32 v{d+2*tt}, v{b}, v{b+1}")
            a(f"v_cvt_pk_bf16_f32 v{d+2*tt+1}, v{b+2}, v{b+3}")
        if which < 2:
            a("s_nop 1")
            a(f"v_permlane16_swap_b32 v{d}, v{d+2}")
            a(f"v_permlane16_swap_b32 v{d+1}, v{d+3}")
            a(f"buffer_store_dwordx4 {vr(d)}, v{161+which}, s[8:11], s32 offen sc1")
            vm.add("o", 1)
        else:
            a(f"buffer_store_dwordx4 {vr(d)}, v{V_L16}, s[8:11], s32 offen sc1")
            vm.add("o", 1)
    signal("o", 0, S_QCB, S_QRB)
    stamp("qkv signaled")

    S = lambda u: 72 + 16*(u & 3)
    C = lambda u: 136 + 16*(u & 1)
    O = lambda u: 168 + 16*(u & 1)
    Q = lambda u: 16 + 4*(u & 1)
    KFR = lambda t: 24 + 4*(t & 3)
    V0 = lambda t: 40 + 8*(t & 3)
    V1 = lambda t: 44 + 8*(t & 3)
    IDX, KA, VA0, VA1 = 200, 201, 202, 203
    VB = 65536; VST = 1056
    a(f"""v_and_b32 v24, 31, v{V_LANE}
    v_lshrrev_b32 v25, 1, v24
    s_lshl_b32 s30, s3, 4
    v_add_u32 v25, s30, v25
    v_mul_u32_u24 v25, {VST}, v25
    v_and_b32 v28, 1, v{V_LANE}
    v_lshl_add_u32 v25, v28, 4, v25
    v_add_u32 v25, {VB+1024}, v25
    v_mul_u32_u24 v28, 0x3f80, v28
    v_lshl_or_b32 v28, v28, 16, v28
    v_mov_b32 v29, v28
    v_mov_b32 v30, v28
    v_mov_b32 v31, v28
    ds_write_b128 v25, v[28:31]""")
    a(f"""v_lshrrev_b32 v32, 5, v{V_LANE}
    v_lshlrev_b32 v33, 8, v32
    v_lshl_add_u32 v33, v24, 4, v33
    v_add_u32 v33, {VB}, v33
    v_and_b32 v34, 27, v24
    v_cmp_eq_u32 vcc, 16, v34
    v_mov_b32 v34, {VB+1024}
    v_mov_b32 v35, {VB+1040}
    v_cndmask_b32 v34, v34, v35, vcc
    v_cmp_gt_u32 vcc, 16, v24
    v_subrev_u32 v35, 0x200, v34
    s_nop 0
    v_cndmask_b32 v204, v34, v33, vcc
    v_cndmask_b32 v205, v35, v33, vcc
    v_mov_b32 v{IDX}, 0xdddddddd
    s_lshr_b32 s35, s{S_HEAD}, 1""")
    for i in range(16):
        a(f"v_mov_b32 v{O(0)+i}, 0")
        a(f"v_mov_b32 v{O(1)+i}, 0")
        a(f"v_mov_b32 v{S(3)+i}, 0")
    a(f"""s_lshl_b32 s30, s{S_HEAD}, 16
    s_add_u32 s30, s30, s{S_LOFF}
    s_lshl_b32 s31, s{S_QB}, 3
    s_lshl_b32 s32, s3, 1
    s_add_u32 s31, s31, s32
    s_lshl_b32 s31, s31, 10
    s_add_u32 s31, s31, s30""")
    a(f"s_add_u32 s31, s31, {hex(QF)}")
    a("s_lshl_b32 s32, s3, 10")
    a(f"s_mul_i32 s33, s3, {VST}")
    a(f"s_add_u32 s33, s33, {VB}")
    a("s_add_u32 s36, s30, s32")
    a(f"s_add_u32 s37, s36, {hex(VF)}")
    a(f"s_add_u32 s36, s36, {hex(KF)}")
    a(f"""s_lshl_b32 s56, s{S_PCB}, 4
    s_lshl_b32 s57, s3, 2
    s_add_u32 s56, s56, s57
    s_lshl_b32 s56, s56, 12""")
    a(f"s_add_u32 s56, s56, {hex(WOP)}")
    a(f"s_mul_i32 s54, s{S_PCB}, 56")
    a("s_mul_i32 s55, s3, 14")
    a("s_add_u32 s54, s54, s55")
    a("s_lshl_b32 s54, s54, 12")
    a(f"s_add_u32 s54, s54, {hex(WDP)}")
    a(f"s_mul_i32 s50, s{S_GCB}, {224*1024}")
    a(f"s_add_u32 s50, s50, {hex(WGUP)}")
    a("s_lshl_b32 s51, s3, 13")
    a("s_add_u32 s50, s50, s51")
    for k in range(16):
        s_, ct = divmod(k, 4)
        a(f"buffer_load_dwordx4 {ar(16*s_+4*ct)}, v{V_L16}, s[8:11], s56 offen offset:{1024*ct}")
        if ct == 3: a("s_add_u32 s56, s56, 4096")
    vm.add("wo", 16)
    poll(0, 35, 16)
    stamp("attn polled")
    def kv_round(r):
        a("s_mov_b32 m0, s32")
        a("s_add_u32 s32, s32, 4096")
        a(f"buffer_load_dwordx4 v{V_L16}, s[8:11], s36 offen sc1 lds")
        a("s_mov_b32 m0, s33")
        a(f"s_add_u32 s33, s33, {4*VST}")
        a(f"buffer_load_dwordx4 v{V_L16}, s[8:11], s37 offen sc1 lds")
        a("s_add_u32 s36, s36, 4096")
        a("s_add_u32 s37, s37, 4096")
        vm.add(f"kv{r}", 2)
    a(f"buffer_load_dwordx4 {vr(Q(0))}, v{V_L16}, s[8:11], s31 offen sc1")
    a(f"buffer_load_dwordx4 {vr(Q(1))}, v{V_L16}, s[8:11], s31 offen offset:1024 sc1")
    vm.add("q", 2)
    for r in range(3): kv_round(r)
    CH = 32768; NSLOT = 5
    SLOT = [65536, 98304, 131072, 0, 32768]
    def gu_dma(c):
        sl = SLOT[c % NSLOT]
        a(f"s_add_u32 s52, s51, {sl}")
        a("s_mov_b32 m0, s52")
        a("s_add_u32 s53, s50, 4096")
        for i in range(4): a(f"buffer_load_dwordx4 v{V_L16}, s[8:11], s50 offen offset:{1024*i} lds")
        a(f"s_add_u32 s52, s51, {sl+4096}")
        a("s_mov_b32 m0, s52")
        a(f"s_add_u32 s50, s50, {CH}")
        for i in range(4): a(f"buffer_load_dwordx4 v{V_L16}, s[8:11], s53 offen offset:{1024*i} lds")
        vm.add(f"gw{c}", 8)
    def WDR(k):
        if k < 32: return ('a', 128 + 4*k)
        if k < 40: return ('v', 212 + 4*(k-32))
        return ('v', 128 + 4*(k-40))
    def wd_load(k):
        a(f"buffer_load_dwordx4 {R(WDR(k))}, v{V_L16}, s[8:11], s54 offen offset:{1024*(k%4)}")
        if k % 4 == 3: a("s_add_u32 s54, s54, 4096")
        vm.add("wd", 1)
    a("s_mov_b32 s39, 0")
    vm.wait(a, "kv0")
    a("s_waitcnt lgkmcnt(0)")
    a("s_barrier")
    stamp("attn data")
    a(f"ds_read_b128 {vr(KFR(0))}, v{V_L16}")
    a("s_waitcnt lgkmcnt(0)")
    for q in range(2):
        a(f"v_mfma_f32_32x32x16_bf16 {vr(S(q),16)}, {vr(KFR(0))}, {vr(Q(q))}, 0")
    a("s_nop 12")
    for q in range(2):
        m = 206 + q
        if q: a("s_nop 3")
        a(f"v_max3_f32 v{m}, v{S(q)}, v{S(q)+1}, v{S(q)+2}")
        for i in range(3, 15, 2):
            a(f"v_max3_f32 v{m}, v{m}, v{S(q)+i}, v{S(q)+i+1}")
        a(f"v_max_f32 v{m}, v{m}, v{S(q)+15}")
    a.label("LA_restart")
    a("""v_mov_b32 v208, v206
    v_mov_b32 v209, v207
    s_nop 1
    v_permlane32_swap_b32 v206, v208
    v_permlane32_swap_b32 v207, v209
    s_nop 1
    v_max_f32 v206, v206, v208
    v_max_f32 v207, v207, v209""")
    a(f"v_mov_b32 v{KA}, v{V_L16}")
    a(f"v_mov_b32 v{VA0}, v204")
    a(f"v_mov_b32 v{VA1}, v205")
    for t in range(2):
        a(f"ds_read_b128 {vr(KFR(t))}, v{KA} offset:{1024*t}")
    a(f"ds_read_b128 {vr(V0(0))}, v{VA0}")
    a(f"ds_read_b128 {vr(V1(0))}, v{VA1} offset:512")
    a(f"ds_read_b128 {vr(V1(3))}, v{VA1} offset:512")
    for i in range(16): a(f"v_sub_f32 v{C(0)+i}, 0, v206")
    a("s_waitcnt lgkmcnt(0)")
    a("s_nop 0")
    a(f"v_mfma_f32_32x32x16_bf16 {vr(S(0),16)}, {vr(KFR(0))}, {vr(Q(0))}, {vr(C(0),16)}")
    for i in range(16): a(f"v_sub_f32 v{C(1)+i}, 0, v207")
    a("s_nop 1")
    a(f"v_mfma_f32_32x32x16_bf16 {vr(S(1),16)}, {vr(KFR(0))}, {vr(Q(1))}, {vr(C(1),16)}")
    def attn_body(mode):
        for u in range(16):
            t = u >> 1
            def ex(lo, hi):
                for i in range(lo, hi): a(f"v_exp_f32 v{S(u)+i}, v{S(u)+i}")
            ex(0, 4)
            a(f"v_smfmac_f32_32x32x32_bf16 {vr(O(u-1),16)}, {vr(V1((u-1)>>1))}, {vr(S(u-1)+8,8)}, v{IDX}")
            if u % 2 == 0:
                if mode == 1 and u == 2:
                    vm.wait(a, "kv2")
                    a("s_barrier")
                a("s_waitcnt lgkmcnt(0)")
                a(f"ds_read_b128 {vr(KFR(t+2))}, v{KA} offset:{1024*(t+2)}")
                a(f"ds_read_b128 {vr(V0(t+1))}, v{VA0} offset:{VST*(t+1)}")
                a(f"ds_read_b128 {vr(V1(t+1))}, v{VA1} offset:{VST*(t+1)+512}")
            ex(4, 10)
            a(f"v_mfma_f32_32x32x16_bf16 {vr(S(u+2),16)}, {vr(KFR((u+2)>>1))}, {vr(Q(u))}, {vr(C(u),16)}")
            if mode == 1 and u < 13: kv_round(3 + u)
            ex(10, 14)
            a(f"v_smfmac_f32_32x32x32_bf16 {vr(O(u),16)}, {vr(V0(t))}, {vr(S(u),8)}, v{IDX}")
            ex(14, 16)
        a(f"v_add_u32 v{KA}, 0x2000, v{KA}")
        a(f"v_add_u32 v{VA0}, {8*VST}, v{VA0}")
        a(f"v_add_u32 v{VA1}, {8*VST}, v{VA1}")
    a("s_mov_b32 s38, 8")
    a("s_cmp_lg_u32 s39, 0")
    a("s_cbranch_scc1 LA_loop")
    attn_body(1)
    vm.wait(a, "kv15")
    a("s_barrier")
    a("s_mov_b32 s38, 7")
    a.label("LA_loop")
    attn_body(0)
    a("s_sub_u32 s38, s38, 1")
    a("s_cmp_lg_u32 s38, 0")
    a("s_cbranch_scc1 LA_loop")
    a(f"v_smfmac_f32_32x32x32_bf16 {vr(O(1),16)}, {vr(V1(3))}, {vr(S(3)+8,8)}, v{IDX}")
    a(f"""v_and_b32 v24, 31, v{V_LANE}
    v_lshrrev_b32 v25, 4, v24
    v_lshlrev_b32 v25, 10, v25
    v_lshrrev_b32 v26, 5, v{V_LANE}
    v_lshl_add_u32 v25, v26, 8, v25
    v_lshl_add_u32 v25, v{V_T}, 4, v25
    s_lshl_b32 s30, s{S_QB}, 2
    s_add_u32 s30, s30, s3
    s_lshl_b32 s30, s30, 4
    s_lshr_b32 s31, s{S_HEAD}, 1
    s_add_u32 s30, s30, s31
    s_lshl_b32 s30, s30, 12
    s_and_b32 s31, s{S_HEAD}, 1
    s_lshl_b32 s31, s31, 9
    s_add_u32 s30, s30, s31
    s_add_u32 s30, s30, s{S_LOFF}""")
    a(f"s_add_u32 s30, s30, {hex(OF)}")
    a("s_waitcnt lgkmcnt(0)")
    stamp("attn loop done")
    a("s_cmp_lg_u32 s39, 0")
    a("s_cbranch_scc1 LA_fin")
    a("v_mov_b32 v208, 0x4e800000")
    a(f"v_max_f32 v209, v{O(0)+8}, v{O(1)+8}")
    a(f"v_add_f32 v210, v{O(0)+8}, v{O(1)+8}")
    a("v_cmp_nlt_f32 vcc, v209, v208")
    a("v_cmp_u_f32 s[40:41], v210, v210")
    a("s_nop 3")
    a("s_or_b64 vcc, vcc, s[40:41]")
    a("s_cbranch_vccz LA_fin")
    a("s_mov_b32 s39, 1")
    a("v_mov_b32 v206, 0xff800000")
    a("v_mov_b32 v207, 0xff800000")
    a(f"v_mov_b32 v{KA}, v{V_L16}")
    a("s_mov_b32 s38, 64")
    a.label("LA_maxloop")
    a(f"ds_read_b128 {vr(KFR(0))}, v{KA}")
    a("s_waitcnt lgkmcnt(0)")
    for q in range(2):
        a(f"v_mfma_f32_32x32x16_bf16 {vr(S(q),16)}, {vr(KFR(0))}, {vr(Q(q))}, 0")
    a("s_nop 15")
    a("s_nop 3")
    for q in range(2):
        for i in range(0, 16, 2):
            a(f"v_max3_f32 v{206+q}, v{206+q}, v{S(q)+i}, v{S(q)+i+1}")
    a(f"v_add_u32 v{KA}, 0x400, v{KA}")
    a("s_sub_u32 s38, s38, 1")
    a("s_cmp_lg_u32 s38, 0")
    a("s_cbranch_scc1 LA_maxloop")
    for i in range(16):
        a(f"v_mov_b32 v{O(0)+i}, 0")
        a(f"v_mov_b32 v{O(1)+i}, 0")
        a(f"v_mov_b32 v{S(3)+i}, 0")
    a("s_branch LA_restart")
    a.label("LA_fin")
    a(f"v_rcp_f32 v206, v{O(0)+8}")
    a(f"v_rcp_f32 v207, v{O(1)+8}")
    a("s_nop 0")
    for q in range(2):
        for i in range(8): a(f"v_mul_f32 v{O(q)+i}, v{206+q}, v{O(q)+i}")
        for i in range(4): a(f"v_cvt_pk_bf16_f32 v{28+4*q+i}, v{O(q)+2*i}, v{O(q)+2*i+1}")
        a(f"buffer_store_dwordx4 {vr(28+4*q)}, v25, s[8:11], s30 offen offset:{2048*q} sc1")
    vm.add("o", 2)
    signal("o", 1, S_QB, S_HEAD)
    stamp("attn signaled")

    for c in (0, 1, 2): gu_dma(c)
    def pacc(ct, i, base): return base + (i*4 + ct)*4
    a(f"""s_lshr_b32 s35, s{S_PRB}, 2
    s_lshl_b32 s30, s{S_PRB}, 4
    s_lshl_b32 s31, s3, 2
    s_add_u32 s30, s30, s31
    s_lshl_b32 s30, s30, 12
    s_add_u32 s30, s30, s{S_LOFF}""")
    a(f"s_add_u32 s30, s30, {hex(OF)}")
    poll(1, 35, 32)
    stamp("wo polled")
    for s in range(4):
        for i in range(4):
            a(f"buffer_load_dwordx4 {vr(16+16*s+4*i)}, v{VO[i]}, s[8:11], s30 offen sc1")
        a("s_add_u32 s30, s30, 4096")
        vm.add(f"of{s}", 4)
    def red_setup(red):
        for i in range(1, 4):
            a(f"s_xor_b32 s34, s3, {i}")
            a("s_mul_i32 s34, s34, 12288")
            a(f"s_add_u32 s34, s34, {red + (i-1)*4096}")
            a(f"v_add_u32 v{207+i}, s34, v{V_L16}")
        a("s_mul_i32 s34, s3, 12288")
        a(f"s_add_u32 s34, s34, {red}")
        a(f"v_add_u32 v211, s34, v{V_L16}")
    red_setup(RED_WO)
    for s in range(4):
        vm.wait(a, f"of{s}")
        for i in (1, 2, 3, 0):
            for ct in range(4):
                c = vr(pacc(ct,i,80)) if s else "0"
                a(f"v_mfma_f32_16x16x32_bf16 {vr(pacc(ct,i,80))}, {ar(16*s+4*ct)}, {vr(16+16*s+4*i)}, {c}")
    def reduce_and_residual(accbase, rdbase, scale_reg):
        for i in range(1, 4):
            if i == 3: a("s_nop 3")
            for ct in range(4):
                a(f"ds_write_b128 v{207+i}, {vr(pacc(ct,i,accbase))} offset:{ct*1024}")
        X = rdbase + 48
        for i in range(8):
            a(f"v_lshlrev_b32 v{X+2*i}, 16, v{RES+i}")
            a(f"v_and_b32 v{X+2*i+1}, 0xffff0000, v{RES+i}")
        a("s_waitcnt lgkmcnt(0)")
        a("s_barrier")
        for j in range(3):
            for ct in range(4):
                a(f"ds_read_b128 {vr(rdbase + (j*4+ct)*4)}, v211 offset:{j*4096 + ct*1024}")
        A0 = accbase
        a("s_waitcnt lgkmcnt(8)")
        for i in range(16): a(f"v_add_f32 v{A0+i}, v{A0+i}, v{rdbase+i}")
        a("s_waitcnt lgkmcnt(0)")
        for i in range(16): a(f"v_add_f32 v{rdbase+16+i}, v{rdbase+16+i}, v{rdbase+32+i}")
        for i in range(16): a(f"v_add_f32 v{A0+i}, v{A0+i}, v{rdbase+16+i}")
        for i in range(16):
            if scale_reg is not None: a(f"v_fma_f32 v{A0+i}, v{A0+i}, v{scale_reg}, v{X+i}")
            else: a(f"v_add_f32 v{A0+i}, v{A0+i}, v{X+i}")
            if i % 2 == 1: a(f"v_cvt_pk_bf16_f32 v{RES+i//2}, v{A0+i-1}, v{A0+i}")
    def out_addrs(xbase, stbase, extra_off):
        xtile_addr(44, xbase + extra_off)
        a(f"""s_lshl_b32 s47, s{S_PRB}, 2
        s_add_u32 s47, s47, s3
        s_lshl_b32 s47, s47, 10
        s_lshl_b32 s31, s{S_PCB}, 7
        s_add_u32 s47, s47, s31
        s_add_u32 s47, s47, s{S_LOFF}""")
        a(f"s_add_u32 s47, s47, {hex(stbase + extra_off)}")
        a(f"s_lshr_b32 s35, s{S_PRB}, 1")
        a(f"s_and_b32 s36, s{S_PRB}, 1")
        a("s_lshl_b32 s36, s36, 3")
        a(f"s_add_u32 s36, s36, s{S_PCB}")
    def store_x_and_stats():
        a(f"buffer_store_dwordx4 {vr(RES)}, v{V_L16}, s[8:11], s44 offen sc1")
        a(f"buffer_store_dwordx4 {vr(RES+4)}, v{V_L16}, s[8:11], s44 offen offset:2048 sc1")
        a("v_mov_b32 v206, 0x3f803f80")
        a("v_mov_b32 v202, 0")
        a("v_mov_b32 v203, 0")
        for i in range(8):
            a(f"v_dot2_f32_bf16 v202, v{RES+i}, v206, v202")
            a(f"v_dot2_f32_bf16 v203, v{RES+i}, v{RES+i}, v203")
        a("s_nop 3")
        reduce_g_multi(a, [202, 203], [204, 205])
        a("s_mov_b64 exec, 0xffff")
        a(f"buffer_store_dwordx2 v[202:203], v{V_ST}, s[8:11], s47 offen sc1")
        a("s_mov_b64 exec, -1")
        vm.add("o", 3)
    out_addrs(X1F, STB, 0)
    stamp("wo mfma done")
    reduce_and_residual(80, 144, None)
    store_x_and_stats()
    signal("o", 2, 35, 36)
    stamp("wo signaled")

    gu_dma(3); gu_dma(4)
    GCS, GCF = 188, 160
    cs_load(14, CSGU, S_GCB, GCF)
    a(f"s_lshl_b32 s30, s{S_GRB}, 2")
    a("s_add_u32 s30, s30, s3")
    a("s_lshl_b32 s33, s30, 15")
    a(f"s_add_u32 s33, s33, {hex(X1F)}")
    a(f"s_add_u32 s33, s33, s{S_LOFF}")
    a(f"""s_lshr_b32 s34, s30, 1
    s_lshl_b32 s34, s34, 4
    s_add_u32 s34, s34, s{S_GCB}
    s_mul_i32 s34, s34, 14
    s_and_b32 s35, s30, 1
    s_add_u32 s36, s34, s35
    s_add_u32 s35, s36, s35
    s_lshl_b32 s35, s35, 10
    s_lshl_b32 s36, s36, 10
    s_add_u32 s35, s35, s{S_LOFF}
    s_add_u32 s36, s36, s{S_LOFF}""")
    a(f"s_add_u32 s35, s35, {hex(HF)}")
    a(f"s_add_u32 s36, s36, {hex(HF + 12288)}")
    vm.wait(a, "cs")
    poll(2, S_GRB, 16)
    stamp("gu polled")
    GST = 188
    for s in range(2): xload(s)
    stats_load(STB, GST)
    for s in range(2, PX): xload(s)
    NM, RS, NF = 196, 198, 200
    RING = 8; AHEAD = 6
    def gwf(n): return 128 + (n % RING)*4
    def rd(n): lds_rd(gwf(n), SLOT[(n // 32) % NSLOT] + (n % 32)*1024)
    TOT = 224
    def nmap(n):
        if n < 128: return divmod(n, 8)
        s_, t6 = divmod(n - 128, 6)
        return s_, 8 + t6
    def epi_pair(i, tt):
        G, U = acc(2*i, tt), acc(2*i+1, tt)
        L = [f"v_max_f32 v{G+r}, 0, v{G+r}" for r in range(4)] + [f"v_mul_f32 v{G+r}, v{G+r}, v{U+r}" for r in range(4)]
        if i < 6: d = U if i % 2 == 0 else acc(2*(i-1)+1, tt) + 2
        else: d = acc(13, 0) + 2*tt if tt == 0 else None
        if i == 6:
            d = 204 + 2*tt
        L += [f"v_cvt_pk_bf16_f32 v{d}, v{G}, v{G+1}", f"v_cvt_pk_bf16_f32 v{d+1}, v{G+2}, v{G+3}"]
        if i < 6 and i % 2 == 1:
            L.append(("ST", f"buffer_store_dwordx4 {vr(d-2)}, v{V_L16}, s[8:11], s35 offen offset:{1024*tt} sc1"))
            if tt == 1: L.append("s_add_u32 s35, s35, 4096")
        if i == 6 and tt == 1:
            L.append(("ST", f"buffer_store_dwordx4 v[204:207], v{V_L16}, s[8:11], s36 offen sc1"))
        return L
    def emit(x):
        if isinstance(x, tuple): a(x[1]); vm.add("o", 1)
        else: a(x)
    epiA = []
    for i in range(4):
        for tt in range(2): epiA += epi_pair(i, tt)
    stamp("gu start")
    for n in range(AHEAD): rd(n)
    wdk = 0
    for n in range(TOT):
        s, i = nmap(n)
        if n < 128 and i == 0: vm.wait(a, f"x{s}")
        m = n + AHEAD
        if m < TOT:
            if m % 32 == 0:
                c = m // 32
                if c in (2, 3):
                    a("s_barrier"); gu_dma(c+3)
                if c in (5, 6):
                    vm.wait(a, f"gw{c}"); a("s_barrier")
            rd(m)
            a(f"s_waitcnt lgkmcnt({AHEAD})")
        else:
            a(f"s_waitcnt lgkmcnt({TOT-1-n})")
        for tt in range(2):
            c = vr(acc(i,tt)) if s else "0"
            a(f"v_mfma_f32_16x16x32_bf16 {vr(acc(i,tt))}, {vr(gwf(n))}, {ar(8*s+4*tt)}, {c}")
        if n < 128 and i == 3 and s + PX < 16: xload(s + PX)
        if n == 40:
            stats_finish(a, [GST, GST+4], [204,205,206,207], [NM, NM+1], [RS, RS+1])
            for tt in range(2): build_nmfrag(a, NM+tt, NF+2*tt, 204, V_MASK)
        if n == 127:
            for i2 in range(8):
                for tt in range(2):
                    a(f"v_mfma_f32_16x16x16_bf16 {vr(acc(i2,tt))}, {vr(GCF+2*i2,2)}, {vr(NF+2*tt,2)}, {vr(acc(i2,tt))}")
        if n >= 132:
            for _ in range(2):
                if epiA: emit(epiA.pop(0))
        if n >= 100 and n % 3 == 0 and wdk < 40:
            wd_load(wdk); wdk += 1
    assert not epiA and wdk == 40, (len(epiA), wdk)
    for i in range(8, 14):
        for tt in range(2):
            a(f"v_mfma_f32_16x16x16_bf16 {vr(acc(i,tt))}, {vr(GCF+2*i,2)}, {vr(NF+2*tt,2)}, {vr(acc(i,tt))}")
    stamp("gu mfma done")
    for i in range(4, 7):
        for tt in range(2):
            for x in epi_pair(i, tt): emit(x)
    signal("o", 3, S_GRB, S_GCB)
    stamp("gu signaled")

    for k in range(40, 56): wd_load(k)
    a(f"""s_lshr_b32 s35, s{S_PRB}, 1
    s_lshl_b32 s49, s{S_PRB}, 2
    s_add_u32 s49, s49, s3
    s_lshl_b32 s49, s49, 10
    s_add_u32 s49, s49, s{S_LOFF}""")
    a(f"s_add_u32 s49, s49, {hex(STB)}")
    a(f"""s_mul_i32 s48, s{S_PRB}, 56
    s_mul_i32 s34, s3, 14
    s_add_u32 s48, s48, s34
    s_lshl_b32 s48, s48, 12
    s_add_u32 s48, s48, s{S_LOFF}""")
    a(f"s_add_u32 s48, s48, {hex(HF)}")
    red_setup(RED_DN)
    VH = [200, 201, 202, 203]
    for i in range(4):
        a(f"s_xor_b32 s34, s3, {i}")
        a("s_lshr_b32 s37, s34, 1")
        a("s_lshl_b32 s37, s37, 10")
        a("s_and_b32 s34, s34, 1")
        a("s_lshl_b32 s34, s34, 3")
        a("s_add_u32 s34, s34, s37")
        a(f"v_add_u32 v{VH[i]}, s34, v{V_L16}")
    poll(3, 35, 16)
    stamp("down polled")
    HD = 8
    def hload(s):
        half = (s % 4 == 3)
        for i in range(4):
            if half: a(f"buffer_load_dwordx2 {ar(16*(s%HD)+4*i,2)}, v{VH[i]}, s[8:11], s48 offen sc1")
            else: a(f"buffer_load_dwordx4 {ar(16*(s%HD)+4*i)}, v{VO[i]}, s[8:11], s48 offen sc1")
        a(f"s_add_u32 s48, s48, {2048 if half else 4096}")
        vm.add(f"h{s}", 4)
    HP = 6
    hload(0)
    a(f"buffer_load_dwordx2 v[192:193], v{V_ST}, s[8:11], s49 offen sc1")
    a(f"buffer_load_dwordx2 v[194:195], v{V_ST}, s[8:11], s49 offen offset:128 sc1")
    vm.add("st", 2)
    for s in range(1, HP): hload(s)
    for s in range(16):
        vm.wait(a, f"h{s}")
        cbl, p = divmod(s, 4)
        for i in (1, 2, 3, 0):
            for ct in range(4):
                c = vr(pacc(ct,i,16)) if s else "0"
                if p < 3:
                    a(f"v_mfma_f32_16x16x32_bf16 {vr(pacc(ct,i,16))}, {R(WDR(cbl*14+p*4+ct))}, {ar(16*(s%HD)+4*i)}, {c}")
                else:
                    w_ = WDR(cbl*14 + 12 + (ct >> 1))
                    a(f"v_mfma_f32_16x16x16_bf16 {vr(pacc(ct,i,16))}, {R((w_[0], w_[1]+2*(ct&1)),2)}, {ar(16*(s%HD)+4*i,2)}, {c}")
            if i == 1 and s + HP < 16: hload(s + HP)
        if s == 2:
            stats_finish(a, [192], [196, 197], [198], [199])
            a("v_mul_f32 v199, v199, v199")
            out_addrs(XIN, STA, LSTRIDE)
    stamp("down mfma done")
    reduce_and_residual(16, 80, 199)
    a(f"s_cmp_lg_u32 s{S_LAYER}, 0")
    a("s_cbranch_scc1 LM_final")
    store_x_and_stats()
    signal("o", 4, 35, 36)
    stamp("down signaled")
    qkv_w_dma()
    a(f"s_mov_b32 s{S_LAYER}, 1")
    a(f"s_mov_b32 s{S_LOFF}, {hex(LSTRIDE)}")
    a(f"s_mov_b32 s{S_FLG}, {hex(FLG + 5*4096)}")
    a("s_branch LM_layer")
    a.label("LM_final")
    a(f"""v_lshlrev_b32 v6, 10, v{V_T}
    v_lshl_add_u32 v6, v{V_G}, 3, v6
    s_lshl_b32 s30, s{S_PRB}, 2
    s_add_u32 s30, s30, s3
    s_lshl_b32 s30, s30, 14
    s_lshl_b32 s31, s{S_PCB}, 7
    s_add_u32 s30, s30, s31""")
    for ct in range(4):
        a(f"buffer_store_dwordx2 {vr(RES+2*ct,2)}, v6, s[12:15], s30 offen offset:{32*ct}")
    if STAMP:
        a("s_waitcnt vmcnt(0)")
        stamp("end")
        a("s_memrealtime s[64:65]")
        a("s_waitcnt lgkmcnt(0)")
        a("v_writelane_b32 v246, s62, 62")
        a("v_writelane_b32 v246, s64, 63")
        a("s_lshl_b32 s30, s2, 2")
        a("s_add_u32 s30, s30, s3")
        a("s_lshl_b32 s30, s30, 9")
        a(f"s_add_u32 s30, s30, {hex(DBGR)}")
        a(f"buffer_store_dword v246, v{V_L4}, s[8:11], s30 offen")
        a(f"buffer_store_dword v247, v{V_L4}, s[8:11], s30 offen offset:256")
    a.label("LM_end")
    a("s_endpgm")
    return kernel_desc(name, 512, 256)

def main(out_path):
    a = Asm()
    hdr = open("cdna_kernels/" + NAME + ".s.ref").read().split("; Override launch")[0]
    launches = [("prep_kernel", PREP_NWG, 256, 16384), ("main_kernel", 256, 256, 163840)]
    out = hdr
    for k, g, b, l in launches:
        out += f"; @launch kernel={k} grid=({g},1,1) block=({b},1,1) lds={l}\n"
    out += '.amdgcn_target "amdgcn-amd-amdhsa--gfx950"\n.text\n'
    descs = [gen_prep(a), gen_main(a)]
    out += a.text()
    out += '.section .rodata,"a"\n' + "".join(descs)
    open(out_path, "w").write(out)
    if STAMP: open(out_path + ".stamps", "w").write("\n".join(STAMP_NAMES))

if __name__ == "__main__":
    main(sys.argv[1] if len(sys.argv) > 1 else "cdna_kernels/" + NAME + ".s")
```

```python
import sys, os, struct

NAME = "interleave_layers__softmax_full_mha__glu_gated_reglu__prompt"
MB = 1 << 20
WQKVP = 0 * MB
WOP   = 2 * MB
WGUP  = 3 * MB
WDP   = 7 * MB
CSQKV = 9 * MB
CSGU  = 9 * MB + 0x10000
FLG   = 9 * MB + 0x30000
DBGR  = 9 * MB + 0x40000
ACT0  = 10 * MB
LSTRIDE = 20 * MB
XIN, QF, KF, VF, OF, X1F, HF = [ACT0 + i*MB for i in (0, 2, 4, 6, 8, 10, 12)]
STA = ACT0 + 19*MB + 0x80000
STB = ACT0 + 19*MB + 0xC0000
WS_SIZE = ACT0 + 2*LSTRIDE + 4*MB
LOG2E = 1.4426950408889634
STAMP = int(os.environ.get("STAMP", "0"))
POLL_LIMIT = 100000

def f32hex(x): return "0x%08x" % struct.unpack("<I", struct.pack("<f", x))[0]

class Asm:
    def __init__(self): self.lines = []
    def __call__(self, s):
        for l in s.split("\n"):
            l = l.strip()
            if l: self.lines.append("    " + l)
    def label(self, l): self.lines.append(l + ":")
    def raw(self, s): self.lines.append(s)
    def text(self): return "\n".join(self.lines) + "\n"

class VM:
    def __init__(self): self.seq = []
    def add(self, tag, n=1): self.seq += [tag]*n
    def wait(self, a, tag):
        idxs = [i for i, t in enumerate(self.seq) if t == tag]
        if not idxs: return
        idx = idxs[-1]
        n = len(self.seq) - 1 - idx
        a(f"s_waitcnt vmcnt({min(n, 63)})")
        self.seq = self.seq[idx+1:]
    def reset(self): self.seq = []

def vr(b, n=4): return f"v[{b}:{b+n-1}]"
def ar(b, n=4): return f"a[{b}:{b+n-1}]"
def R(x, n=4):
    return f"{x[0]}[{x[1]}:{x[1]+n-1}]"

def kernel_begin(a, name):
    a.raw(f".globl {name}"); a.raw(".p2align 8"); a.raw(f".type {name},@function"); a.label(name)

def kernel_desc(name, nvgpr, accum, nsgpr=100):
    return f""".p2align 6
.amdhsa_kernel {name}
  .amdhsa_next_free_vgpr {nvgpr}
  .amdhsa_next_free_sgpr {nsgpr}
  .amdhsa_accum_offset {accum}
  .amdhsa_group_segment_fixed_size 0
  .amdhsa_kernarg_size 80
  .amdhsa_user_sgpr_count 2
  .amdhsa_user_sgpr_kernarg_segment_ptr 1
  .amdhsa_system_sgpr_workgroup_id_x 1
.end_amdhsa_kernel
"""

def make_srd(a, d, src, size):
    a(f"s_mov_b32 s{d}, s{src}"); a(f"s_mov_b32 s{d+1}, s{src+1}")
    a(f"s_mov_b32 s{d+2}, {hex(size)}"); a(f"s_mov_b32 s{d+3}, 0x00020000")

def reduce_g_multi(a, xs, ts):
    for x, t in zip(xs, ts): a(f"v_mov_b32 v{t}, v{x}")
    a("s_nop 1")
    for x, t in zip(xs, ts): a(f"v_permlane32_swap_b32 v{x}, v{t}")
    a("s_nop 1")
    for x, t in zip(xs, ts): a(f"v_add_f32 v{x}, v{x}, v{t}")
    for x, t in zip(xs, ts): a(f"v_mov_b32 v{t}, v{x}")
    a("s_nop 1")
    for x, t in zip(xs, ts): a(f"v_permlane16_swap_b32 v{x}, v{t}")
    a("s_nop 1")
    for x, t in zip(xs, ts): a(f"v_add_f32 v{x}, v{x}, v{t}")

def stats_finish(a, ps, tmps, outs_nm, outs_rs):
    for p in ps:
        a(f"v_add_f32 v{p}, v{p}, v{p+2}")
        a(f"v_add_f32 v{p+1}, v{p+1}, v{p+3}")
    xs = []
    for p in ps: xs += [p, p+1]
    reduce_g_multi(a, xs, tmps[:len(xs)])
    for p, nm, rs in zip(ps, outs_nm, outs_rs):
        a(f"v_mul_f32 v{nm}, {f32hex(-1.0/512)}, v{p}")
        a(f"v_mul_f32 v{p+2}, v{nm}, v{nm}")
        a(f"v_mov_b32 v{p+3}, {f32hex(1.0/512)}")
        a(f"v_fma_f32 v{p+2}, v{p+1}, v{p+3}, -v{p+2}")
        a(f"v_max_f32 v{p+2}, 0, v{p+2}")
        a(f"v_add_f32 v{p+2}, {f32hex(1e-5)}, v{p+2}")
        a(f"v_rsq_f32 v{rs}, v{p+2}")
    a("s_nop 0")

def build_csfrag(a, src, dst, tmp, mask):
    a(f"v_and_b32 v{tmp}, 0xffff0000, v{src}")
    a(f"v_sub_f32 v{src}, v{src}, v{tmp}")
    a(f"v_lshrrev_b32 v{dst}, 16, v{tmp}")
    a(f"v_or_b32 v{dst}, v{dst}, v{tmp}")
    a(f"v_cvt_pk_bf16_f32 v{dst+1}, v{src}, 0")

def build_nmfrag(a, nm, dst, tmp, mask):
    a(f"v_and_b32 v{tmp}, 0xffff0000, v{nm}")
    a(f"v_sub_f32 v{tmp+1}, v{nm}, v{tmp}")
    a(f"v_lshrrev_b32 v{dst+1}, 16, v{tmp}")
    a(f"v_cvt_pk_bf16_f32 v{dst}, v{tmp}, v{tmp+1}")

PREP_NWG = 608
def gen_prep(a):
    name = "prep_kernel"
    kernel_begin(a, name)
    a(f"s_cmp_ge_u32 s2, {PREP_NWG}")
    a("s_cbranch_scc1 LP_end")
    a("s_load_dwordx2 s[4:5], s[0:1], 72")
    a("s_load_dwordx4 s[68:71], s[0:1], 0")
    a("s_load_dwordx2 s[72:73], s[0:1], 16")
    a("s_load_dwordx4 s[76:79], s[0:1], 32")
    a("s_load_dwordx2 s[74:75], s[0:1], 48")
    a("s_memrealtime s[60:61]")
    a("""v_lshrrev_b32 v1, 6, v0
    v_and_b32 v2, 63, v0
    v_readfirstlane_b32 s3, v1
    v_and_b32 v3, 15, v2
    v_lshrrev_b32 v4, 4, v2
    v_lshlrev_b32 v10, 4, v2
    s_waitcnt lgkmcnt(0)""")
    make_srd(a, 8, 4, WS_SIZE)
    P = 30; SR = 12
    a("""s_cmp_ge_u32 s2, 480
    s_cbranch_scc1 LP_d
    s_cmp_ge_u32 s2, 256
    s_cbranch_scc1 LP_g
    s_cmp_ge_u32 s2, 224
    s_cbranch_scc1 LP_o
    s_cmp_ge_u32 s2, 96
    s_cbranch_scc1 LP_x""")
    make_srd(a, SR, 70, 512*1536*2)
    a(f"""s_lshr_b32 s46, s2, 2
    s_and_b32 s47, s2, 3
    s_mov_b32 s{P}, 3072
    s_mul_i32 s{P+1}, s47, {128*3072}
    s_lshl_b32 s48, s46, 7
    s_add_u32 s{P+1}, s{P+1}, s48
    s_lshl_b32 s48, s46, 2
    s_add_u32 s48, s48, s3
    s_lshr_b32 s49, s48, 5
    s_and_b32 s50, s48, 31
    s_lshr_b32 s51, s50, 1
    s_and_b32 s50, s50, 1
    s_lshl_b32 s49, s49, 1
    s_add_u32 s49, s49, s50
    s_lshl_b32 s{P+2}, s51, 4
    s_lshl_b32 s50, s47, 2
    s_add_u32 s{P+2}, s{P+2}, s50
    s_mul_i32 s{P+2}, s{P+2}, 6
    s_add_u32 s{P+2}, s{P+2}, s49
    s_lshl_b32 s{P+2}, s{P+2}, 10
    s_add_u32 s{P+2}, s{P+2}, {hex(WQKVP)}
    s_mov_b32 s{P+3}, 6144
    s_mov_b32 s{P+4}, 0
    s_mul_i32 s{P+5}, s51, 6
    s_add_u32 s{P+5}, s{P+5}, s49
    s_lshl_b32 s{P+5}, s{P+5}, 9
    s_lshl_b32 s50, s47, 7
    s_add_u32 s{P+5}, s{P+5}, s50
    s_add_u32 s{P+5}, s{P+5}, {hex(CSQKV)}
    s_branch LP_w""")
    a.label("LP_o")
    make_srd(a, SR, 72, 512*512*2)
    a(f"""s_sub_u32 s46, s2, 224
    s_and_b32 s47, s46, 3
    s_lshr_b32 s46, s46, 2
    s_mov_b32 s{P}, 1024
    s_lshl_b32 s{P+1}, s47, 17
    s_lshl_b32 s48, s46, 7
    s_add_u32 s{P+1}, s{P+1}, s48
    s_lshl_b32 s{P+2}, s46, 4
    s_lshl_b32 s50, s47, 2
    s_add_u32 s{P+2}, s{P+2}, s50
    s_lshl_b32 s{P+2}, s{P+2}, 2
    s_add_u32 s{P+2}, s{P+2}, s3
    s_lshl_b32 s{P+2}, s{P+2}, 10
    s_add_u32 s{P+2}, s{P+2}, {hex(WOP)}
    s_mov_b32 s{P+3}, 4096
    s_mov_b32 s{P+4}, 1
    s_mov_b32 s{P+5}, 0
    s_branch LP_w""")
    a.label("LP_d")
    make_srd(a, SR, 74, 1792*512*2)
    a(f"""s_sub_u32 s46, s2, 480
    s_and_b32 s47, s46, 7
    s_lshr_b32 s46, s46, 3
    s_mov_b32 s{P}, 1024
    s_mul_i32 s{P+1}, s46, {112*1024}
    s_lshl_b32 s48, s47, 7
    s_add_u32 s{P+1}, s{P+1}, s48
    s_lshl_b32 s{P+2}, s47, 4
    s_add_u32 s{P+2}, s{P+2}, s46
    s_mul_i32 s{P+2}, s{P+2}, {14*1024}
    s_add_u32 s{P+2}, s{P+2}, {hex(WDP)}
    s_mov_b32 s{P+3}, 4096
    s_mov_b32 s{P+4}, 2
    s_mov_b32 s{P+5}, 0
    s_branch LP_w""")
    a.label("LP_g")
    make_srd(a, SR, 76, 512*1792*2)
    a("""s_sub_u32 s46, s2, 256
    s_mov_b32 s52, 0
    s_cmp_lt_u32 s46, 112
    s_cbranch_scc1 LP_g2
    s_sub_u32 s46, s46, 112
    s_mov_b32 s52, 1""")
    a(f"s_mov_b32 s{SR}, s78")
    a(f"s_mov_b32 s{SR+1}, s79")
    a.label("LP_g2")
    a(f"""s_and_b32 s47, s46, 3
    s_lshr_b32 s46, s46, 2
    s_mov_b32 s{P}, 3584
    s_mul_i32 s{P+1}, s47, {128*3584}
    s_lshl_b32 s48, s46, 7
    s_add_u32 s{P+1}, s{P+1}, s48
    s_lshl_b32 s48, s46, 2
    s_add_u32 s48, s48, s3
    s_mul_i32 s51, s48, 147
    s_lshr_b32 s51, s51, 10
    s_mul_i32 s49, s51, 7
    s_sub_u32 s49, s48, s49
    s_lshl_b32 s49, s49, 1
    s_add_u32 s49, s49, s52
    s_mul_i32 s{P+2}, s51, 224
    s_add_u32 s{P+2}, s{P+2}, s49
    s_mov_b32 s{P+3}, 8192
    s_cmp_lt_u32 s49, 8
    s_cbranch_scc1 LP_g3
    s_add_u32 s{P+2}, s{P+2}, 120
    s_mov_b32 s{P+3}, 6144""")
    a.label("LP_g3")
    a(f"""s_lshl_b32 s{P+2}, s{P+2}, 10
    s_lshl_b32 s50, s{P+3}, 2
    s_mul_i32 s50, s50, s47
    s_add_u32 s{P+2}, s{P+2}, s50
    s_add_u32 s{P+2}, s{P+2}, {hex(WGUP)}
    s_mov_b32 s{P+4}, 0
    s_mul_i32 s{P+5}, s51, 14
    s_add_u32 s{P+5}, s{P+5}, s49
    s_lshl_b32 s{P+5}, s{P+5}, 9
    s_lshl_b32 s50, s47, 7
    s_add_u32 s{P+5}, s{P+5}, s50
    s_add_u32 s{P+5}, s{P+5}, {hex(CSGU)}""")
    a.label("LP_w")
    a(f"""v_lshrrev_b32 v17, 3, v2
    v_mul_lo_u32 v17, v17, s{P}
    v_and_b32 v18, 7, v2
    v_lshl_add_u32 v17, v18, 4, v17
    s_lshl_b32 s46, s{P}, 3
    s_lshl_b32 s47, s3, 2
    s_mul_i32 s47, s47, s46
    s_add_u32 s47, s47, s{P+1}
    s_lshl_b32 s48, s3, 12""")
    for i in range(4):
        a("s_mov_b32 m0, s48")
        a("s_add_u32 s48, s48, 1024")
        a(f"buffer_load_dwordx4 v17, s[{SR}:{SR+3}], s47 offen lds")
        a("s_add_u32 s47, s47, s46")
    a("""v_lshrrev_b32 v18, 2, v3
    v_and_b32 v19, 3, v3
    v_lshlrev_b32 v19, 3, v19
    s_lshl_b32 s46, s3, 5
    v_add_u32 v19, s46, v19
    v_lshl_add_u32 v20, v4, 2, v18
    v_lshrrev_b32 v21, 1, v4
    v_lshlrev_b32 v21, 4, v21
    v_and_b32 v22, 1, v4
    v_lshl_add_u32 v21, v22, 2, v21
    v_add_u32 v21, v21, v18
    v_lshl_add_u32 v20, v20, 7, v19
    v_lshl_add_u32 v21, v21, 7, v19
    v_lshlrev_b32 v23, 3, v3""")
    for i in range(4): a(f"v_mov_b32 v{24+i}, 0x3f803f80")
    a("""s_waitcnt vmcnt(0)
    s_barrier
    s_cmp_eq_u32 s34, 1
    s_cbranch_scc1 LP_pi2
    s_cmp_eq_u32 s34, 2
    s_cbranch_scc1 LP_dn""")
    for mode in (0, 1):
        if mode == 1: a.label("LP_pi2")
        br = 20 if mode == 0 else 21
        for s_ in range(4):
            a(f"ds_read_b64_tr_b16 {vr(32+4*s_,2)}, v{br} offset:{4096*s_}")
            a(f"ds_read_b64_tr_b16 {vr(34+4*s_,2)}, v{br} offset:{4096*s_ + (2048 if mode == 0 else 1024)}")
        a(f"s_mov_b32 s46, s{P+2}")
        for s_ in range(4):
            a(f"s_waitcnt lgkmcnt({2*(3-s_)})")
            a(f"buffer_store_dwordx4 {vr(32+4*s_)}, v10, s[8:11], s46 offen")
            if mode == 0:
                c = "v[28:31]" if s_ else "0"
                a(f"v_mfma_f32_16x16x32_bf16 v[28:31], v[24:27], {vr(32+4*s_)}, {c}")
            a(f"s_add_u32 s46, s46, s{P+3}")
        if mode == 0:
            a("s_nop 7")
            build_csfrag(a, 28, 48, 50, None)
            a("s_mov_b64 exec, 0xffff")
            a(f"buffer_store_dwordx2 v[48:49], v23, s[8:11], s{P+5} offen")
        a("s_branch LP_fin")
    a.label("LP_dn")
    for p in range(3):
        a(f"ds_read_b64_tr_b16 {vr(32+4*p,2)}, v20 offset:{2048*(2*p)}")
        a(f"ds_read_b64_tr_b16 {vr(34+4*p,2)}, v20 offset:{2048*(2*p+1)}")
    a(f"ds_read_b64_tr_b16 {vr(44,2)}, v20 offset:{2048*6}")
    a("""s_lshl_b32 s46, s3, 10
    s_add_u32 s46, s46, s32
    s_lshr_b32 s47, s3, 1
    s_lshl_b32 s47, s47, 10
    s_and_b32 s48, s3, 1
    s_lshl_b32 s48, s48, 3
    s_add_u32 s47, s47, s48
    s_add_u32 s47, s47, s32
    s_add_u32 s47, s47, 12288
    s_waitcnt lgkmcnt(0)""")
    for p in range(3):
        a(f"buffer_store_dwordx4 {vr(32+4*p)}, v10, s[8:11], s46 offen")
        a("s_add_u32 s46, s46, 4096")
    a(f"buffer_store_dwordx2 {vr(44,2)}, v10, s[8:11], s47 offen")
    a("s_branch LP_fin")
    a.label("LP_x")
    make_srd(a, 12, 68, 2048*512*2)
    a("""s_sub_u32 s23, s2, 96
    s_lshl_b32 s24, s23, 14
    s_lshl_b32 s25, s3, 8
    s_add_u32 s24, s24, s25
    v_lshlrev_b32 v5, 10, v3
    v_lshl_add_u32 v5, v4, 3, v5""")
    for s in range(4):
        a(f"buffer_load_dwordx2 {vr(32+4*s,2)}, v5, s[12:15], s24 offen offset:{64*s}")
        a(f"buffer_load_dwordx2 {vr(34+4*s,2)}, v5, s[12:15], s24 offen offset:{64*s+32}")
    a("""s_lshr_b32 s26, s23, 1
    s_lshl_b32 s26, s26, 4
    s_lshl_b32 s27, s3, 2
    s_add_u32 s26, s26, s27
    s_lshl_b32 s26, s26, 1
    s_and_b32 s27, s23, 1
    s_add_u32 s26, s26, s27
    s_lshl_b32 s26, s26, 10""")
    a(f"s_add_u32 s26, s26, {hex(XIN)}")
    a("s_add_u32 s27, s26, 4096")
    a("v_mov_b32 v12, 0x3f803f80")
    for i in range(4): a(f"v_mov_b32 v{16+i}, 0")
    a("s_cmp_ge_u32 s23, 10")
    a("s_cbranch_scc1 LP_nz")
    a("s_lshl_b32 s28, s23, 2")
    a("s_add_u32 s28, s28, s3")
    a("s_lshl_b32 s28, s28, 10")
    a(f"s_add_u32 s28, s28, {hex(FLG)}")
    a("buffer_store_dwordx4 v[16:19], v10, s[8:11], s28 offen")
    a.label("LP_nz")
    a("s_waitcnt vmcnt(0)")
    a(f"buffer_store_dwordx4 {vr(32)}, v10, s[8:11], s26 offen")
    a(f"buffer_store_dwordx4 {vr(36)}, v10, s[8:11], s26 offen offset:2048")
    a(f"buffer_store_dwordx4 {vr(40)}, v10, s[8:11], s27 offen")
    a(f"buffer_store_dwordx4 {vr(44)}, v10, s[8:11], s27 offen offset:2048")
    for blk in range(2):
        for i in range(8):
            r = 32 + 8*blk + i
            a(f"v_dot2_f32_bf16 v{16+2*blk}, v{r}, v12, v{16+2*blk}")
            a(f"v_dot2_f32_bf16 v{17+2*blk}, v{r}, v{r}, v{17+2*blk}")
    a("s_nop 3")
    reduce_g_multi(a, [16,17,18,19], [20,21,22,23])
    a("""s_lshl_b32 s26, s23, 10
    s_lshl_b32 s27, s3, 8
    s_add_u32 s26, s26, s27""")
    a(f"s_add_u32 s26, s26, {hex(STA)}")
    a("""v_lshlrev_b32 v11, 3, v3
    v_cmp_eq_u32 vcc, 0, v4
    s_and_saveexec_b64 s[30:31], vcc
    buffer_store_dwordx2 v[16:17], v11, s[8:11], s26 offen
    buffer_store_dwordx2 v[18:19], v11, s[8:11], s26 offen offset:128""")
    a.label("LP_fin")
    a("s_mov_b64 exec, -1")
    a("s_waitcnt vmcnt(0)")
    a("s_memrealtime s[62:63]")
    a("s_waitcnt lgkmcnt(0)")
    a("v_mov_b32 v20, s60\nv_mov_b32 v21, s62\nv_mov_b32 v22, 0")
    a("s_lshl_b32 s64, s2, 3")
    a(f"s_add_u32 s64, s64, {hex(DBGR)}")
    a("s_mov_b64 exec, 1")
    a("buffer_store_dwordx2 v[20:21], v22, s[8:11], s64 offen")
    a.label("LP_end")
    a("s_endpgm")
    return kernel_desc(name, 56, 56, 80)

S_QRB, S_QCB, S_HEAD, S_QB, S_PRB, S_PCB, S_GRB, S_GCB = 16, 17, 18, 19, 20, 21, 22, 23
S_LOFF, S_LAYER, S_FLG = 24, 25, 26
RES = 248
V_L16, V_LANE, V_T, V_G, V_L4 = 1, 2, 3, 4, 5
RED = 98304
nstamp = [0]
STAMP_NAMES = []

def gen_main(a):
    name = "main_kernel"
    vm = VM()
    uid = [0]
    V_MASK = 9
    VO = [10, 11, 12, 13]
    V_ST = 8
    V_B1, V_B2 = 14, 15
    SCR = 162816
    RED_WO, RED_DN = 0, 98304
    def stamp(label):
        if STAMP:
            i = nstamp[0]; nstamp[0] += 1; STAMP_NAMES.append(label)
            a("s_memtime s[60:61]")
            a("s_waitcnt lgkmcnt(0)")
            a("s_cmp_eq_u32 s25, 0")
            a(f"s_cbranch_scc0 LS_{i}")
            a(f"v_writelane_b32 v246, s60, {i}")
            a.label(f"LS_{i}")
            a(f"v_writelane_b32 v247, s60, {i}")
    def signal(tag, phase, grp_sgpr, member_sgpr):
        u = uid[0]; uid[0] += 1
        a(f"s_lshl_b32 s40, s{grp_sgpr}, 8")
        a(f"s_lshl_b32 s41, s{member_sgpr}, 2")
        a("s_add_u32 s40, s40, s41")
        a(f"s_add_u32 s40, s40, s{S_FLG}")
        a(f"s_add_u32 s40, s40, {phase*4096}")
        a("v_mov_b32 v6, 1")
        a("v_mov_b32 v7, 0")
        vm.wait(a, tag)
        a("s_barrier")
        a("s_cmp_lg_u32 s3, 0")
        a(f"s_cbranch_scc1 LSG_{u}")
        a("s_mov_b64 exec, 1")
        a("buffer_store_dword v6, v7, s[8:11], s40 offen sc1")
        a("s_mov_b64 exec, -1")
        a.label(f"LSG_{u}")
    def poll(phase, grp_sgpr, n, prev_layer=False):
        u = uid[0]; uid[0] += 1
        a("s_cmp_lg_u32 s3, 0")
        a(f"s_cbranch_scc1 LPO_{u}")
        a(f"s_lshl_b32 s40, s{grp_sgpr}, 8")
        a(f"s_add_u32 s40, s40, s{S_FLG}")
        off = phase*4096 - (5*4096 if prev_layer else 0)
        if off >= 0: a(f"s_add_u32 s40, s40, {off}")
        else: a(f"s_sub_u32 s40, s40, {-off}")
        a(f"s_mov_b32 s42, {hex((1 << n) - 1)}")
        a("s_mov_b32 s43, 0")
        a("s_mov_b64 exec, s[42:43]")
        a("s_mov_b32 s41, 0")
        a.label(f"LPL_{u}")
        a(f"buffer_load_dword v6, v{V_L4}, s[8:11], s40 offen sc1")
        a("s_add_u32 s41, s41, 1")
        a("s_waitcnt vmcnt(0)")
        a("v_cmp_ne_u32 vcc, 1, v6")
        a(f"s_cmp_gt_u32 s41, {POLL_LIMIT}")
        a(f"s_cbranch_scc1 LPX_{u}")
        a("s_nop 2")
        a(f"s_cbranch_vccnz LPL_{u}")
        a.label(f"LPX_{u}")
        a("s_mov_b64 exec, -1")
        a.label(f"LPO_{u}")
        a("s_barrier")
    def lds_rd(dst, addr):
        base = [V_L16, V_B1, V_B2][addr >> 16]
        a(f"ds_read_b128 {vr(dst)}, v{base} offset:{addr & 0xffff}")

    kernel_begin(a, name)
    a("s_cmp_ge_u32 s2, 256")
    a("s_cbranch_scc1 LM_end")
    a("s_load_dwordx2 s[4:5], s[0:1], 72")
    a("s_load_dwordx2 s[6:7], s[0:1], 56")
    a("s_load_dwordx2 s[70:71], s[0:1], 64")
    a("s_memrealtime s[74:75]")
    a(f"""v_lshrrev_b32 v1, 6, v0
    v_and_b32 v{V_LANE}, 63, v0
    v_readfirstlane_b32 s3, v1
    v_and_b32 v{V_T}, 15, v{V_LANE}
    v_lshrrev_b32 v{V_G}, 4, v{V_LANE}
    v_lshlrev_b32 v{V_L16}, 4, v{V_LANE}
    v_lshlrev_b32 v{V_L4}, 2, v{V_LANE}
    v_cmp_gt_u32 vcc, 16, v{V_LANE}
    v_add_u32 v{V_B1}, 0x10000, v{V_L16}
    v_add_u32 v{V_B2}, 0x20000, v{V_L16}
    v_cndmask_b32 v{V_MASK}, 0, -1, vcc
    s_and_b32 s30, s2, 7
    s_lshr_b32 s31, s2, 3
    s_and_b32 s32, s31, 3
    s_lshr_b32 s33, s31, 2
    s_lshr_b32 s{S_QRB}, s30, 1
    s_lshl_b32 s{S_QRB}, s{S_QRB}, 2
    s_add_u32 s{S_QRB}, s{S_QRB}, s32
    s_and_b32 s{S_QCB}, s30, 1
    s_lshl_b32 s{S_QCB}, s{S_QCB}, 3
    s_add_u32 s{S_QCB}, s{S_QCB}, s33
    s_lshl_b32 s{S_HEAD}, s30, 2
    s_add_u32 s{S_HEAD}, s{S_HEAD}, s32
    s_mov_b32 s{S_QB}, s33
    s_mov_b32 s{S_PRB}, s{S_HEAD}
    s_mov_b32 s{S_PCB}, s33
    s_lshr_b32 s{S_GRB}, s30, 2
    s_lshl_b32 s{S_GRB}, s{S_GRB}, 3
    s_and_b32 s34, s31, 7
    s_add_u32 s{S_GRB}, s{S_GRB}, s34
    s_and_b32 s{S_GCB}, s30, 3
    s_lshl_b32 s{S_GCB}, s{S_GCB}, 2
    s_lshr_b32 s34, s31, 3
    s_add_u32 s{S_GCB}, s{S_GCB}, s34
    s_mov_b32 s{S_LOFF}, 0
    s_mov_b32 s{S_LAYER}, 0
    s_mov_b32 s{S_FLG}, {hex(FLG)}""")
    for i in range(4):
        a(f"s_xor_b32 s34, s3, {i}")
        a("s_lshl_b32 s34, s34, 10")
        a(f"v_add_u32 v{VO[i]}, s34, v{V_L16}")
    a(f"v_lshlrev_b32 v{V_ST}, 8, v{V_G}")
    a(f"v_lshl_add_u32 v{V_ST}, v{V_T}, 3, v{V_ST}")
    if STAMP:
        a("v_mov_b32 v246, 0"); a("v_mov_b32 v247, 0")
        a("s_memrealtime s[62:63]")
    a("s_waitcnt lgkmcnt(0)")
    make_srd(a, 8, 4, WS_SIZE)
    make_srd(a, 12, 6, 2048*512*2)
    stamp("start")

    def qkv_w_dma():
        a(f"s_mul_i32 s30, s{S_QCB}, {96*1024}")
        a(f"s_add_u32 s30, s30, {hex(WQKVP)}")
        a("s_mul_i32 s31, s3, 3072")
        a("s_add_u32 s30, s30, s31")
        for c in range(8):
            a("s_mov_b32 m0, s31")
            a("s_add_u32 s31, s31, 12288")
            for i in range(3):
                a(f"buffer_load_dwordx4 v{V_L16}, s[8:11], s30 offen offset:{1024*i} lds")
            a("s_add_u32 s30, s30, 12288")
        vm.add("qw", 24)
    def xtile_addr(dst, base):
        a(f"s_lshl_b32 s{dst}, s{S_PRB}, 2")
        a(f"s_add_u32 s{dst}, s{dst}, s3")
        a(f"s_and_b32 s45, s{dst}, 1")
        a(f"s_lshr_b32 s{dst}, s{dst}, 1")
        a(f"s_lshl_b32 s{dst}, s{dst}, 4")
        a(f"s_lshl_b32 s46, s{S_PCB}, 1")
        a(f"s_add_u32 s{dst}, s{dst}, s46")
        a(f"s_lshl_b32 s{dst}, s{dst}, 1")
        a(f"s_add_u32 s{dst}, s{dst}, s45")
        a(f"s_lshl_b32 s{dst}, s{dst}, 10")
        a(f"s_add_u32 s{dst}, s{dst}, {hex(base)}")
        a(f"s_add_u32 s{dst}, s{dst}, s{S_LOFF}")
    def cs_load(ntile, csbase, cbreg, dst):
        a(f"v_lshlrev_b32 v7, 3, v{V_LANE}")
        a(f"s_mul_i32 s32, s{cbreg}, {ntile*512}")
        a(f"s_add_u32 s32, s32, {hex(csbase)}")
        for i in range(ntile):
            if i == 8: a("s_add_u32 s32, s32, 4096")
            a(f"buffer_load_dwordx2 {vr(dst+2*i,2)}, v7, s[8:11], s32 offen offset:{512*(i%8)}")
        vm.add("cs", ntile)
    QCS, QCF = 124, 112
    cs_load(6, CSQKV, S_QCB, QCF)
    qkv_w_dma()
    xtile_addr(44, XIN)
    a(f"buffer_load_dwordx4 {vr(RES)}, v{V_L16}, s[8:11], s44 offen")
    a(f"buffer_load_dwordx4 {vr(RES+4)}, v{V_L16}, s[8:11], s44 offen offset:2048")
    a("s_branch LM_q0")

    a.label("LM_layer")
    cs_load(6, CSQKV, S_QCB, QCF)
    poll(4, S_QRB, 16, prev_layer=True)
    a.label("LM_q0")
    vm.reset()
    stamp("qkv polled")
    a(f"s_lshl_b32 s30, s{S_QRB}, 2")
    a("s_add_u32 s30, s30, s3")
    a("s_lshl_b32 s33, s30, 15")
    a(f"s_add_u32 s33, s33, {hex(XIN)}")
    a(f"s_add_u32 s33, s33, s{S_LOFF}")
    def xload(s, tag="x"):
        a(f"buffer_load_dwordx4 {ar(8*s)}, v{V_L16}, s[8:11], s33 offen offset:{2048*(s%2)} sc1")
        a(f"buffer_load_dwordx4 {ar(8*s+4)}, v{V_L16}, s[8:11], s33 offen offset:{2048*(s%2)+1024} sc1")
        if s % 2 == 1: a("s_add_u32 s33, s33, 4096")
        vm.add(f"{tag}{s}", 2)
    def stats_load(base, dst):
        a("s_lshl_b32 s31, s30, 11")
        a(f"s_add_u32 s31, s31, {hex(base)}")
        a(f"s_add_u32 s31, s31, s{S_LOFF}")
        for tt in range(2):
            a(f"buffer_load_dwordx2 {vr(dst+4*tt,2)}, v{V_ST}, s[8:11], s31 offen offset:{1024*tt} sc1")
            a(f"buffer_load_dwordx2 {vr(dst+4*tt+2,2)}, v{V_ST}, s[8:11], s31 offen offset:{1024*tt+128} sc1")
        vm.add("st", 4)
    PX = 8
    for s in range(2): xload(s)
    QST = 132
    stats_load(STA, QST)
    for s in range(2, PX): xload(s)
    def acc(tile, tt): return 16 + (tile*2+tt)*4
    def wf(s, i): return 64 + ((s&1)*6 + i)*4
    NM, RS, NF, RSR = 140, 142, 144, 148
    vm.wait(a, "x0")
    a("s_barrier")
    stamp("qkv start")
    for i in range(6): lds_rd(wf(0,i), i*1024)
    for s in range(16):
        vm.wait(a, f"x{s}")
        for i in range(6):
            if s < 15:
                lds_rd(wf(s+1,i), (s+1)*6144 + i*1024)
                a("s_waitcnt lgkmcnt(6)")
            else:
                a(f"s_waitcnt lgkmcnt({5-i})")
            for tt in range(2):
                c = vr(acc(i,tt)) if s else "0"
                if i < 4: a(f"v_mfma_f32_16x16x32_bf16 {vr(acc(i,tt))}, {vr(wf(s,i))}, {ar(8*s+4*tt)}, {c}")
                else: a(f"v_mfma_f32_16x16x32_bf16 {vr(acc(i,tt))}, {ar(8*s+4*tt)}, {vr(wf(s,i))}, {c}")
            if i == 2 and s + PX < 16: xload(s + PX)
        if s == 3:
            stats_finish(a, [QST, QST+4], [156,157,158,159], [NM, NM+1], [RS, RS+1])
            for tt in range(2): build_nmfrag(a, NM+tt, NF+2*tt, 156, V_MASK)
            a("s_lshl_b32 s34, s3, 8")
            a(f"s_add_u32 s34, s34, {SCR}")
            a(f"v_lshl_add_u32 v156, v{V_T}, 2, s34")
            a(f"v_lshl_add_u32 v157, v{V_G}, 4, s34")
            a(f"ds_write_b32 v156, v{RS}")
            a(f"ds_write_b32 v156, v{RS+1} offset:64")
            a("s_waitcnt lgkmcnt(0)")
            a(f"ds_read_b128 {vr(RSR)}, v157")
            a(f"ds_read_b128 {vr(RSR+4)}, v157 offset:64")
            a("s_waitcnt lgkmcnt(0)")
        if s == 8:
            a(f"""v_lshrrev_b32 v160, 1, v{V_G}
            v_lshlrev_b32 v160, 9, v160
            v_and_b32 v163, 1, v{V_G}
            v_lshl_add_u32 v161, v163, 8, v160
            v_lshl_add_u32 v161, v{V_T}, 4, v161
            v_lshrrev_b32 v162, 2, v{V_T}
            v_lshlrev_b32 v162, 3, v162
            v_lshl_add_u32 v162, v163, 2, v162
            v_and_b32 v163, 3, v{V_T}
            v_add_u32 v162, v162, v163
            v_lshl_add_u32 v162, v162, 4, v160""")
            a(f"v_mul_f32 v{NM}, {f32hex(0.25*LOG2E)}, v{RS}")
            a(f"v_mul_f32 v{NM+1}, {f32hex(0.25*LOG2E)}, v{RS+1}")
            a(f"s_lshl_b32 s31, s{S_QCB}, 7")
            a("s_add_u32 s31, s31, s30")
            a("s_lshl_b32 s31, s31, 10")
            a(f"s_add_u32 s31, s31, s{S_LOFF}")
    order = (2, 3, 4, 5, 0, 1)
    for i in order:
        for tt in range(2):
            if i < 4: a(f"v_mfma_f32_16x16x16_bf16 {vr(acc(i,tt))}, {vr(QCF+2*i,2)}, {vr(NF+2*tt,2)}, {vr(acc(i,tt))}")
            else: a(f"v_mfma_f32_16x16x16_bf16 {vr(acc(i,tt))}, {vr(NF+2*tt,2)}, {vr(QCF+2*i,2)}, {vr(acc(i,tt))}")
    stamp("qkv mfma done")
    for k, tile in enumerate(order):
        which, hh = tile >> 1, tile & 1
        base = [QF, KF, VF][which] + hh*65536
        a(f"s_add_u32 s32, s31, {hex(base)}")
        if k >= 4: a("s_nop 3")
        for tt in range(2):
            b = acc(tile, tt)
            for r in range(4):
                sc = (NM+tt) if which == 0 else (RS+tt) if which == 1 else (RSR+4*tt+r)
                a(f"v_mul_f32 v{b+r}, v{sc}, v{b+r}")
        d = 64 + tile*4
        for tt in range(2):
            b = acc(tile, tt)
            a(f"v_cvt_pk_bf16_f32 v{d+2*tt}, v{b}, v{b+1}")
            a(f"v_cvt_pk_bf16_f32 v{d+2*tt+1}, v{b+2}, v{b+3}")
        if which < 2:
            a("s_nop 1")
            a(f"v_permlane16_swap_b32 v{d}, v{d+2}")
            a(f"v_permlane16_swap_b32 v{d+1}, v{d+3}")
            a(f"buffer_store_dwordx4 {vr(d)}, v{161+which}, s[8:11], s32 offen sc1")
            vm.add("o", 1)
        else:
            a(f"buffer_store_dwordx4 {vr(d)}, v{V_L16}, s[8:11], s32 offen sc1")
            vm.add("o", 1)
    signal("o", 0, S_QCB, S_QRB)
    stamp("qkv signaled")

    S = lambda u: 72 + 16*(u & 3)
    C = lambda u: 136 + 16*(u & 1)
    O = lambda u: 168 + 16*(u & 1)
    Q = lambda u: 16 + 4*(u & 1)
    KFR = lambda t: 24 + 4*(t & 3)
    V0 = lambda t: 40 + 8*(t & 3)
    V1 = lambda t: 44 + 8*(t & 3)
    IDX, KA, VA0, VA1 = 200, 201, 202, 203
    VB = 65536; VST = 1056
    a(f"""v_and_b32 v24, 31, v{V_LANE}
    v_lshrrev_b32 v25, 1, v24
    s_lshl_b32 s30, s3, 4
    v_add_u32 v25, s30, v25
    v_mul_u32_u24 v25, {VST}, v25
    v_and_b32 v28, 1, v{V_LANE}
    v_lshl_add_u32 v25, v28, 4, v25
    v_add_u32 v25, {VB+1024}, v25
    v_mul_u32_u24 v28, 0x3f80, v28
    v_lshl_or_b32 v28, v28, 16, v28
    v_mov_b32 v29, v28
    v_mov_b32 v30, v28
    v_mov_b32 v31, v28
    ds_write_b128 v25, v[28:31]""")
    a(f"""v_lshrrev_b32 v32, 5, v{V_LANE}
    v_lshlrev_b32 v33, 8, v32
    v_lshl_add_u32 v33, v24, 4, v33
    v_add_u32 v33, {VB}, v33
    v_and_b32 v34, 27, v24
    v_cmp_eq_u32 vcc, 16, v34
    v_mov_b32 v34, {VB+1024}
    v_mov_b32 v35, {VB+1040}
    v_cndmask_b32 v34, v34, v35, vcc
    v_cmp_gt_u32 vcc, 16, v24
    v_subrev_u32 v35, 0x200, v34
    s_nop 0
    v_cndmask_b32 v204, v34, v33, vcc
    v_cndmask_b32 v205, v35, v33, vcc
    v_mov_b32 v{IDX}, 0xdddddddd
    s_lshr_b32 s35, s{S_HEAD}, 1""")
    for i in range(16):
        a(f"v_mov_b32 v{O(0)+i}, 0")
        a(f"v_mov_b32 v{O(1)+i}, 0")
        a(f"v_mov_b32 v{S(3)+i}, 0")
    a(f"""s_lshl_b32 s30, s{S_HEAD}, 16
    s_add_u32 s30, s30, s{S_LOFF}
    s_lshl_b32 s31, s{S_QB}, 3
    s_lshl_b32 s32, s3, 1
    s_add_u32 s31, s31, s32
    s_lshl_b32 s31, s31, 10
    s_add_u32 s31, s31, s30""")
    a(f"s_add_u32 s31, s31, {hex(QF)}")
    a("s_lshl_b32 s32, s3, 10")
    a(f"s_mul_i32 s33, s3, {VST}")
    a(f"s_add_u32 s33, s33, {VB}")
    a("s_add_u32 s36, s30, s32")
    a(f"s_add_u32 s37, s36, {hex(VF)}")
    a(f"s_add_u32 s36, s36, {hex(KF)}")
    a(f"""s_lshl_b32 s56, s{S_PCB}, 4
    s_lshl_b32 s57, s3, 2
    s_add_u32 s56, s56, s57
    s_lshl_b32 s56, s56, 12""")
    a(f"s_add_u32 s56, s56, {hex(WOP)}")
    a(f"s_mul_i32 s54, s{S_PCB}, 56")
    a("s_mul_i32 s55, s3, 14")
    a("s_add_u32 s54, s54, s55")
    a("s_lshl_b32 s54, s54, 12")
    a(f"s_add_u32 s54, s54, {hex(WDP)}")
    a(f"s_mul_i32 s50, s{S_GCB}, {224*1024}")
    a(f"s_add_u32 s50, s50, {hex(WGUP)}")
    a("s_lshl_b32 s51, s3, 13")
    a("s_add_u32 s50, s50, s51")
    for k in range(16):
        s_, ct = divmod(k, 4)
        a(f"buffer_load_dwordx4 {ar(16*s_+4*ct)}, v{V_L16}, s[8:11], s56 offen offset:{1024*ct}")
        if ct == 3: a("s_add_u32 s56, s56, 4096")
    vm.add("wo", 16)
    poll(0, 35, 16)
    stamp("attn polled")
    def kv_round(r):
        a("s_mov_b32 m0, s32")
        a("s_add_u32 s32, s32, 4096")
        a(f"buffer_load_dwordx4 v{V_L16}, s[8:11], s36 offen sc1 lds")
        a("s_mov_b32 m0, s33")
        a(f"s_add_u32 s33, s33, {4*VST}")
        a(f"buffer_load_dwordx4 v{V_L16}, s[8:11], s37 offen sc1 lds")
        a("s_add_u32 s36, s36, 4096")
        a("s_add_u32 s37, s37, 4096")
        vm.add(f"kv{r}", 2)
    a(f"buffer_load_dwordx4 {vr(Q(0))}, v{V_L16}, s[8:11], s31 offen sc1")
    a(f"buffer_load_dwordx4 {vr(Q(1))}, v{V_L16}, s[8:11], s31 offen offset:1024 sc1")
    vm.add("q", 2)
    for r in range(3): kv_round(r)
    CH = 32768; NSLOT = 5
    SLOT = [65536, 98304, 131072, 0, 32768]
    def gu_dma(c):
        sl = SLOT[c % NSLOT]
        a(f"s_add_u32 s52, s51, {sl}")
        a("s_mov_b32 m0, s52")
        a("s_add_u32 s53, s50, 4096")
        for i in range(4): a(f"buffer_load_dwordx4 v{V_L16}, s[8:11], s50 offen offset:{1024*i} lds")
        a(f"s_add_u32 s52, s51, {sl+4096}")
        a("s_mov_b32 m0, s52")
        a(f"s_add_u32 s50, s50, {CH}")
        for i in range(4): a(f"buffer_load_dwordx4 v{V_L16}, s[8:11], s53 offen offset:{1024*i} lds")
        vm.add(f"gw{c}", 8)
    def WDR(k):
        if k < 32: return ('a', 128 + 4*k)
        if k < 40: return ('v', 212 + 4*(k-32))
        return ('v', 128 + 4*(k-40))
    def wd_load(k):
        a(f"buffer_load_dwordx4 {R(WDR(k))}, v{V_L16}, s[8:11], s54 offen offset:{1024*(k%4)}")
        if k % 4 == 3: a("s_add_u32 s54, s54, 4096")
        vm.add("wd", 1)
    a("s_mov_b32 s39, 0")
    vm.wait(a, "kv0")
    a("s_waitcnt lgkmcnt(0)")
    a("s_barrier")
    stamp("attn data")
    a(f"ds_read_b128 {vr(KFR(0))}, v{V_L16}")
    a("s_waitcnt lgkmcnt(0)")
    for q in range(2):
        a(f"v_mfma_f32_32x32x16_bf16 {vr(S(q),16)}, {vr(KFR(0))}, {vr(Q(q))}, 0")
    a("s_nop 12")
    for q in range(2):
        m = 206 + q
        if q: a("s_nop 3")
        a(f"v_max3_f32 v{m}, v{S(q)}, v{S(q)+1}, v{S(q)+2}")
        for i in range(3, 15, 2):
            a(f"v_max3_f32 v{m}, v{m}, v{S(q)+i}, v{S(q)+i+1}")
        a(f"v_max_f32 v{m}, v{m}, v{S(q)+15}")
    a.label("LA_restart")
    a("""v_mov_b32 v208, v206
    v_mov_b32 v209, v207
    s_nop 1
    v_permlane32_swap_b32 v206, v208
    v_permlane32_swap_b32 v207, v209
    s_nop 1
    v_max_f32 v206, v206, v208
    v_max_f32 v207, v207, v209""")
    a(f"v_mov_b32 v{KA}, v{V_L16}")
    a(f"v_mov_b32 v{VA0}, v204")
    a(f"v_mov_b32 v{VA1}, v205")
    for t in range(2):
        a(f"ds_read_b128 {vr(KFR(t))}, v{KA} offset:{1024*t}")
    a(f"ds_read_b128 {vr(V0(0))}, v{VA0}")
    a(f"ds_read_b128 {vr(V1(0))}, v{VA1} offset:512")
    a(f"ds_read_b128 {vr(V1(3))}, v{VA1} offset:512")
    for i in range(16): a(f"v_sub_f32 v{C(0)+i}, 0, v206")
    a("s_waitcnt lgkmcnt(0)")
    a("s_nop 0")
    a(f"v_mfma_f32_32x32x16_bf16 {vr(S(0),16)}, {vr(KFR(0))}, {vr(Q(0))}, {vr(C(0),16)}")
    for i in range(16): a(f"v_sub_f32 v{C(1)+i}, 0, v207")
    a("s_nop 1")
    a(f"v_mfma_f32_32x32x16_bf16 {vr(S(1),16)}, {vr(KFR(0))}, {vr(Q(1))}, {vr(C(1),16)}")
    def attn_body(mode):
        for u in range(16):
            t = u >> 1
            def ex(lo, hi):
                for i in range(lo, hi): a(f"v_exp_f32 v{S(u)+i}, v{S(u)+i}")
            ex(0, 4)
            a(f"v_smfmac_f32_32x32x32_bf16 {vr(O(u-1),16)}, {vr(V1((u-1)>>1))}, {vr(S(u-1)+8,8)}, v{IDX}")
            if u % 2 == 0:
                if mode == 1 and u == 2:
                    vm.wait(a, "kv2")
                    a("s_barrier")
                a("s_waitcnt lgkmcnt(0)")
                a(f"ds_read_b128 {vr(KFR(t+2))}, v{KA} offset:{1024*(t+2)}")
                a(f"ds_read_b128 {vr(V0(t+1))}, v{VA0} offset:{VST*(t+1)}")
                a(f"ds_read_b128 {vr(V1(t+1))}, v{VA1} offset:{VST*(t+1)+512}")
            ex(4, 10)
            a(f"v_mfma_f32_32x32x16_bf16 {vr(S(u+2),16)}, {vr(KFR((u+2)>>1))}, {vr(Q(u))}, {vr(C(u),16)}")
            if mode == 1 and u < 13: kv_round(3 + u)
            ex(10, 14)
            a(f"v_smfmac_f32_32x32x32_bf16 {vr(O(u),16)}, {vr(V0(t))}, {vr(S(u),8)}, v{IDX}")
            ex(14, 16)
        a(f"v_add_u32 v{KA}, 0x2000, v{KA}")
        a(f"v_add_u32 v{VA0}, {8*VST}, v{VA0}")
        a(f"v_add_u32 v{VA1}, {8*VST}, v{VA1}")
    a("s_mov_b32 s38, 8")
    a("s_cmp_lg_u32 s39, 0")
    a("s_cbranch_scc1 LA_loop")
    attn_body(1)
    vm.wait(a, "kv15")
    a("s_barrier")
    a("s_mov_b32 s38, 7")
    a.label("LA_loop")
    attn_body(0)
    a("s_sub_u32 s38, s38, 1")
    a("s_cmp_lg_u32 s38, 0")
    a("s_cbranch_scc1 LA_loop")
    a(f"v_smfmac_f32_32x32x32_bf16 {vr(O(1),16)}, {vr(V1(3))}, {vr(S(3)+8,8)}, v{IDX}")
    a(f"""v_and_b32 v24, 31, v{V_LANE}
    v_lshrrev_b32 v25, 4, v24
    v_lshlrev_b32 v25, 10, v25
    v_lshrrev_b32 v26, 5, v{V_LANE}
    v_lshl_add_u32 v25, v26, 8, v25
    v_lshl_add_u32 v25, v{V_T}, 4, v25
    s_lshl_b32 s30, s{S_QB}, 2
    s_add_u32 s30, s30, s3
    s_lshl_b32 s30, s30, 4
    s_lshr_b32 s31, s{S_HEAD}, 1
    s_add_u32 s30, s30, s31
    s_lshl_b32 s30, s30, 12
    s_and_b32 s31, s{S_HEAD}, 1
    s_lshl_b32 s31, s31, 9
    s_add_u32 s30, s30, s31
    s_add_u32 s30, s30, s{S_LOFF}""")
    a(f"s_add_u32 s30, s30, {hex(OF)}")
    a("s_waitcnt lgkmcnt(0)")
    stamp("attn loop done")
    a("s_cmp_lg_u32 s39, 0")
    a("s_cbranch_scc1 LA_fin")
    a("v_mov_b32 v208, 0x4e800000")
    a(f"v_max_f32 v209, v{O(0)+8}, v{O(1)+8}")
    a(f"v_add_f32 v210, v{O(0)+8}, v{O(1)+8}")
    a("v_cmp_nlt_f32 vcc, v209, v208")
    a("v_cmp_u_f32 s[40:41], v210, v210")
    a("s_nop 3")
    a("s_or_b64 vcc, vcc, s[40:41]")
    a("s_cbranch_vccz LA_fin")
    a("s_mov_b32 s39, 1")
    a("v_mov_b32 v206, 0xff800000")
    a("v_mov_b32 v207, 0xff800000")
    a(f"v_mov_b32 v{KA}, v{V_L16}")
    a("s_mov_b32 s38, 64")
    a.label("LA_maxloop")
    a(f"ds_read_b128 {vr(KFR(0))}, v{KA}")
    a("s_waitcnt lgkmcnt(0)")
    for q in range(2):
        a(f"v_mfma_f32_32x32x16_bf16 {vr(S(q),16)}, {vr(KFR(0))}, {vr(Q(q))}, 0")
    a("s_nop 15")
    a("s_nop 3")
    for q in range(2):
        for i in range(0, 16, 2):
            a(f"v_max3_f32 v{206+q}, v{206+q}, v{S(q)+i}, v{S(q)+i+1}")
    a(f"v_add_u32 v{KA}, 0x400, v{KA}")
    a("s_sub_u32 s38, s38, 1")
    a("s_cmp_lg_u32 s38, 0")
    a("s_cbranch_scc1 LA_maxloop")
    for i in range(16):
        a(f"v_mov_b32 v{O(0)+i}, 0")
        a(f"v_mov_b32 v{O(1)+i}, 0")
        a(f"v_mov_b32 v{S(3)+i}, 0")
    a("s_branch LA_restart")
    a.label("LA_fin")
    a(f"v_rcp_f32 v206, v{O(0)+8}")
    a(f"v_rcp_f32 v207, v{O(1)+8}")
    a("s_nop 0")
    for q in range(2):
        for i in range(8): a(f"v_mul_f32 v{O(q)+i}, v{206+q}, v{O(q)+i}")
        for i in range(4): a(f"v_cvt_pk_bf16_f32 v{28+4*q+i}, v{O(q)+2*i}, v{O(q)+2*i+1}")
        a(f"buffer_store_dwordx4 {vr(28+4*q)}, v25, s[8:11], s30 offen offset:{2048*q} sc1")
    vm.add("o", 2)
    signal("o", 1, S_QB, S_HEAD)
    stamp("attn signaled")

    for c in (0, 1, 2): gu_dma(c)
    def pacc(ct, i, base): return base + (i*4 + ct)*4
    a(f"""s_lshr_b32 s35, s{S_PRB}, 2
    s_lshl_b32 s30, s{S_PRB}, 4
    s_lshl_b32 s31, s3, 2
    s_add_u32 s30, s30, s31
    s_lshl_b32 s30, s30, 12
    s_add_u32 s30, s30, s{S_LOFF}""")
    a(f"s_add_u32 s30, s30, {hex(OF)}")
    poll(1, 35, 32)
    stamp("wo polled")
    for s in range(4):
        for i in range(4):
            a(f"buffer_load_dwordx4 {vr(16+16*s+4*i)}, v{VO[i]}, s[8:11], s30 offen sc1")
        a("s_add_u32 s30, s30, 4096")
        vm.add(f"of{s}", 4)
    def red_setup(red):
        for i in range(1, 4):
            a(f"s_xor_b32 s34, s3, {i}")
            a("s_mul_i32 s34, s34, 12288")
            a(f"s_add_u32 s34, s34, {red + (i-1)*4096}")
            a(f"v_add_u32 v{207+i}, s34, v{V_L16}")
        a("s_mul_i32 s34, s3, 12288")
        a(f"s_add_u32 s34, s34, {red}")
        a(f"v_add_u32 v211, s34, v{V_L16}")
    red_setup(RED_WO)
    for s in range(4):
        vm.wait(a, f"of{s}")
        for i in (1, 2, 3, 0):
            for ct in range(4):
                c = vr(pacc(ct,i,80)) if s else "0"
                a(f"v_mfma_f32_16x16x32_bf16 {vr(pacc(ct,i,80))}, {ar(16*s+4*ct)}, {vr(16+16*s+4*i)}, {c}")
    def reduce_and_residual(accbase, rdbase, scale_reg):
        for i in range(1, 4):
            if i == 3: a("s_nop 3")
            for ct in range(4):
                a(f"ds_write_b128 v{207+i}, {vr(pacc(ct,i,accbase))} offset:{ct*1024}")
        X = rdbase + 48
        for i in range(8):
            a(f"v_lshlrev_b32 v{X+2*i}, 16, v{RES+i}")
            a(f"v_and_b32 v{X+2*i+1}, 0xffff0000, v{RES+i}")
        a("s_waitcnt lgkmcnt(0)")
        a("s_barrier")
        for j in range(3):
            for ct in range(4):
                a(f"ds_read_b128 {vr(rdbase + (j*4+ct)*4)}, v211 offset:{j*4096 + ct*1024}")
        A0 = accbase
        a("s_waitcnt lgkmcnt(8)")
        for i in range(16): a(f"v_add_f32 v{A0+i}, v{A0+i}, v{rdbase+i}")
        a("s_waitcnt lgkmcnt(0)")
        for i in range(16): a(f"v_add_f32 v{rdbase+16+i}, v{rdbase+16+i}, v{rdbase+32+i}")
        for i in range(16): a(f"v_add_f32 v{A0+i}, v{A0+i}, v{rdbase+16+i}")
        for i in range(16):
            if scale_reg is not None: a(f"v_fma_f32 v{A0+i}, v{A0+i}, v{scale_reg}, v{X+i}")
            else: a(f"v_add_f32 v{A0+i}, v{A0+i}, v{X+i}")
            if i % 2 == 1: a(f"v_cvt_pk_bf16_f32 v{RES+i//2}, v{A0+i-1}, v{A0+i}")
    def out_addrs(xbase, stbase, extra_off):
        xtile_addr(44, xbase + extra_off)
        a(f"""s_lshl_b32 s47, s{S_PRB}, 2
        s_add_u32 s47, s47, s3
        s_lshl_b32 s47, s47, 10
        s_lshl_b32 s31, s{S_PCB}, 7
        s_add_u32 s47, s47, s31
        s_add_u32 s47, s47, s{S_LOFF}""")
        a(f"s_add_u32 s47, s47, {hex(stbase + extra_off)}")
        a(f"s_lshr_b32 s35, s{S_PRB}, 1")
        a(f"s_and_b32 s36, s{S_PRB}, 1")
        a("s_lshl_b32 s36, s36, 3")
        a(f"s_add_u32 s36, s36, s{S_PCB}")
    def store_x_and_stats():
        a(f"buffer_store_dwordx4 {vr(RES)}, v{V_L16}, s[8:11], s44 offen sc1")
        a(f"buffer_store_dwordx4 {vr(RES+4)}, v{V_L16}, s[8:11], s44 offen offset:2048 sc1")
        a("v_mov_b32 v206, 0x3f803f80")
        a("v_mov_b32 v202, 0")
        a("v_mov_b32 v203, 0")
        for i in range(8):
            a(f"v_dot2_f32_bf16 v202, v{RES+i}, v206, v202")
            a(f"v_dot2_f32_bf16 v203, v{RES+i}, v{RES+i}, v203")
        a("s_nop 3")
        reduce_g_multi(a, [202, 203], [204, 205])
        a("s_mov_b64 exec, 0xffff")
        a(f"buffer_store_dwordx2 v[202:203], v{V_ST}, s[8:11], s47 offen sc1")
        a("s_mov_b64 exec, -1")
        vm.add("o", 3)
    out_addrs(X1F, STB, 0)
    stamp("wo mfma done")
    reduce_and_residual(80, 144, None)
    store_x_and_stats()
    signal("o", 2, 35, 36)
    stamp("wo signaled")

    gu_dma(3); gu_dma(4)
    GCS, GCF = 188, 160
    cs_load(14, CSGU, S_GCB, GCF)
    a(f"s_lshl_b32 s30, s{S_GRB}, 2")
    a("s_add_u32 s30, s30, s3")
    a("s_lshl_b32 s33, s30, 15")
    a(f"s_add_u32 s33, s33, {hex(X1F)}")
    a(f"s_add_u32 s33, s33, s{S_LOFF}")
    a(f"""s_lshr_b32 s34, s30, 1
    s_lshl_b32 s34, s34, 4
    s_add_u32 s34, s34, s{S_GCB}
    s_mul_i32 s34, s34, 14
    s_and_b32 s35, s30, 1
    s_add_u32 s36, s34, s35
    s_add_u32 s35, s36, s35
    s_lshl_b32 s35, s35, 10
    s_lshl_b32 s36, s36, 10
    s_add_u32 s35, s35, s{S_LOFF}
    s_add_u32 s36, s36, s{S_LOFF}""")
    a(f"s_add_u32 s35, s35, {hex(HF)}")
    a(f"s_add_u32 s36, s36, {hex(HF + 12288)}")
    vm.wait(a, "cs")
    poll(2, S_GRB, 16)
    stamp("gu polled")
    GST = 188
    for s in range(2): xload(s)
    stats_load(STB, GST)
    for s in range(2, PX): xload(s)
    NM, RS, NF = 196, 198, 200
    RING = 8; AHEAD = 6
    def gwf(n): return 128 + (n % RING)*4
    def rd(n): lds_rd(gwf(n), SLOT[(n // 32) % NSLOT] + (n % 32)*1024)
    TOT = 224
    def nmap(n):
        if n < 128: return divmod(n, 8)
        s_, t6 = divmod(n - 128, 6)
        return s_, 8 + t6
    def epi_pair(i, tt):
        G, U = acc(2*i, tt), acc(2*i+1, tt)
        L = [f"v_max_f32 v{G+r}, 0, v{G+r}" for r in range(4)] + [f"v_mul_f32 v{G+r}, v{G+r}, v{U+r}" for r in range(4)]
        if i < 6: d = U if i % 2 == 0 else acc(2*(i-1)+1, tt) + 2
        else: d = acc(13, 0) + 2*tt if tt == 0 else None
        if i == 6:
            d = 204 + 2*tt
        L += [f"v_cvt_pk_bf16_f32 v{d}, v{G}, v{G+1}", f"v_cvt_pk_bf16_f32 v{d+1}, v{G+2}, v{G+3}"]
        if i < 6 and i % 2 == 1:
            L.append(("ST", f"buffer_store_dwordx4 {vr(d-2)}, v{V_L16}, s[8:11], s35 offen offset:{1024*tt} sc1"))
            if tt == 1: L.append("s_add_u32 s35, s35, 4096")
        if i == 6 and tt == 1:
            L.append(("ST", f"buffer_store_dwordx4 v[204:207], v{V_L16}, s[8:11], s36 offen sc1"))
        return L
    def emit(x):
        if isinstance(x, tuple): a(x[1]); vm.add("o", 1)
        else: a(x)
    epiA = []
    for i in range(4):
        for tt in range(2): epiA += epi_pair(i, tt)
    stamp("gu start")
    for n in range(AHEAD): rd(n)
    wdk = 0
    for n in range(TOT):
        s, i = nmap(n)
        if n < 128 and i == 0: vm.wait(a, f"x{s}")
        m = n + AHEAD
        if m < TOT:
            if m % 32 == 0:
                c = m // 32
                if c in (2, 3):
                    a("s_barrier"); gu_dma(c+3)
                if c in (5, 6):
                    vm.wait(a, f"gw{c}"); a("s_barrier")
            rd(m)
            a(f"s_waitcnt lgkmcnt({AHEAD})")
        else:
            a(f"s_waitcnt lgkmcnt({TOT-1-n})")
        for tt in range(2):
            c = vr(acc(i,tt)) if s else "0"
            a(f"v_mfma_f32_16x16x32_bf16 {vr(acc(i,tt))}, {vr(gwf(n))}, {ar(8*s+4*tt)}, {c}")
        if n < 128 and i == 3 and s + PX < 16: xload(s + PX)
        if n == 40:
            stats_finish(a, [GST, GST+4], [204,205,206,207], [NM, NM+1], [RS, RS+1])
            for tt in range(2): build_nmfrag(a, NM+tt, NF+2*tt, 204, V_MASK)
        if n == 127:
            for i2 in range(8):
                for tt in range(2):
                    a(f"v_mfma_f32_16x16x16_bf16 {vr(acc(i2,tt))}, {vr(GCF+2*i2,2)}, {vr(NF+2*tt,2)}, {vr(acc(i2,tt))}")
        if n >= 132:
            for _ in range(2):
                if epiA: emit(epiA.pop(0))
        if n >= 100 and n % 3 == 0 and wdk < 40:
            wd_load(wdk); wdk += 1
    assert not epiA and wdk == 40, (len(epiA), wdk)
    for i in range(8, 14):
        for tt in range(2):
            a(f"v_mfma_f32_16x16x16_bf16 {vr(acc(i,tt))}, {vr(GCF+2*i,2)}, {vr(NF+2*tt,2)}, {vr(acc(i,tt))}")
    stamp("gu mfma done")
    for i in range(4, 7):
        for tt in range(2):
            for x in epi_pair(i, tt): emit(x)
    signal("o", 3, S_GRB, S_GCB)
    stamp("gu signaled")

    for k in range(40, 56): wd_load(k)
    a(f"""s_lshr_b32 s35, s{S_PRB}, 1
    s_lshl_b32 s49, s{S_PRB}, 2
    s_add_u32 s49, s49, s3
    s_lshl_b32 s49, s49, 10
    s_add_u32 s49, s49, s{S_LOFF}""")
    a(f"s_add_u32 s49, s49, {hex(STB)}")
    a(f"""s_mul_i32 s48, s{S_PRB}, 56
    s_mul_i32 s34, s3, 14
    s_add_u32 s48, s48, s34
    s_lshl_b32 s48, s48, 12
    s_add_u32 s48, s48, s{S_LOFF}""")
    a(f"s_add_u32 s48, s48, {hex(HF)}")
    red_setup(RED_DN)
    VH = [200, 201, 202, 203]
    for i in range(4):
        a(f"s_xor_b32 s34, s3, {i}")
        a("s_lshr_b32 s37, s34, 1")
        a("s_lshl_b32 s37, s37, 10")
        a("s_and_b32 s34, s34, 1")
        a("s_lshl_b32 s34, s34, 3")
        a("s_add_u32 s34, s34, s37")
        a(f"v_add_u32 v{VH[i]}, s34, v{V_L16}")
    poll(3, 35, 16)
    stamp("down polled")
    HD = 8
    def hload(s):
        half = (s % 4 == 3)
        for i in range(4):
            if half: a(f"buffer_load_dwordx2 {ar(16*(s%HD)+4*i,2)}, v{VH[i]}, s[8:11], s48 offen sc1")
            else: a(f"buffer_load_dwordx4 {ar(16*(s%HD)+4*i)}, v{VO[i]}, s[8:11], s48 offen sc1")
        a(f"s_add_u32 s48, s48, {2048 if half else 4096}")
        vm.add(f"h{s}", 4)
    HP = 6
    hload(0)
    a(f"buffer_load_dwordx2 v[192:193], v{V_ST}, s[8:11], s49 offen sc1")
    a(f"buffer_load_dwordx2 v[194:195], v{V_ST}, s[8:11], s49 offen offset:128 sc1")
    vm.add("st", 2)
    for s in range(1, HP): hload(s)
    for s in range(16):
        vm.wait(a, f"h{s}")
        cbl, p = divmod(s, 4)
        for i in (1, 2, 3, 0):
            for ct in range(4):
                c = vr(pacc(ct,i,16)) if s else "0"
                if p < 3:
                    a(f"v_mfma_f32_16x16x32_bf16 {vr(pacc(ct,i,16))}, {R(WDR(cbl*14+p*4+ct))}, {ar(16*(s%HD)+4*i)}, {c}")
                else:
                    w_ = WDR(cbl*14 + 12 + (ct >> 1))
                    a(f"v_mfma_f32_16x16x16_bf16 {vr(pacc(ct,i,16))}, {R((w_[0], w_[1]+2*(ct&1)),2)}, {ar(16*(s%HD)+4*i,2)}, {c}")
            if i == 1 and s + HP < 16: hload(s + HP)
        if s == 2:
            stats_finish(a, [192], [196, 197], [198], [199])
            a("v_mul_f32 v199, v199, v199")
            out_addrs(XIN, STA, LSTRIDE)
    stamp("down mfma done")
    reduce_and_residual(16, 80, 199)
    a(f"s_cmp_lg_u32 s{S_LAYER}, 0")
    a("s_cbranch_scc1 LM_final")
    store_x_and_stats()
    signal("o", 4, 35, 36)
    stamp("down signaled")
    qkv_w_dma()
    a(f"s_mov_b32 s{S_LAYER}, 1")
    a(f"s_mov_b32 s{S_LOFF}, {hex(LSTRIDE)}")
    a(f"s_mov_b32 s{S_FLG}, {hex(FLG + 5*4096)}")
    a("s_branch LM_layer")
    a.label("LM_final")
    a(f"""v_lshlrev_b32 v6, 10, v{V_T}
    v_lshl_add_u32 v6, v{V_G}, 3, v6
    s_lshl_b32 s30, s{S_PRB}, 2
    s_add_u32 s30, s30, s3
    s_lshl_b32 s30, s30, 14
    s_lshl_b32 s31, s{S_PCB}, 7
    s_add_u32 s30, s30, s31""")
    for ct in range(4):
        a(f"buffer_store_dwordx2 {vr(RES+2*ct,2)}, v6, s[12:15], s30 offen offset:{32*ct}")
    if STAMP:
        a("s_waitcnt vmcnt(0)")
        stamp("end")
        a("s_memrealtime s[64:65]")
        a("s_waitcnt lgkmcnt(0)")
        a("v_writelane_b32 v246, s62, 62")
        a("v_writelane_b32 v246, s64, 63")
        a("s_lshl_b32 s30, s2, 2")
        a("s_add_u32 s30, s30, s3")
        a("s_lshl_b32 s30, s30, 9")
        a(f"s_add_u32 s30, s30, {hex(DBGR)}")
        a(f"buffer_store_dword v246, v{V_L4}, s[8:11], s30 offen")
        a(f"buffer_store_dword v247, v{V_L4}, s[8:11], s30 offen offset:256")
    a("s_waitcnt vmcnt(0)")
    a("s_memrealtime s[78:79]")
    a("s_waitcnt lgkmcnt(0)")
    a("s_mov_b32 s80, s70\ns_mov_b32 s81, s71\ns_mov_b32 s82, 256\ns_mov_b32 s83, 0x00020000")
    a("s_cmp_gt_u32 s2, 3")
    a("s_cbranch_scc1 LM_end")
    a("s_cmp_lg_u32 s3, 0")
    a("s_cbranch_scc1 LM_end")
    a(f"v_lshlrev_b32 v22, 3, v{V_LANE}")
    a("v_mov_b32 v30, -1\nv_mov_b32 v31, 0")
    for k in range(9):
        a(f"s_mov_b32 s84, {hex(DBGR + k*512)}")
        a("buffer_load_dwordx2 v[20:21], v22, s[8:11], s84 offen")
        a("s_waitcnt vmcnt(0)")
        a("v_min_u32 v30, v30, v20\nv_max_u32 v31, v31, v21")
    a("v_mov_b32 v32, s74\nv_mov_b32 v33, s78")
    a("s_lshl_b32 s84, s2, 4")
    a("v_mov_b32 v22, 0")
    a("s_mov_b64 exec, 1")
    a("buffer_store_dwordx4 v[30:33], v22, s[80:83], s84 offen")
    a.label("LM_end")
    a("s_endpgm")
    return kernel_desc(name, 512, 256)

def main(out_path):
    a = Asm()
    hdr = open("cdna_kernels/" + NAME + ".s.ref").read().split("; Override launch")[0]
    launches = [("prep_kernel", PREP_NWG, 256, 16384), ("main_kernel", 256, 256, 163840)]
    out = hdr
    for k, g, b, l in launches:
        out += f"; @launch kernel={k} grid=({g},1,1) block=({b},1,1) lds={l}\n"
    out += '.amdgcn_target "amdgcn-amd-amdhsa--gfx950"\n.text\n'
    descs = [gen_prep(a), gen_main(a)]
    out += a.text()
    out += '.section .rodata,"a"\n' + "".join(descs)
    open(out_path, "w").write(out)
    if STAMP: open(out_path + ".stamps", "w").write("\n".join(STAMP_NAMES))

if __name__ == "__main__":
    main(sys.argv[1] if len(sys.argv) > 1 else "cdna_kernels/" + NAME + ".s")
```

```python
import sys, os, struct

NAME = "interleave_layers__softmax_full_mha__glu_gated_reglu__prompt"
MB = 1 << 20
WQKVP = 0 * MB
WOP   = 2 * MB
WGUP  = 3 * MB
WDP   = 7 * MB
CSQKV = 9 * MB
CSGU  = 9 * MB + 0x10000
FLG   = 9 * MB + 0x30000
DBGR  = 9 * MB + 0x40000
ACT0  = 10 * MB
LSTRIDE = 20 * MB
XIN, QF, KF, VF, OF, X1F, HF = [ACT0 + i*MB for i in (0, 2, 4, 6, 8, 10, 12)]
STA = ACT0 + 19*MB + 0x80000
STB = ACT0 + 19*MB + 0xC0000
WS_SIZE = ACT0 + 2*LSTRIDE + 4*MB
LOG2E = 1.4426950408889634
STAMP = int(os.environ.get("STAMP", "0"))
POLL_LIMIT = 100000

def f32hex(x): return "0x%08x" % struct.unpack("<I", struct.pack("<f", x))[0]

class Asm:
    def __init__(self): self.lines = []
    def __call__(self, s):
        for l in s.split("\n"):
            l = l.strip()
            if l: self.lines.append("    " + l)
    def label(self, l): self.lines.append(l + ":")
    def raw(self, s): self.lines.append(s)
    def text(self): return "\n".join(self.lines) + "\n"

class VM:
    def __init__(self): self.seq = []
    def add(self, tag, n=1): self.seq += [tag]*n
    def wait(self, a, tag):
        idxs = [i for i, t in enumerate(self.seq) if t == tag]
        if not idxs: return
        idx = idxs[-1]
        n = len(self.seq) - 1 - idx
        a(f"s_waitcnt vmcnt({min(n, 63)})")
        self.seq = self.seq[idx+1:]
    def reset(self): self.seq = []

def vr(b, n=4): return f"v[{b}:{b+n-1}]"
def ar(b, n=4): return f"a[{b}:{b+n-1}]"
def R(x, n=4):
    return f"{x[0]}[{x[1]}:{x[1]+n-1}]"

def kernel_begin(a, name):
    a.raw(f".globl {name}"); a.raw(".p2align 8"); a.raw(f".type {name},@function"); a.label(name)

def kernel_desc(name, nvgpr, accum, nsgpr=100):
    return f""".p2align 6
.amdhsa_kernel {name}
  .amdhsa_next_free_vgpr {nvgpr}
  .amdhsa_next_free_sgpr {nsgpr}
  .amdhsa_accum_offset {accum}
  .amdhsa_group_segment_fixed_size 0
  .amdhsa_kernarg_size 80
  .amdhsa_user_sgpr_count 2
  .amdhsa_user_sgpr_kernarg_segment_ptr 1
  .amdhsa_system_sgpr_workgroup_id_x 1
.end_amdhsa_kernel
"""

def make_srd(a, d, src, size):
    a(f"s_mov_b32 s{d}, s{src}"); a(f"s_mov_b32 s{d+1}, s{src+1}")
    a(f"s_mov_b32 s{d+2}, {hex(size)}"); a(f"s_mov_b32 s{d+3}, 0x00020000")

def reduce_g_multi(a, xs, ts):
    for x, t in zip(xs, ts): a(f"v_mov_b32 v{t}, v{x}")
    a("s_nop 1")
    for x, t in zip(xs, ts): a(f"v_permlane32_swap_b32 v{x}, v{t}")
    a("s_nop 1")
    for x, t in zip(xs, ts): a(f"v_add_f32 v{x}, v{x}, v{t}")
    for x, t in zip(xs, ts): a(f"v_mov_b32 v{t}, v{x}")
    a("s_nop 1")
    for x, t in zip(xs, ts): a(f"v_permlane16_swap_b32 v{x}, v{t}")
    a("s_nop 1")
    for x, t in zip(xs, ts): a(f"v_add_f32 v{x}, v{x}, v{t}")

def stats_finish(a, ps, tmps, outs_nm, outs_rs):
    for p in ps:
        a(f"v_add_f32 v{p}, v{p}, v{p+2}")
        a(f"v_add_f32 v{p+1}, v{p+1}, v{p+3}")
    xs = []
    for p in ps: xs += [p, p+1]
    reduce_g_multi(a, xs, tmps[:len(xs)])
    for p, nm, rs in zip(ps, outs_nm, outs_rs):
        a(f"v_mul_f32 v{nm}, {f32hex(-1.0/512)}, v{p}")
        a(f"v_mul_f32 v{p+2}, v{nm}, v{nm}")
        a(f"v_mov_b32 v{p+3}, {f32hex(1.0/512)}")
        a(f"v_fma_f32 v{p+2}, v{p+1}, v{p+3}, -v{p+2}")
        a(f"v_max_f32 v{p+2}, 0, v{p+2}")
        a(f"v_add_f32 v{p+2}, {f32hex(1e-5)}, v{p+2}")
        a(f"v_rsq_f32 v{rs}, v{p+2}")
    a("s_nop 0")

def build_csfrag(a, src, dst, tmp, mask):
    a(f"v_and_b32 v{tmp}, 0xffff0000, v{src}")
    a(f"v_sub_f32 v{src}, v{src}, v{tmp}")
    a(f"v_lshrrev_b32 v{dst}, 16, v{tmp}")
    a(f"v_or_b32 v{dst}, v{dst}, v{tmp}")
    a(f"v_cvt_pk_bf16_f32 v{dst+1}, v{src}, 0")

def build_nmfrag(a, nm, dst, tmp, mask):
    a(f"v_and_b32 v{tmp}, 0xffff0000, v{nm}")
    a(f"v_sub_f32 v{tmp+1}, v{nm}, v{tmp}")
    a(f"v_lshrrev_b32 v{dst+1}, 16, v{tmp}")
    a(f"v_cvt_pk_bf16_f32 v{dst}, v{tmp}, v{tmp+1}")

PREP_NWG = 608
def gen_prep(a):
    name = "prep_kernel"
    kernel_begin(a, name)
    a(f"s_cmp_ge_u32 s2, {PREP_NWG}")
    a("s_cbranch_scc1 LP_end")
    a("s_load_dwordx2 s[4:5], s[0:1], 72")
    a("s_load_dwordx4 s[68:71], s[0:1], 0")
    a("s_load_dwordx2 s[72:73], s[0:1], 16")
    a("s_load_dwordx4 s[76:79], s[0:1], 32")
    a("s_load_dwordx2 s[74:75], s[0:1], 48")
    a("""v_lshrrev_b32 v1, 6, v0
    v_and_b32 v2, 63, v0
    v_readfirstlane_b32 s3, v1
    v_and_b32 v3, 15, v2
    v_lshrrev_b32 v4, 4, v2
    v_lshlrev_b32 v10, 4, v2
    s_waitcnt lgkmcnt(0)""")
    make_srd(a, 8, 4, WS_SIZE)
    P = 30; SR = 12
    a("""s_cmp_ge_u32 s2, 480
    s_cbranch_scc1 LP_d
    s_cmp_ge_u32 s2, 256
    s_cbranch_scc1 LP_g
    s_cmp_ge_u32 s2, 224
    s_cbranch_scc1 LP_o
    s_cmp_ge_u32 s2, 96
    s_cbranch_scc1 LP_x""")
    make_srd(a, SR, 70, 512*1536*2)
    a(f"""s_lshr_b32 s46, s2, 2
    s_and_b32 s47, s2, 3
    s_mov_b32 s{P}, 3072
    s_mul_i32 s{P+1}, s47, {128*3072}
    s_lshl_b32 s48, s46, 7
    s_add_u32 s{P+1}, s{P+1}, s48
    s_lshl_b32 s48, s46, 2
    s_add_u32 s48, s48, s3
    s_lshr_b32 s49, s48, 5
    s_and_b32 s50, s48, 31
    s_lshr_b32 s51, s50, 1
    s_and_b32 s50, s50, 1
    s_lshl_b32 s49, s49, 1
    s_add_u32 s49, s49, s50
    s_lshl_b32 s{P+2}, s51, 4
    s_lshl_b32 s50, s47, 2
    s_add_u32 s{P+2}, s{P+2}, s50
    s_mul_i32 s{P+2}, s{P+2}, 6
    s_add_u32 s{P+2}, s{P+2}, s49
    s_lshl_b32 s{P+2}, s{P+2}, 10
    s_add_u32 s{P+2}, s{P+2}, {hex(WQKVP)}
    s_mov_b32 s{P+3}, 6144
    s_mov_b32 s{P+4}, 0
    s_mul_i32 s{P+5}, s51, 6
    s_add_u32 s{P+5}, s{P+5}, s49
    s_lshl_b32 s{P+5}, s{P+5}, 9
    s_lshl_b32 s50, s47, 7
    s_add_u32 s{P+5}, s{P+5}, s50
    s_add_u32 s{P+5}, s{P+5}, {hex(CSQKV)}
    s_branch LP_w""")
    a.label("LP_o")
    make_srd(a, SR, 72, 512*512*2)
    a(f"""s_sub_u32 s46, s2, 224
    s_and_b32 s47, s46, 3
    s_lshr_b32 s46, s46, 2
    s_mov_b32 s{P}, 1024
    s_lshl_b32 s{P+1}, s47, 17
    s_lshl_b32 s48, s46, 7
    s_add_u32 s{P+1}, s{P+1}, s48
    s_lshl_b32 s{P+2}, s46, 4
    s_lshl_b32 s50, s47, 2
    s_add_u32 s{P+2}, s{P+2}, s50
    s_lshl_b32 s{P+2}, s{P+2}, 2
    s_add_u32 s{P+2}, s{P+2}, s3
    s_lshl_b32 s{P+2}, s{P+2}, 10
    s_add_u32 s{P+2}, s{P+2}, {hex(WOP)}
    s_mov_b32 s{P+3}, 4096
    s_mov_b32 s{P+4}, 1
    s_mov_b32 s{P+5}, 0
    s_branch LP_w""")
    a.label("LP_d")
    make_srd(a, SR, 74, 1792*512*2)
    a(f"""s_sub_u32 s46, s2, 480
    s_and_b32 s47, s46, 7
    s_lshr_b32 s46, s46, 3
    s_mov_b32 s{P}, 1024
    s_mul_i32 s{P+1}, s46, {112*1024}
    s_lshl_b32 s48, s47, 7
    s_add_u32 s{P+1}, s{P+1}, s48
    s_lshl_b32 s{P+2}, s47, 4
    s_add_u32 s{P+2}, s{P+2}, s46
    s_mul_i32 s{P+2}, s{P+2}, {14*1024}
    s_add_u32 s{P+2}, s{P+2}, {hex(WDP)}
    s_mov_b32 s{P+3}, 4096
    s_mov_b32 s{P+4}, 2
    s_mov_b32 s{P+5}, 0
    s_branch LP_w""")
    a.label("LP_g")
    make_srd(a, SR, 76, 512*1792*2)
    a("""s_sub_u32 s46, s2, 256
    s_mov_b32 s52, 0
    s_cmp_lt_u32 s46, 112
    s_cbranch_scc1 LP_g2
    s_sub_u32 s46, s46, 112
    s_mov_b32 s52, 1""")
    a(f"s_mov_b32 s{SR}, s78")
    a(f"s_mov_b32 s{SR+1}, s79")
    a.label("LP_g2")
    a(f"""s_and_b32 s47, s46, 3
    s_lshr_b32 s46, s46, 2
    s_mov_b32 s{P}, 3584
    s_mul_i32 s{P+1}, s47, {128*3584}
    s_lshl_b32 s48, s46, 7
    s_add_u32 s{P+1}, s{P+1}, s48
    s_lshl_b32 s48, s46, 2
    s_add_u32 s48, s48, s3
    s_mul_i32 s51, s48, 147
    s_lshr_b32 s51, s51, 10
    s_mul_i32 s49, s51, 7
    s_sub_u32 s49, s48, s49
    s_lshl_b32 s49, s49, 1
    s_add_u32 s49, s49, s52
    s_mul_i32 s{P+2}, s51, 224
    s_add_u32 s{P+2}, s{P+2}, s49
    s_mov_b32 s{P+3}, 8192
    s_cmp_lt_u32 s49, 8
    s_cbranch_scc1 LP_g3
    s_add_u32 s{P+2}, s{P+2}, 120
    s_mov_b32 s{P+3}, 6144""")
    a.label("LP_g3")
    a(f"""s_lshl_b32 s{P+2}, s{P+2}, 10
    s_lshl_b32 s50, s{P+3}, 2
    s_mul_i32 s50, s50, s47
    s_add_u32 s{P+2}, s{P+2}, s50
    s_add_u32 s{P+2}, s{P+2}, {hex(WGUP)}
    s_mov_b32 s{P+4}, 0
    s_mul_i32 s{P+5}, s51, 14
    s_add_u32 s{P+5}, s{P+5}, s49
    s_lshl_b32 s{P+5}, s{P+5}, 9
    s_lshl_b32 s50, s47, 7
    s_add_u32 s{P+5}, s{P+5}, s50
    s_add_u32 s{P+5}, s{P+5}, {hex(CSGU)}""")
    a.label("LP_w")
    a(f"""v_lshrrev_b32 v17, 3, v2
    v_mul_lo_u32 v17, v17, s{P}
    v_and_b32 v18, 7, v2
    v_lshl_add_u32 v17, v18, 4, v17
    s_lshl_b32 s46, s{P}, 3
    s_lshl_b32 s47, s3, 2
    s_mul_i32 s47, s47, s46
    s_add_u32 s47, s47, s{P+1}
    s_lshl_b32 s48, s3, 12""")
    for i in range(4):
        a("s_mov_b32 m0, s48")
        a("s_add_u32 s48, s48, 1024")
        a(f"buffer_load_dwordx4 v17, s[{SR}:{SR+3}], s47 offen lds")
        a("s_add_u32 s47, s47, s46")
    a("""v_lshrrev_b32 v18, 2, v3
    v_and_b32 v19, 3, v3
    v_lshlrev_b32 v19, 3, v19
    s_lshl_b32 s46, s3, 5
    v_add_u32 v19, s46, v19
    v_lshl_add_u32 v20, v4, 2, v18
    v_lshrrev_b32 v21, 1, v4
    v_lshlrev_b32 v21, 4, v21
    v_and_b32 v22, 1, v4
    v_lshl_add_u32 v21, v22, 2, v21
    v_add_u32 v21, v21, v18
    v_lshl_add_u32 v20, v20, 7, v19
    v_lshl_add_u32 v21, v21, 7, v19
    v_lshlrev_b32 v23, 3, v3""")
    for i in range(4): a(f"v_mov_b32 v{24+i}, 0x3f803f80")
    a("""s_waitcnt vmcnt(0)
    s_barrier
    s_cmp_eq_u32 s34, 1
    s_cbranch_scc1 LP_pi2
    s_cmp_eq_u32 s34, 2
    s_cbranch_scc1 LP_dn""")
    for mode in (0, 1):
        if mode == 1: a.label("LP_pi2")
        br = 20 if mode == 0 else 21
        for s_ in range(4):
            a(f"ds_read_b64_tr_b16 {vr(32+4*s_,2)}, v{br} offset:{4096*s_}")
            a(f"ds_read_b64_tr_b16 {vr(34+4*s_,2)}, v{br} offset:{4096*s_ + (2048 if mode == 0 else 1024)}")
        a(f"s_mov_b32 s46, s{P+2}")
        for s_ in range(4):
            a(f"s_waitcnt lgkmcnt({2*(3-s_)})")
            a(f"buffer_store_dwordx4 {vr(32+4*s_)}, v10, s[8:11], s46 offen")
            if mode == 0:
                c = "v[28:31]" if s_ else "0"
                a(f"v_mfma_f32_16x16x32_bf16 v[28:31], v[24:27], {vr(32+4*s_)}, {c}")
            a(f"s_add_u32 s46, s46, s{P+3}")
        if mode == 0:
            a("s_nop 7")
            build_csfrag(a, 28, 48, 50, None)
            a("s_mov_b64 exec, 0xffff")
            a(f"buffer_store_dwordx2 v[48:49], v23, s[8:11], s{P+5} offen")
        a("s_branch LP_end")
    a.label("LP_dn")
    for p in range(3):
        a(f"ds_read_b64_tr_b16 {vr(32+4*p,2)}, v20 offset:{2048*(2*p)}")
        a(f"ds_read_b64_tr_b16 {vr(34+4*p,2)}, v20 offset:{2048*(2*p+1)}")
    a(f"ds_read_b64_tr_b16 {vr(44,2)}, v20 offset:{2048*6}")
    a("""s_lshl_b32 s46, s3, 10
    s_add_u32 s46, s46, s32
    s_lshr_b32 s47, s3, 1
    s_lshl_b32 s47, s47, 10
    s_and_b32 s48, s3, 1
    s_lshl_b32 s48, s48, 3
    s_add_u32 s47, s47, s48
    s_add_u32 s47, s47, s32
    s_add_u32 s47, s47, 12288
    s_waitcnt lgkmcnt(0)""")
    for p in range(3):
        a(f"buffer_store_dwordx4 {vr(32+4*p)}, v10, s[8:11], s46 offen")
        a("s_add_u32 s46, s46, 4096")
    a(f"buffer_store_dwordx2 {vr(44,2)}, v10, s[8:11], s47 offen")
    a("s_branch LP_end")
    a.label("LP_x")
    make_srd(a, 12, 68, 2048*512*2)
    a("""s_sub_u32 s23, s2, 96
    s_lshl_b32 s24, s23, 14
    s_lshl_b32 s25, s3, 8
    s_add_u32 s24, s24, s25
    v_lshlrev_b32 v5, 10, v3
    v_lshl_add_u32 v5, v4, 3, v5""")
    for s in range(4):
        a(f"buffer_load_dwordx2 {vr(32+4*s,2)}, v5, s[12:15], s24 offen offset:{64*s}")
        a(f"buffer_load_dwordx2 {vr(34+4*s,2)}, v5, s[12:15], s24 offen offset:{64*s+32}")
    a("""s_lshr_b32 s26, s23, 1
    s_lshl_b32 s26, s26, 4
    s_lshl_b32 s27, s3, 2
    s_add_u32 s26, s26, s27
    s_lshl_b32 s26, s26, 1
    s_and_b32 s27, s23, 1
    s_add_u32 s26, s26, s27
    s_lshl_b32 s26, s26, 10""")
    a(f"s_add_u32 s26, s26, {hex(XIN)}")
    a("s_add_u32 s27, s26, 4096")
    a("v_mov_b32 v12, 0x3f803f80")
    for i in range(4): a(f"v_mov_b32 v{16+i}, 0")
    a("s_cmp_ge_u32 s23, 10")
    a("s_cbranch_scc1 LP_nz")
    a("s_lshl_b32 s28, s23, 2")
    a("s_add_u32 s28, s28, s3")
    a("s_lshl_b32 s28, s28, 10")
    a(f"s_add_u32 s28, s28, {hex(FLG)}")
    a("buffer_store_dwordx4 v[16:19], v10, s[8:11], s28 offen")
    a.label("LP_nz")
    a("s_waitcnt vmcnt(0)")
    a(f"buffer_store_dwordx4 {vr(32)}, v10, s[8:11], s26 offen")
    a(f"buffer_store_dwordx4 {vr(36)}, v10, s[8:11], s26 offen offset:2048")
    a(f"buffer_store_dwordx4 {vr(40)}, v10, s[8:11], s27 offen")
    a(f"buffer_store_dwordx4 {vr(44)}, v10, s[8:11], s27 offen offset:2048")
    for blk in range(2):
        for i in range(8):
            r = 32 + 8*blk + i
            a(f"v_dot2_f32_bf16 v{16+2*blk}, v{r}, v12, v{16+2*blk}")
            a(f"v_dot2_f32_bf16 v{17+2*blk}, v{r}, v{r}, v{17+2*blk}")
    a("s_nop 3")
    reduce_g_multi(a, [16,17,18,19], [20,21,22,23])
    a("""s_lshl_b32 s26, s23, 10
    s_lshl_b32 s27, s3, 8
    s_add_u32 s26, s26, s27""")
    a(f"s_add_u32 s26, s26, {hex(STA)}")
    a("""v_lshlrev_b32 v11, 3, v3
    v_cmp_eq_u32 vcc, 0, v4
    s_and_saveexec_b64 s[30:31], vcc
    buffer_store_dwordx2 v[16:17], v11, s[8:11], s26 offen
    buffer_store_dwordx2 v[18:19], v11, s[8:11], s26 offen offset:128""")
    a.label("LP_end")
    a("s_endpgm")
    return kernel_desc(name, 56, 56, 80)

S_QRB, S_QCB, S_HEAD, S_QB, S_PRB, S_PCB, S_GRB, S_GCB = 16, 17, 18, 19, 20, 21, 22, 23
S_LOFF, S_LAYER, S_FLG = 24, 25, 26
RES = 248
V_L16, V_LANE, V_T, V_G, V_L4 = 1, 2, 3, 4, 5
RED = 98304
nstamp = [0]
STAMP_NAMES = []

def gen_main(a):
    name = "main_kernel"
    vm = VM()
    uid = [0]
    V_MASK = 9
    VO = [10, 11, 12, 13]
    V_ST = 8
    V_B1, V_B2 = 14, 15
    SCR = 162816
    RED_WO, RED_DN = 0, 98304
    def stamp(label):
        if STAMP:
            i = nstamp[0]; nstamp[0] += 1; STAMP_NAMES.append(label)
            a("s_memtime s[60:61]")
            a("s_waitcnt lgkmcnt(0)")
            a("s_cmp_eq_u32 s25, 0")
            a(f"s_cbranch_scc0 LS_{i}")
            a(f"v_writelane_b32 v246, s60, {i}")
            a.label(f"LS_{i}")
            a(f"v_writelane_b32 v247, s60, {i}")
    def signal(tag, phase, grp_sgpr, member_sgpr):
        u = uid[0]; uid[0] += 1
        a(f"s_lshl_b32 s40, s{grp_sgpr}, 8")
        a(f"s_lshl_b32 s41, s{member_sgpr}, 2")
        a("s_add_u32 s40, s40, s41")
        a(f"s_add_u32 s40, s40, s{S_FLG}")
        a(f"s_add_u32 s40, s40, {phase*4096}")
        a("v_mov_b32 v6, 1")
        a("v_mov_b32 v7, 0")
        vm.wait(a, tag)
        a("s_barrier")
        a("s_cmp_lg_u32 s3, 0")
        a(f"s_cbranch_scc1 LSG_{u}")
        a("s_mov_b64 exec, 1")
        a("buffer_store_dword v6, v7, s[8:11], s40 offen sc1")
        a("s_mov_b64 exec, -1")
        a.label(f"LSG_{u}")
    def poll(phase, grp_sgpr, n, prev_layer=False):
        u = uid[0]; uid[0] += 1
        a("s_cmp_lg_u32 s3, 0")
        a(f"s_cbranch_scc1 LPO_{u}")
        a(f"s_lshl_b32 s40, s{grp_sgpr}, 8")
        a(f"s_add_u32 s40, s40, s{S_FLG}")
        off = phase*4096 - (5*4096 if prev_layer else 0)
        if off >= 0: a(f"s_add_u32 s40, s40, {off}")
        else: a(f"s_sub_u32 s40, s40, {-off}")
        a(f"s_mov_b32 s42, {hex((1 << n) - 1)}")
        a("s_mov_b32 s43, 0")
        a("s_mov_b64 exec, s[42:43]")
        a("s_mov_b32 s41, 0")
        a.label(f"LPL_{u}")
        a(f"buffer_load_dword v6, v{V_L4}, s[8:11], s40 offen sc1")
        a("s_add_u32 s41, s41, 1")
        a("s_waitcnt vmcnt(0)")
        a("v_cmp_ne_u32 vcc, 1, v6")
        a(f"s_cmp_gt_u32 s41, {POLL_LIMIT}")
        a(f"s_cbranch_scc1 LPX_{u}")
        a("s_nop 2")
        a(f"s_cbranch_vccnz LPL_{u}")
        a.label(f"LPX_{u}")
        a("s_mov_b64 exec, -1")
        a.label(f"LPO_{u}")
        a("s_barrier")
    def lds_rd(dst, addr):
        base = [V_L16, V_B1, V_B2][addr >> 16]
        a(f"ds_read_b128 {vr(dst)}, v{base} offset:{addr & 0xffff}")

    kernel_begin(a, name)
    a("s_cmp_ge_u32 s2, 256")
    a("s_cbranch_scc1 LM_end")
    a("s_load_dwordx2 s[4:5], s[0:1], 72")
    a("s_load_dwordx2 s[6:7], s[0:1], 56")
    a(f"""v_lshrrev_b32 v1, 6, v0
    v_and_b32 v{V_LANE}, 63, v0
    v_readfirstlane_b32 s3, v1
    v_and_b32 v{V_T}, 15, v{V_LANE}
    v_lshrrev_b32 v{V_G}, 4, v{V_LANE}
    v_lshlrev_b32 v{V_L16}, 4, v{V_LANE}
    v_lshlrev_b32 v{V_L4}, 2, v{V_LANE}
    v_cmp_gt_u32 vcc, 16, v{V_LANE}
    v_add_u32 v{V_B1}, 0x10000, v{V_L16}
    v_add_u32 v{V_B2}, 0x20000, v{V_L16}
    v_cndmask_b32 v{V_MASK}, 0, -1, vcc
    s_and_b32 s30, s2, 7
    s_lshr_b32 s31, s2, 3
    s_and_b32 s32, s31, 3
    s_lshr_b32 s33, s31, 2
    s_lshr_b32 s{S_QRB}, s30, 1
    s_lshl_b32 s{S_QRB}, s{S_QRB}, 2
    s_add_u32 s{S_QRB}, s{S_QRB}, s32
    s_and_b32 s{S_QCB}, s30, 1
    s_lshl_b32 s{S_QCB}, s{S_QCB}, 3
    s_add_u32 s{S_QCB}, s{S_QCB}, s33
    s_lshl_b32 s{S_HEAD}, s30, 2
    s_add_u32 s{S_HEAD}, s{S_HEAD}, s32
    s_mov_b32 s{S_QB}, s33
    s_mov_b32 s{S_PRB}, s{S_HEAD}
    s_mov_b32 s{S_PCB}, s33
    s_lshr_b32 s{S_GRB}, s30, 2
    s_lshl_b32 s{S_GRB}, s{S_GRB}, 3
    s_and_b32 s34, s31, 7
    s_add_u32 s{S_GRB}, s{S_GRB}, s34
    s_and_b32 s{S_GCB}, s30, 3
    s_lshl_b32 s{S_GCB}, s{S_GCB}, 2
    s_lshr_b32 s34, s31, 3
    s_add_u32 s{S_GCB}, s{S_GCB}, s34
    s_mov_b32 s{S_LOFF}, 0
    s_mov_b32 s{S_LAYER}, 0
    s_mov_b32 s{S_FLG}, {hex(FLG)}""")
    for i in range(4):
        a(f"s_xor_b32 s34, s3, {i}")
        a("s_lshl_b32 s34, s34, 10")
        a(f"v_add_u32 v{VO[i]}, s34, v{V_L16}")
    a(f"v_lshlrev_b32 v{V_ST}, 8, v{V_G}")
    a(f"v_lshl_add_u32 v{V_ST}, v{V_T}, 3, v{V_ST}")
    if STAMP:
        a("v_mov_b32 v246, 0"); a("v_mov_b32 v247, 0")
        a("s_memrealtime s[62:63]")
    a("s_waitcnt lgkmcnt(0)")
    make_srd(a, 8, 4, WS_SIZE)
    make_srd(a, 12, 6, 2048*512*2)
    stamp("start")

    def qkv_w_dma():
        a(f"s_mul_i32 s30, s{S_QCB}, {96*1024}")
        a(f"s_add_u32 s30, s30, {hex(WQKVP)}")
        a("s_mul_i32 s31, s3, 3072")
        a("s_add_u32 s30, s30, s31")
        for c in range(8):
            a("s_mov_b32 m0, s31")
            a("s_add_u32 s31, s31, 12288")
            for i in range(3):
                a(f"buffer_load_dwordx4 v{V_L16}, s[8:11], s30 offen offset:{1024*i} lds")
            a("s_add_u32 s30, s30, 12288")
        vm.add("qw", 24)
    def xtile_addr(dst, base):
        a(f"s_lshl_b32 s{dst}, s{S_PRB}, 2")
        a(f"s_add_u32 s{dst}, s{dst}, s3")
        a(f"s_and_b32 s45, s{dst}, 1")
        a(f"s_lshr_b32 s{dst}, s{dst}, 1")
        a(f"s_lshl_b32 s{dst}, s{dst}, 4")
        a(f"s_lshl_b32 s46, s{S_PCB}, 1")
        a(f"s_add_u32 s{dst}, s{dst}, s46")
        a(f"s_lshl_b32 s{dst}, s{dst}, 1")
        a(f"s_add_u32 s{dst}, s{dst}, s45")
        a(f"s_lshl_b32 s{dst}, s{dst}, 10")
        a(f"s_add_u32 s{dst}, s{dst}, {hex(base)}")
        a(f"s_add_u32 s{dst}, s{dst}, s{S_LOFF}")
    def cs_load(ntile, csbase, cbreg, dst):
        a(f"v_lshlrev_b32 v7, 3, v{V_LANE}")
        a(f"s_mul_i32 s32, s{cbreg}, {ntile*512}")
        a(f"s_add_u32 s32, s32, {hex(csbase)}")
        for i in range(ntile):
            if i == 8: a("s_add_u32 s32, s32, 4096")
            a(f"buffer_load_dwordx2 {vr(dst+2*i,2)}, v7, s[8:11], s32 offen offset:{512*(i%8)}")
        vm.add("cs", ntile)
    QCS, QCF = 124, 112
    cs_load(6, CSQKV, S_QCB, QCF)
    qkv_w_dma()
    xtile_addr(44, XIN)
    a(f"buffer_load_dwordx4 {vr(RES)}, v{V_L16}, s[8:11], s44 offen")
    a(f"buffer_load_dwordx4 {vr(RES+4)}, v{V_L16}, s[8:11], s44 offen offset:2048")
    a("s_branch LM_q0")

    a.label("LM_layer")
    cs_load(6, CSQKV, S_QCB, QCF)
    poll(4, S_QRB, 16, prev_layer=True)
    a.label("LM_q0")
    vm.reset()
    stamp("qkv polled")
    a(f"s_lshl_b32 s30, s{S_QRB}, 2")
    a("s_add_u32 s30, s30, s3")
    a("s_lshl_b32 s33, s30, 15")
    a(f"s_add_u32 s33, s33, {hex(XIN)}")
    a(f"s_add_u32 s33, s33, s{S_LOFF}")
    def xload(s, tag="x"):
        a(f"buffer_load_dwordx4 {ar(8*s)}, v{V_L16}, s[8:11], s33 offen offset:{2048*(s%2)} sc1")
        a(f"buffer_load_dwordx4 {ar(8*s+4)}, v{V_L16}, s[8:11], s33 offen offset:{2048*(s%2)+1024} sc1")
        if s % 2 == 1: a("s_add_u32 s33, s33, 4096")
        vm.add(f"{tag}{s}", 2)
    def stats_load(base, dst):
        a("s_lshl_b32 s31, s30, 11")
        a(f"s_add_u32 s31, s31, {hex(base)}")
        a(f"s_add_u32 s31, s31, s{S_LOFF}")
        for tt in range(2):
            a(f"buffer_load_dwordx2 {vr(dst+4*tt,2)}, v{V_ST}, s[8:11], s31 offen offset:{1024*tt} sc1")
            a(f"buffer_load_dwordx2 {vr(dst+4*tt+2,2)}, v{V_ST}, s[8:11], s31 offen offset:{1024*tt+128} sc1")
        vm.add("st", 4)
    PX = 8
    for s in range(2): xload(s)
    QST = 132
    stats_load(STA, QST)
    for s in range(2, PX): xload(s)
    def acc(tile, tt): return 16 + (tile*2+tt)*4
    def wf(s, i): return 64 + ((s&1)*6 + i)*4
    NM, RS, NF, RSR = 140, 142, 144, 148
    vm.wait(a, "x0")
    a("s_barrier")
    stamp("qkv start")
    for i in range(6): lds_rd(wf(0,i), i*1024)
    for s in range(16):
        vm.wait(a, f"x{s}")
        for i in range(6):
            if s < 15:
                lds_rd(wf(s+1,i), (s+1)*6144 + i*1024)
                a("s_waitcnt lgkmcnt(6)")
            else:
                a(f"s_waitcnt lgkmcnt({5-i})")
            for tt in range(2):
                c = vr(acc(i,tt)) if s else "0"
                if i < 4: a(f"v_mfma_f32_16x16x32_bf16 {vr(acc(i,tt))}, {vr(wf(s,i))}, {ar(8*s+4*tt)}, {c}")
                else: a(f"v_mfma_f32_16x16x32_bf16 {vr(acc(i,tt))}, {ar(8*s+4*tt)}, {vr(wf(s,i))}, {c}")
            if i == 2 and s + PX < 16: xload(s + PX)
        if s == 3:
            stats_finish(a, [QST, QST+4], [156,157,158,159], [NM, NM+1], [RS, RS+1])
            for tt in range(2): build_nmfrag(a, NM+tt, NF+2*tt, 156, V_MASK)
            a("s_lshl_b32 s34, s3, 8")
            a(f"s_add_u32 s34, s34, {SCR}")
            a(f"v_lshl_add_u32 v156, v{V_T}, 2, s34")
            a(f"v_lshl_add_u32 v157, v{V_G}, 4, s34")
            a(f"ds_write_b32 v156, v{RS}")
            a(f"ds_write_b32 v156, v{RS+1} offset:64")
            a("s_waitcnt lgkmcnt(0)")
            a(f"ds_read_b128 {vr(RSR)}, v157")
            a(f"ds_read_b128 {vr(RSR+4)}, v157 offset:64")
            a("s_waitcnt lgkmcnt(0)")
        if s == 8:
            a(f"""v_lshrrev_b32 v160, 1, v{V_G}
            v_lshlrev_b32 v160, 9, v160
            v_and_b32 v163, 1, v{V_G}
            v_lshl_add_u32 v161, v163, 8, v160
            v_lshl_add_u32 v161, v{V_T}, 4, v161
            v_lshrrev_b32 v162, 2, v{V_T}
            v_lshlrev_b32 v162, 3, v162
            v_lshl_add_u32 v162, v163, 2, v162
            v_and_b32 v163, 3, v{V_T}
            v_add_u32 v162, v162, v163
            v_lshl_add_u32 v162, v162, 4, v160""")
            a(f"v_mul_f32 v{NM}, {f32hex(0.25*LOG2E)}, v{RS}")
            a(f"v_mul_f32 v{NM+1}, {f32hex(0.25*LOG2E)}, v{RS+1}")
            a(f"s_lshl_b32 s31, s{S_QCB}, 7")
            a("s_add_u32 s31, s31, s30")
            a("s_lshl_b32 s31, s31, 10")
            a(f"s_add_u32 s31, s31, s{S_LOFF}")
    order = (2, 3, 4, 5, 0, 1)
    for i in order:
        for tt in range(2):
            if i < 4: a(f"v_mfma_f32_16x16x16_bf16 {vr(acc(i,tt))}, {vr(QCF+2*i,2)}, {vr(NF+2*tt,2)}, {vr(acc(i,tt))}")
            else: a(f"v_mfma_f32_16x16x16_bf16 {vr(acc(i,tt))}, {vr(NF+2*tt,2)}, {vr(QCF+2*i,2)}, {vr(acc(i,tt))}")
    stamp("qkv mfma done")
    for k, tile in enumerate(order):
        which, hh = tile >> 1, tile & 1
        base = [QF, KF, VF][which] + hh*65536
        a(f"s_add_u32 s32, s31, {hex(base)}")
        if k >= 4: a("s_nop 3")
        for tt in range(2):
            b = acc(tile, tt)
            for r in range(4):
                sc = (NM+tt) if which == 0 else (RS+tt) if which == 1 else (RSR+4*tt+r)
                a(f"v_mul_f32 v{b+r}, v{sc}, v{b+r}")
        d = 64 + tile*4
        for tt in range(2):
            b = acc(tile, tt)
            a(f"v_cvt_pk_bf16_f32 v{d+2*tt}, v{b}, v{b+1}")
            a(f"v_cvt_pk_bf16_f32 v{d+2*tt+1}, v{b+2}, v{b+3}")
        if which < 2:
            a("s_nop 1")
            a(f"v_permlane16_swap_b32 v{d}, v{d+2}")
            a(f"v_permlane16_swap_b32 v{d+1}, v{d+3}")
            a(f"buffer_store_dwordx4 {vr(d)}, v{161+which}, s[8:11], s32 offen sc1")
            vm.add("o", 1)
        else:
            a(f"buffer_store_dwordx4 {vr(d)}, v{V_L16}, s[8:11], s32 offen sc1")
            vm.add("o", 1)
    signal("o", 0, S_QCB, S_QRB)
    stamp("qkv signaled")

    S = lambda u: 72 + 16*(u & 3)
    C = lambda u: 136 + 16*(u & 1)
    O = lambda u: 168 + 16*(u & 1)
    Q = lambda u: 16 + 4*(u & 1)
    KFR = lambda t: 24 + 4*(t & 3)
    V0 = lambda t: 40 + 8*(t & 3)
    V1 = lambda t: 44 + 8*(t & 3)
    IDX, KA, VA0, VA1 = 200, 201, 202, 203
    VB = 65536; VST = 1056
    a(f"""v_and_b32 v24, 31, v{V_LANE}
    v_lshrrev_b32 v25, 1, v24
    s_lshl_b32 s30, s3, 4
    v_add_u32 v25, s30, v25
    v_mul_u32_u24 v25, {VST}, v25
    v_and_b32 v28, 1, v{V_LANE}
    v_lshl_add_u32 v25, v28, 4, v25
    v_add_u32 v25, {VB+1024}, v25
    v_mul_u32_u24 v28, 0x3f80, v28
    v_lshl_or_b32 v28, v28, 16, v28
    v_mov_b32 v29, v28
    v_mov_b32 v30, v28
    v_mov_b32 v31, v28
    ds_write_b128 v25, v[28:31]""")
    a(f"""v_lshrrev_b32 v32, 5, v{V_LANE}
    v_lshlrev_b32 v33, 8, v32
    v_lshl_add_u32 v33, v24, 4, v33
    v_add_u32 v33, {VB}, v33
    v_and_b32 v34, 27, v24
    v_cmp_eq_u32 vcc, 16, v34
    v_mov_b32 v34, {VB+1024}
    v_mov_b32 v35, {VB+1040}
    v_cndmask_b32 v34, v34, v35, vcc
    v_cmp_gt_u32 vcc, 16, v24
    v_subrev_u32 v35, 0x200, v34
    s_nop 0
    v_cndmask_b32 v204, v34, v33, vcc
    v_cndmask_b32 v205, v35, v33, vcc
    v_mov_b32 v{IDX}, 0xdddddddd
    s_lshr_b32 s35, s{S_HEAD}, 1""")
    for i in range(16):
        a(f"v_mov_b32 v{O(0)+i}, 0")
        a(f"v_mov_b32 v{O(1)+i}, 0")
        a(f"v_mov_b32 v{S(3)+i}, 0")
    a(f"""s_lshl_b32 s30, s{S_HEAD}, 16
    s_add_u32 s30, s30, s{S_LOFF}
    s_lshl_b32 s31, s{S_QB}, 3
    s_lshl_b32 s32, s3, 1
    s_add_u32 s31, s31, s32
    s_lshl_b32 s31, s31, 10
    s_add_u32 s31, s31, s30""")
    a(f"s_add_u32 s31, s31, {hex(QF)}")
    a("s_lshl_b32 s32, s3, 10")
    a(f"s_mul_i32 s33, s3, {VST}")
    a(f"s_add_u32 s33, s33, {VB}")
    a("s_add_u32 s36, s30, s32")
    a(f"s_add_u32 s37, s36, {hex(VF)}")
    a(f"s_add_u32 s36, s36, {hex(KF)}")
    a(f"""s_lshl_b32 s56, s{S_PCB}, 4
    s_lshl_b32 s57, s3, 2
    s_add_u32 s56, s56, s57
    s_lshl_b32 s56, s56, 12""")
    a(f"s_add_u32 s56, s56, {hex(WOP)}")
    a(f"s_mul_i32 s54, s{S_PCB}, 56")
    a("s_mul_i32 s55, s3, 14")
    a("s_add_u32 s54, s54, s55")
    a("s_lshl_b32 s54, s54, 12")
    a(f"s_add_u32 s54, s54, {hex(WDP)}")
    a(f"s_mul_i32 s50, s{S_GCB}, {224*1024}")
    a(f"s_add_u32 s50, s50, {hex(WGUP)}")
    a("s_lshl_b32 s51, s3, 13")
    a("s_add_u32 s50, s50, s51")
    for k in range(16):
        s_, ct = divmod(k, 4)
        a(f"buffer_load_dwordx4 {ar(16*s_+4*ct)}, v{V_L16}, s[8:11], s56 offen offset:{1024*ct}")
        if ct == 3: a("s_add_u32 s56, s56, 4096")
    vm.add("wo", 16)
    poll(0, 35, 16)
    stamp("attn polled")
    def kv_round(r):
        a("s_mov_b32 m0, s32")
        a("s_add_u32 s32, s32, 4096")
        a(f"buffer_load_dwordx4 v{V_L16}, s[8:11], s36 offen sc1 lds")
        a("s_mov_b32 m0, s33")
        a(f"s_add_u32 s33, s33, {4*VST}")
        a(f"buffer_load_dwordx4 v{V_L16}, s[8:11], s37 offen sc1 lds")
        a("s_add_u32 s36, s36, 4096")
        a("s_add_u32 s37, s37, 4096")
        vm.add(f"kv{r}", 2)
    a(f"buffer_load_dwordx4 {vr(Q(0))}, v{V_L16}, s[8:11], s31 offen sc1")
    a(f"buffer_load_dwordx4 {vr(Q(1))}, v{V_L16}, s[8:11], s31 offen offset:1024 sc1")
    vm.add("q", 2)
    for r in range(3): kv_round(r)
    CH = 32768; NSLOT = 5
    SLOT = [65536, 98304, 131072, 0, 32768]
    def gu_dma(c):
        sl = SLOT[c % NSLOT]
        a(f"s_add_u32 s52, s51, {sl}")
        a("s_mov_b32 m0, s52")
        a("s_add_u32 s53, s50, 4096")
        for i in range(4): a(f"buffer_load_dwordx4 v{V_L16}, s[8:11], s50 offen offset:{1024*i} lds")
        a(f"s_add_u32 s52, s51, {sl+4096}")
        a("s_mov_b32 m0, s52")
        a(f"s_add_u32 s50, s50, {CH}")
        for i in range(4): a(f"buffer_load_dwordx4 v{V_L16}, s[8:11], s53 offen offset:{1024*i} lds")
        vm.add(f"gw{c}", 8)
    def WDR(k):
        if k < 32: return ('a', 128 + 4*k)
        if k < 40: return ('v', 212 + 4*(k-32))
        return ('v', 128 + 4*(k-40))
    def wd_load(k):
        a(f"buffer_load_dwordx4 {R(WDR(k))}, v{V_L16}, s[8:11], s54 offen offset:{1024*(k%4)}")
        if k % 4 == 3: a("s_add_u32 s54, s54, 4096")
        vm.add("wd", 1)
    a("s_mov_b32 s39, 0")
    vm.wait(a, "kv0")
    a("s_waitcnt lgkmcnt(0)")
    a("s_barrier")
    stamp("attn data")
    a(f"ds_read_b128 {vr(KFR(0))}, v{V_L16}")
    a("s_waitcnt lgkmcnt(0)")
    for q in range(2):
        a(f"v_mfma_f32_32x32x16_bf16 {vr(S(q),16)}, {vr(KFR(0))}, {vr(Q(q))}, 0")
    a("s_nop 12")
    for q in range(2):
        m = 206 + q
        if q: a("s_nop 3")
        a(f"v_max3_f32 v{m}, v{S(q)}, v{S(q)+1}, v{S(q)+2}")
        for i in range(3, 15, 2):
            a(f"v_max3_f32 v{m}, v{m}, v{S(q)+i}, v{S(q)+i+1}")
        a(f"v_max_f32 v{m}, v{m}, v{S(q)+15}")
    a.label("LA_restart")
    a("""v_mov_b32 v208, v206
    v_mov_b32 v209, v207
    s_nop 1
    v_permlane32_swap_b32 v206, v208
    v_permlane32_swap_b32 v207, v209
    s_nop 1
    v_max_f32 v206, v206, v208
    v_max_f32 v207, v207, v209""")
    a(f"v_mov_b32 v{KA}, v{V_L16}")
    a(f"v_mov_b32 v{VA0}, v204")
    a(f"v_mov_b32 v{VA1}, v205")
    for t in range(2):
        a(f"ds_read_b128 {vr(KFR(t))}, v{KA} offset:{1024*t}")
    a(f"ds_read_b128 {vr(V0(0))}, v{VA0}")
    a(f"ds_read_b128 {vr(V1(0))}, v{VA1} offset:512")
    a(f"ds_read_b128 {vr(V1(3))}, v{VA1} offset:512")
    for i in range(16): a(f"v_sub_f32 v{C(0)+i}, 0, v206")
    a("s_waitcnt lgkmcnt(0)")
    a("s_nop 0")
    a(f"v_mfma_f32_32x32x16_bf16 {vr(S(0),16)}, {vr(KFR(0))}, {vr(Q(0))}, {vr(C(0),16)}")
    for i in range(16): a(f"v_sub_f32 v{C(1)+i}, 0, v207")
    a("s_nop 1")
    a(f"v_mfma_f32_32x32x16_bf16 {vr(S(1),16)}, {vr(KFR(0))}, {vr(Q(1))}, {vr(C(1),16)}")
    def attn_body(mode):
        for u in range(16):
            t = u >> 1
            def ex(lo, hi):
                for i in range(lo, hi): a(f"v_exp_f32 v{S(u)+i}, v{S(u)+i}")
            ex(0, 4)
            a(f"v_smfmac_f32_32x32x32_bf16 {vr(O(u-1),16)}, {vr(V1((u-1)>>1))}, {vr(S(u-1)+8,8)}, v{IDX}")
            if u % 2 == 0:
                if mode == 1 and u == 2:
                    vm.wait(a, "kv2")
                    a("s_barrier")
                a("s_waitcnt lgkmcnt(0)")
                a(f"ds_read_b128 {vr(KFR(t+2))}, v{KA} offset:{1024*(t+2)}")
                a(f"ds_read_b128 {vr(V0(t+1))}, v{VA0} offset:{VST*(t+1)}")
                a(f"ds_read_b128 {vr(V1(t+1))}, v{VA1} offset:{VST*(t+1)+512}")
            ex(4, 10)
            a(f"v_mfma_f32_32x32x16_bf16 {vr(S(u+2),16)}, {vr(KFR((u+2)>>1))}, {vr(Q(u))}, {vr(C(u),16)}")
            if mode == 1 and u < 13: kv_round(3 + u)
            ex(10, 14)
            a(f"v_smfmac_f32_32x32x32_bf16 {vr(O(u),16)}, {vr(V0(t))}, {vr(S(u),8)}, v{IDX}")
            ex(14, 16)
        a(f"v_add_u32 v{KA}, 0x2000, v{KA}")
        a(f"v_add_u32 v{VA0}, {8*VST}, v{VA0}")
        a(f"v_add_u32 v{VA1}, {8*VST}, v{VA1}")
    a("s_mov_b32 s38, 8")
    a("s_cmp_lg_u32 s39, 0")
    a("s_cbranch_scc1 LA_loop")
    attn_body(1)
    vm.wait(a, "kv15")
    a("s_barrier")
    a("s_mov_b32 s38, 7")
    a.label("LA_loop")
    attn_body(0)
    a("s_sub_u32 s38, s38, 1")
    a("s_cmp_lg_u32 s38, 0")
    a("s_cbranch_scc1 LA_loop")
    a(f"v_smfmac_f32_32x32x32_bf16 {vr(O(1),16)}, {vr(V1(3))}, {vr(S(3)+8,8)}, v{IDX}")
    a(f"""v_and_b32 v24, 31, v{V_LANE}
    v_lshrrev_b32 v25, 4, v24
    v_lshlrev_b32 v25, 10, v25
    v_lshrrev_b32 v26, 5, v{V_LANE}
    v_lshl_add_u32 v25, v26, 8, v25
    v_lshl_add_u32 v25, v{V_T}, 4, v25
    s_lshl_b32 s30, s{S_QB}, 2
    s_add_u32 s30, s30, s3
    s_lshl_b32 s30, s30, 4
    s_lshr_b32 s31, s{S_HEAD}, 1
    s_add_u32 s30, s30, s31
    s_lshl_b32 s30, s30, 12
    s_and_b32 s31, s{S_HEAD}, 1
    s_lshl_b32 s31, s31, 9
    s_add_u32 s30, s30, s31
    s_add_u32 s30, s30, s{S_LOFF}""")
    a(f"s_add_u32 s30, s30, {hex(OF)}")
    a("s_waitcnt lgkmcnt(0)")
    stamp("attn loop done")
    a("s_cmp_lg_u32 s39, 0")
    a("s_cbranch_scc1 LA_fin")
    a("v_mov_b32 v208, 0x4e800000")
    a(f"v_max_f32 v209, v{O(0)+8}, v{O(1)+8}")
    a(f"v_add_f32 v210, v{O(0)+8}, v{O(1)+8}")
    a("v_cmp_nlt_f32 vcc, v209, v208")
    a("v_cmp_u_f32 s[40:41], v210, v210")
    a("s_nop 3")
    a("s_or_b64 vcc, vcc, s[40:41]")
    a("s_cbranch_vccz LA_fin")
    a("s_mov_b32 s39, 1")
    a("v_mov_b32 v206, 0xff800000")
    a("v_mov_b32 v207, 0xff800000")
    a(f"v_mov_b32 v{KA}, v{V_L16}")
    a("s_mov_b32 s38, 64")
    a.label("LA_maxloop")
    a(f"ds_read_b128 {vr(KFR(0))}, v{KA}")
    a("s_waitcnt lgkmcnt(0)")
    for q in range(2):
        a(f"v_mfma_f32_32x32x16_bf16 {vr(S(q),16)}, {vr(KFR(0))}, {vr(Q(q))}, 0")
    a("s_nop 15")
    a("s_nop 3")
    for q in range(2):
        for i in range(0, 16, 2):
            a(f"v_max3_f32 v{206+q}, v{206+q}, v{S(q)+i}, v{S(q)+i+1}")
    a(f"v_add_u32 v{KA}, 0x400, v{KA}")
    a("s_sub_u32 s38, s38, 1")
    a("s_cmp_lg_u32 s38, 0")
    a("s_cbranch_scc1 LA_maxloop")
    for i in range(16):
        a(f"v_mov_b32 v{O(0)+i}, 0")
        a(f"v_mov_b32 v{O(1)+i}, 0")
        a(f"v_mov_b32 v{S(3)+i}, 0")
    a("s_branch LA_restart")
    a.label("LA_fin")
    a(f"v_rcp_f32 v206, v{O(0)+8}")
    a(f"v_rcp_f32 v207, v{O(1)+8}")
    a("s_nop 0")
    for q in range(2):
        for i in range(8): a(f"v_mul_f32 v{O(q)+i}, v{206+q}, v{O(q)+i}")
        for i in range(4): a(f"v_cvt_pk_bf16_f32 v{28+4*q+i}, v{O(q)+2*i}, v{O(q)+2*i+1}")
        a(f"buffer_store_dwordx4 {vr(28+4*q)}, v25, s[8:11], s30 offen offset:{2048*q} sc1")
    vm.add("o", 2)
    signal("o", 1, S_QB, S_HEAD)
    stamp("attn signaled")

    V1 = int(os.environ.get("V1", "0"))
    for c in range(3 - V1): gu_dma(c)
    def pacc(ct, i, base): return base + (i*4 + ct)*4
    a(f"""s_lshr_b32 s35, s{S_PRB}, 2
    s_lshl_b32 s30, s{S_PRB}, 4
    s_lshl_b32 s31, s3, 2
    s_add_u32 s30, s30, s31
    s_lshl_b32 s30, s30, 12
    s_add_u32 s30, s30, s{S_LOFF}""")
    a(f"s_add_u32 s30, s30, {hex(OF)}")
    poll(1, 35, 32)
    stamp("wo polled")
    for s in range(4):
        for i in range(4):
            a(f"buffer_load_dwordx4 {vr(16+16*s+4*i)}, v{VO[i]}, s[8:11], s30 offen sc1")
        a("s_add_u32 s30, s30, 4096")
        vm.add(f"of{s}", 4)
    def red_setup(red):
        for i in range(1, 4):
            a(f"s_xor_b32 s34, s3, {i}")
            a("s_mul_i32 s34, s34, 12288")
            a(f"s_add_u32 s34, s34, {red + (i-1)*4096}")
            a(f"v_add_u32 v{207+i}, s34, v{V_L16}")
        a("s_mul_i32 s34, s3, 12288")
        a(f"s_add_u32 s34, s34, {red}")
        a(f"v_add_u32 v211, s34, v{V_L16}")
    for c in range(3 - V1, 3): gu_dma(c)
    red_setup(RED_WO)
    for s in range(4):
        vm.wait(a, f"of{s}")
        for i in (1, 2, 3, 0):
            for ct in range(4):
                c = vr(pacc(ct,i,80)) if s else "0"
                a(f"v_mfma_f32_16x16x32_bf16 {vr(pacc(ct,i,80))}, {ar(16*s+4*ct)}, {vr(16+16*s+4*i)}, {c}")
    def reduce_and_residual(accbase, rdbase, scale_reg):
        for i in range(1, 4):
            if i == 3: a("s_nop 3")
            for ct in range(4):
                a(f"ds_write_b128 v{207+i}, {vr(pacc(ct,i,accbase))} offset:{ct*1024}")
        X = rdbase + 48
        for i in range(8):
            a(f"v_lshlrev_b32 v{X+2*i}, 16, v{RES+i}")
            a(f"v_and_b32 v{X+2*i+1}, 0xffff0000, v{RES+i}")
        a("s_waitcnt lgkmcnt(0)")
        a("s_barrier")
        for j in range(3):
            for ct in range(4):
                a(f"ds_read_b128 {vr(rdbase + (j*4+ct)*4)}, v211 offset:{j*4096 + ct*1024}")
        A0 = accbase
        a("s_waitcnt lgkmcnt(8)")
        for i in range(16): a(f"v_add_f32 v{A0+i}, v{A0+i}, v{rdbase+i}")
        a("s_waitcnt lgkmcnt(0)")
        for i in range(16): a(f"v_add_f32 v{rdbase+16+i}, v{rdbase+16+i}, v{rdbase+32+i}")
        for i in range(16): a(f"v_add_f32 v{A0+i}, v{A0+i}, v{rdbase+16+i}")
        for i in range(16):
            if scale_reg is not None: a(f"v_fma_f32 v{A0+i}, v{A0+i}, v{scale_reg}, v{X+i}")
            else: a(f"v_add_f32 v{A0+i}, v{A0+i}, v{X+i}")
            if i % 2 == 1: a(f"v_cvt_pk_bf16_f32 v{RES+i//2}, v{A0+i-1}, v{A0+i}")
    def out_addrs(xbase, stbase, extra_off):
        xtile_addr(44, xbase + extra_off)
        a(f"""s_lshl_b32 s47, s{S_PRB}, 2
        s_add_u32 s47, s47, s3
        s_lshl_b32 s47, s47, 10
        s_lshl_b32 s31, s{S_PCB}, 7
        s_add_u32 s47, s47, s31
        s_add_u32 s47, s47, s{S_LOFF}""")
        a(f"s_add_u32 s47, s47, {hex(stbase + extra_off)}")
        a(f"s_lshr_b32 s35, s{S_PRB}, 1")
        a(f"s_and_b32 s36, s{S_PRB}, 1")
        a("s_lshl_b32 s36, s36, 3")
        a(f"s_add_u32 s36, s36, s{S_PCB}")
    def store_x_and_stats():
        a(f"buffer_store_dwordx4 {vr(RES)}, v{V_L16}, s[8:11], s44 offen sc1")
        a(f"buffer_store_dwordx4 {vr(RES+4)}, v{V_L16}, s[8:11], s44 offen offset:2048 sc1")
        a("v_mov_b32 v206, 0x3f803f80")
        a("v_mov_b32 v202, 0")
        a("v_mov_b32 v203, 0")
        for i in range(8):
            a(f"v_dot2_f32_bf16 v202, v{RES+i}, v206, v202")
            a(f"v_dot2_f32_bf16 v203, v{RES+i}, v{RES+i}, v203")
        a("s_nop 3")
        reduce_g_multi(a, [202, 203], [204, 205])
        a("s_mov_b64 exec, 0xffff")
        a(f"buffer_store_dwordx2 v[202:203], v{V_ST}, s[8:11], s47 offen sc1")
        a("s_mov_b64 exec, -1")
        vm.add("o", 3)
    out_addrs(X1F, STB, 0)
    stamp("wo mfma done")
    reduce_and_residual(80, 144, None)
    store_x_and_stats()
    signal("o", 2, 35, 36)
    stamp("wo signaled")

    V3 = int(os.environ.get("V3", "0"))
    for c in range(3, 5 - V3): gu_dma(c)
    GCS, GCF = 188, 160
    cs_load(14, CSGU, S_GCB, GCF)
    a(f"s_lshl_b32 s30, s{S_GRB}, 2")
    a("s_add_u32 s30, s30, s3")
    a("s_lshl_b32 s33, s30, 15")
    a(f"s_add_u32 s33, s33, {hex(X1F)}")
    a(f"s_add_u32 s33, s33, s{S_LOFF}")
    a(f"""s_lshr_b32 s34, s30, 1
    s_lshl_b32 s34, s34, 4
    s_add_u32 s34, s34, s{S_GCB}
    s_mul_i32 s34, s34, 14
    s_and_b32 s35, s30, 1
    s_add_u32 s36, s34, s35
    s_add_u32 s35, s36, s35
    s_lshl_b32 s35, s35, 10
    s_lshl_b32 s36, s36, 10
    s_add_u32 s35, s35, s{S_LOFF}
    s_add_u32 s36, s36, s{S_LOFF}""")
    a(f"s_add_u32 s35, s35, {hex(HF)}")
    a(f"s_add_u32 s36, s36, {hex(HF + 12288)}")
    vm.wait(a, "cs")
    poll(2, S_GRB, 16)
    stamp("gu polled")
    GST = 188
    for s in range(2): xload(s)
    stats_load(STB, GST)
    for s in range(2, PX): xload(s)
    for c in range(5 - V3, 5): gu_dma(c)
    NM, RS, NF = 196, 198, 200
    RING = 8; AHEAD = 6
    def gwf(n): return 128 + (n % RING)*4
    def rd(n): lds_rd(gwf(n), SLOT[(n // 32) % NSLOT] + (n % 32)*1024)
    TOT = 224
    def nmap(n):
        if n < 128: return divmod(n, 8)
        s_, t6 = divmod(n - 128, 6)
        return s_, 8 + t6
    def epi_pair(i, tt):
        G, U = acc(2*i, tt), acc(2*i+1, tt)
        L = [f"v_max_f32 v{G+r}, 0, v{G+r}" for r in range(4)] + [f"v_mul_f32 v{G+r}, v{G+r}, v{U+r}" for r in range(4)]
        if i < 6: d = U if i % 2 == 0 else acc(2*(i-1)+1, tt) + 2
        else: d = acc(13, 0) + 2*tt if tt == 0 else None
        if i == 6:
            d = 204 + 2*tt
        L += [f"v_cvt_pk_bf16_f32 v{d}, v{G}, v{G+1}", f"v_cvt_pk_bf16_f32 v{d+1}, v{G+2}, v{G+3}"]
        if i < 6 and i % 2 == 1:
            L.append(("ST", f"buffer_store_dwordx4 {vr(d-2)}, v{V_L16}, s[8:11], s35 offen offset:{1024*tt} sc1"))
            if tt == 1: L.append("s_add_u32 s35, s35, 4096")
        if i == 6 and tt == 1:
            L.append(("ST", f"buffer_store_dwordx4 v[204:207], v{V_L16}, s[8:11], s36 offen sc1"))
        return L
    def emit(x):
        if isinstance(x, tuple): a(x[1]); vm.add("o", 1)
        else: a(x)
    epiA = []
    for i in range(4):
        for tt in range(2): epiA += epi_pair(i, tt)
    stamp("gu start")
    for n in range(AHEAD): rd(n)
    wdk = 0
    for n in range(TOT):
        s, i = nmap(n)
        if n < 128 and i == 0: vm.wait(a, f"x{s}")
        m = n + AHEAD
        if m < TOT:
            if m % 32 == 0:
                c = m // 32
                if c in (2, 3):
                    if c == 3 and V3 == 2: vm.wait(a, "gw3")
                    a("s_barrier"); gu_dma(c+3)
                if c == 4 and V3 >= 1:
                    vm.wait(a, "gw4"); a("s_barrier")
                if c in (5, 6):
                    vm.wait(a, f"gw{c}"); a("s_barrier")
            rd(m)
            a(f"s_waitcnt lgkmcnt({AHEAD})")
        else:
            a(f"s_waitcnt lgkmcnt({TOT-1-n})")
        for tt in range(2):
            c = vr(acc(i,tt)) if s else "0"
            a(f"v_mfma_f32_16x16x32_bf16 {vr(acc(i,tt))}, {vr(gwf(n))}, {ar(8*s+4*tt)}, {c}")
        if n < 128 and i == 3 and s + PX < 16: xload(s + PX)
        if n == 40:
            stats_finish(a, [GST, GST+4], [204,205,206,207], [NM, NM+1], [RS, RS+1])
            for tt in range(2): build_nmfrag(a, NM+tt, NF+2*tt, 204, V_MASK)
        if n == 127:
            for i2 in range(8):
                for tt in range(2):
                    a(f"v_mfma_f32_16x16x16_bf16 {vr(acc(i2,tt))}, {vr(GCF+2*i2,2)}, {vr(NF+2*tt,2)}, {vr(acc(i2,tt))}")
        if n >= 132:
            for _ in range(2):
                if epiA: emit(epiA.pop(0))
        if n >= 100 and n % 3 == 0 and wdk < 40:
            wd_load(wdk); wdk += 1
    assert not epiA and wdk == 40, (len(epiA), wdk)
    for i in range(8, 14):
        for tt in range(2):
            a(f"v_mfma_f32_16x16x16_bf16 {vr(acc(i,tt))}, {vr(GCF+2*i,2)}, {vr(NF+2*tt,2)}, {vr(acc(i,tt))}")
    stamp("gu mfma done")
    for i in range(4, 7):
        for tt in range(2):
            for x in epi_pair(i, tt): emit(x)
    signal("o", 3, S_GRB, S_GCB)
    stamp("gu signaled")

    for k in range(40, 56): wd_load(k)
    a(f"""s_lshr_b32 s35, s{S_PRB}, 1
    s_lshl_b32 s49, s{S_PRB}, 2
    s_add_u32 s49, s49, s3
    s_lshl_b32 s49, s49, 10
    s_add_u32 s49, s49, s{S_LOFF}""")
    a(f"s_add_u32 s49, s49, {hex(STB)}")
    a(f"""s_mul_i32 s48, s{S_PRB}, 56
    s_mul_i32 s34, s3, 14
    s_add_u32 s48, s48, s34
    s_lshl_b32 s48, s48, 12
    s_add_u32 s48, s48, s{S_LOFF}""")
    a(f"s_add_u32 s48, s48, {hex(HF)}")
    red_setup(RED_DN)
    VH = [200, 201, 202, 203]
    for i in range(4):
        a(f"s_xor_b32 s34, s3, {i}")
        a("s_lshr_b32 s37, s34, 1")
        a("s_lshl_b32 s37, s37, 10")
        a("s_and_b32 s34, s34, 1")
        a("s_lshl_b32 s34, s34, 3")
        a("s_add_u32 s34, s34, s37")
        a(f"v_add_u32 v{VH[i]}, s34, v{V_L16}")
    poll(3, 35, 16)
    stamp("down polled")
    HD = 8
    def hload(s):
        half = (s % 4 == 3)
        for i in range(4):
            if half: a(f"buffer_load_dwordx2 {ar(16*(s%HD)+4*i,2)}, v{VH[i]}, s[8:11], s48 offen sc1")
            else: a(f"buffer_load_dwordx4 {ar(16*(s%HD)+4*i)}, v{VO[i]}, s[8:11], s48 offen sc1")
        a(f"s_add_u32 s48, s48, {2048 if half else 4096}")
        vm.add(f"h{s}", 4)
    HP = 6
    hload(0)
    a(f"buffer_load_dwordx2 v[192:193], v{V_ST}, s[8:11], s49 offen sc1")
    a(f"buffer_load_dwordx2 v[194:195], v{V_ST}, s[8:11], s49 offen offset:128 sc1")
    vm.add("st", 2)
    for s in range(1, HP): hload(s)
    for s in range(16):
        vm.wait(a, f"h{s}")
        cbl, p = divmod(s, 4)
        for i in (1, 2, 3, 0):
            for ct in range(4):
                c = vr(pacc(ct,i,16)) if s else "0"
                if p < 3:
                    a(f"v_mfma_f32_16x16x32_bf16 {vr(pacc(ct,i,16))}, {R(WDR(cbl*14+p*4+ct))}, {ar(16*(s%HD)+4*i)}, {c}")
                else:
                    w_ = WDR(cbl*14 + 12 + (ct >> 1))
                    a(f"v_mfma_f32_16x16x16_bf16 {vr(pacc(ct,i,16))}, {R((w_[0], w_[1]+2*(ct&1)),2)}, {ar(16*(s%HD)+4*i,2)}, {c}")
            if i == 1 and s + HP < 16: hload(s + HP)
        if s == 2:
            stats_finish(a, [192], [196, 197], [198], [199])
            a("v_mul_f32 v199, v199, v199")
            out_addrs(XIN, STA, LSTRIDE)
    stamp("down mfma done")
    reduce_and_residual(16, 80, 199)
    a(f"s_cmp_lg_u32 s{S_LAYER}, 0")
    a("s_cbranch_scc1 LM_final")
    store_x_and_stats()
    signal("o", 4, 35, 36)
    stamp("down signaled")
    qkv_w_dma()
    a(f"s_mov_b32 s{S_LAYER}, 1")
    a(f"s_mov_b32 s{S_LOFF}, {hex(LSTRIDE)}")
    a(f"s_mov_b32 s{S_FLG}, {hex(FLG + 5*4096)}")
    a("s_branch LM_layer")
    a.label("LM_final")
    a(f"""v_lshlrev_b32 v6, 10, v{V_T}
    v_lshl_add_u32 v6, v{V_G}, 3, v6
    s_lshl_b32 s30, s{S_PRB}, 2
    s_add_u32 s30, s30, s3
    s_lshl_b32 s30, s30, 14
    s_lshl_b32 s31, s{S_PCB}, 7
    s_add_u32 s30, s30, s31""")
    for ct in range(4):
        a(f"buffer_store_dwordx2 {vr(RES+2*ct,2)}, v6, s[12:15], s30 offen offset:{32*ct}")
    if STAMP:
        a("s_waitcnt vmcnt(0)")
        stamp("end")
        a("s_memrealtime s[64:65]")
        a("s_waitcnt lgkmcnt(0)")
        a("v_writelane_b32 v246, s62, 62")
        a("v_writelane_b32 v246, s64, 63")
        a("s_lshl_b32 s30, s2, 2")
        a("s_add_u32 s30, s30, s3")
        a("s_lshl_b32 s30, s30, 9")
        a(f"s_add_u32 s30, s30, {hex(DBGR)}")
        a(f"buffer_store_dword v246, v{V_L4}, s[8:11], s30 offen")
        a(f"buffer_store_dword v247, v{V_L4}, s[8:11], s30 offen offset:256")
    a.label("LM_end")
    a("s_endpgm")
    return kernel_desc(name, 512, 256)

def main(out_path):
    a = Asm()
    hdr = open("cdna_kernels/" + NAME + ".s.ref").read().split("; Override launch")[0]
    launches = [("prep_kernel", PREP_NWG, 256, 16384), ("main_kernel", 256, 256, 163840)]
    out = hdr
    for k, g, b, l in launches:
        out += f"; @launch kernel={k} grid=({g},1,1) block=({b},1,1) lds={l}\n"
    out += '.amdgcn_target "amdgcn-amd-amdhsa--gfx950"\n.text\n'
    descs = [gen_prep(a), gen_main(a)]
    out += a.text()
    out += '.section .rodata,"a"\n' + "".join(descs)
    open(out_path, "w").write(out)
    if STAMP: open(out_path + ".stamps", "w").write("\n".join(STAMP_NAMES))

if __name__ == "__main__":
    main(sys.argv[1] if len(sys.argv) > 1 else "cdna_kernels/" + NAME + ".s")
```
